```python
import torch

def _softmax(x, axis=-1):
    return torch.softmax(x, dim=axis)
def _gelu(x):
    return torch.nn.functional.gelu(x, approximate="tanh")
def _silu(x):
    return torch.nn.functional.silu(x)
def _sigmoid(x):
    return torch.sigmoid(x)
def _layernorm(x, axis=-1, eps=1e-5):
    m = x.mean(dim=axis, keepdim=True)
    v = x.var(dim=axis, keepdim=True, unbiased=False)
    return (x - m) / torch.sqrt(v + eps)
def _scatter_add(tgt, idx, src, axis=0):
    return tgt.clone().index_add_(axis, idx, src)
def _segment_sum(src, seg, n):
    out = torch.zeros((n,) + src.shape[1:], dtype=src.dtype)
    return out.index_add_(0, seg, src)
def _pad(x, pw):
    flat = tuple(v for pair in reversed(pw) for v in pair)
    return torch.nn.functional.pad(x, flat)

kernel_name = 'gated_mix__sliding_local_dilated__dense_activation_mish__prompt'

def setup_inputs():

    _w = (lambda a: (lambda t: t.to(torch.bfloat16) if t.is_floating_point() else t)(torch.as_tensor(a)))
    def _A_setup():
        B, S, D = 1, 2048, 512
        return {
            "x": _w((lambda *s: torch.randn(*s, dtype=torch.bfloat16) * 0.05)(B, S, D)),
            "wqkv": _w((lambda *s: torch.randn(*s, dtype=torch.bfloat16) * 0.8)(D, 3 * D)),
            "wo": _w((lambda *s: torch.randn(*s, dtype=torch.bfloat16) * 0.05)(D, D)),
        }
    _A_in = _A_setup()

    def _B_setup():
        B, S, D, F = 1, 2048, 512, 1376
        return {
            "x": _w((lambda *s: torch.randn(*s, dtype=torch.bfloat16) * 0.05)(B, S, D)),
            "w1": _w((lambda *s: torch.randn(*s, dtype=torch.bfloat16) * 12.8)(D, F) * (D ** -0.5)),
            "b1": _w((lambda *s: torch.randn(*s, dtype=torch.bfloat16) * 0.8)(F)),
            "w2": _w((lambda *s: torch.randn(*s, dtype=torch.bfloat16) * 0.8)(F, D) * (F ** -0.5)),
        }
    _B_in = _B_setup()

    return {
        "A_x": _A_in["x"],
        "A_wqkv": _A_in["wqkv"],
        "A_wo": _A_in["wo"],
        "B_x": _B_in["x"],
        "B_w1": _B_in["w1"],
        "B_b1": _B_in["b1"],
        "B_w2": _B_in["w2"],
        "gate_w": _w((lambda *s: torch.randn(*s, dtype=torch.bfloat16) * 0.05)(512) * 16.0),
    }

def reference(A_x, A_wqkv, A_wo, B_x, B_w1, B_b1, B_w2, gate_w):
    def _A_ref(x, wqkv, wo):
        B, S, D = x.shape
        H = 32; Dh = D // H
        W, dil = 8, 2
        qkv = (lambda x, *d: x.permute(*d))((x @ wqkv).reshape(B, S, 3, H, Dh), 2, 0, 3, 1, 4)
        q, k, v = qkv[0], qkv[1], qkv[2]
        scale = Dh ** -0.5
        pos = torch.arange(S)
        off = torch.arange(W) * dil
        idx = pos[:, None] - off[None, :]
        mask = idx >= 0
        idx_c = torch.where(mask, idx, 0).reshape(-1)
        kg = k[:, :, idx_c, :].reshape(B, H, S, W, Dh)
        vg = v[:, :, idx_c, :].reshape(B, H, S, W, Dh)
        logits = torch.einsum("bhsd,bhswd->bhsw", q, kg) * scale
        logits = torch.where(mask[None, None, :, :], logits, -1e9)
        attn = _softmax(logits, axis=-1)
        o = torch.einsum("bhsw,bhswd->bhsd", attn, vg)
        return (lambda x, *d: x.permute(*d))(o, 0, 2, 1, 3).reshape(B, S, D) @ wo

    def _B_ref(x, w1, b1, w2):
        h = torch.einsum("bsd,df->bsf", x, w1) + b1
        sp = torch.log1p(torch.exp(-torch.abs(h))) + torch.where(h > 0, h, torch.zeros_like(h))
        act = h * torch.tanh(sp)
        return torch.einsum("bsf,fd->bsd", act, w2)

    x = A_x
    g = _sigmoid((x * gate_w).sum(-1, keepdims=True))
    a = _A_ref(x, A_wqkv, A_wo)
    b = _B_ref(x, B_w1, B_b1, B_w2)
    return g * a + (1 - g) * b
```

```python
class Asm:
    def __init__(self):
        self.L = []
    def __call__(self, s=""):
        for ln in s.split("\n"):
            ln = ln.strip()
            if ln: self.L.append(ln if ln.endswith(":") else "  " + ln)
    def label(self, n): self.L.append(n + ":")
    def text(self): return "\n".join(self.L) + "\n"
    def nop(self, n):
        while n > 0:
            k = min(n, 16); self(f"s_nop {k-1}"); n -= k

def vr(b, n=1): return f"v{b}" if n == 1 else f"v[{b}:{b+n-1}]"
def ar(b, n=1): return f"a{b}" if n == 1 else f"a[{b}:{b+n-1}]"
def sr(b, n=1): return f"s{b}" if n == 1 else f"s[{b}:{b+n-1}]"

def interleave(main, fill, start=0, per=1):
    out = []; f = list(fill)
    for i, m in enumerate(main):
        out.append(m)
        if i >= start:
            for _ in range(per):
                if f:
                    g = f.pop(0)
                    out.extend(g if isinstance(g, list) else [g])
    for g in f: out.extend(g if isinstance(g, list) else [g])
    return out

def kd(name, vgpr, accum, sgpr=102):
    return f""".section .rodata,"a"
.p2align 6
.amdhsa_kernel {name}
  .amdhsa_next_free_vgpr {vgpr}
  .amdhsa_next_free_sgpr {sgpr}
  .amdhsa_accum_offset {accum}
  .amdhsa_group_segment_fixed_size 0
  .amdhsa_kernarg_size 88
  .amdhsa_user_sgpr_count 2
  .amdhsa_user_sgpr_kernarg_segment_ptr 1
  .amdhsa_system_sgpr_workgroup_id_x 1
.end_amdhsa_kernel
"""
```

```python
import sys
from asmlib import *

NAME = "gated_mix__sliding_local_dilated__dense_activation_mish__prompt"
LOG2E = 0x3fb8aa3b
STAGE = 43008
WOFF = 18432
AWS_U = 131072
G_OFF = 8 << 20
UNIT0 = [0, 6, 12, 18, 23, 28, 33, 38]

HEADER = """; Two launches: phase 1 builds the phase-2 activation fragments (attention output and mish(FFN1)) and the gate,
"""

def srd(a, s, ptr, size):
    a(f"s_mov_b32 s{s}, s{ptr}")
    a(f"s_and_b32 s{s+1}, s{ptr+1}, 0xffff")
    a(f"s_mov_b32 s{s+2}, {size}")
    a(f"s_mov_b32 s{s+3}, 0x00020000")

XO, WO, XB, WB, XA, WA = 16, 21, 27, 29, 35, 37
GX, GW, GR, BIAS = 44, 52, 56, 58
ACC = 96
SET = [0, 44]

def p1_reads(role, st, h):
    base = SET[st]; out = []
    nx = 5 if role == "att" else 4
    w = []
    for tt in range(6):
        off = h * 4096 + ((tt >> 1) * 8192 if role == "att" else 0)
        r = base + 20 + 4 * tt
        w.append(f"ds_read_b64_tr_b16 {ar(r,2)}, v{WA+(tt&1 if role=='att' else tt)} offset:{off}")
        w.append(f"ds_read_b64_tr_b16 {ar(r+2,2)}, v{WA+(tt&1 if role=='att' else tt)} offset:{off+512}")
    x = [f"ds_read_b128 {ar(base+4*t,4)}, v{XA+h} offset:{t*2048}" for t in range(nx)]
    out = [x[0], w[0], w[1], x[1]] + w[2:4] + x[2:] + w[4:]
    return out

def p1_mfmas(role, st):
    base = SET[st]; X = lambda t: ar(base + 4*t, 4); W = lambda t: ar(base + 20 + 4*t, 4)
    out = []
    if role == "att":
        for a_ in range(2):
            for t in range(5):
                c = ACC + 4*(8 + 2*t + a_); out.append(f"v_mfma_f32_16x16x32_bf16 {vr(c,4)}, {W(2+a_)}, {X(t)}, {vr(c,4)}")
        for a_ in range(2):
            for t in range(1, 5):
                c = ACC + 4*(2*(t-1) + a_); out.append(f"v_mfma_f32_16x16x32_bf16 {vr(c,4)}, {W(a_)}, {X(t)}, {vr(c,4)}")
        for a_ in range(2):
            for t in range(5):
                c = ACC + 4*(18 + 2*t + a_); out.append(f"v_mfma_f32_16x16x32_bf16 {vr(c,4)}, {X(t)}, {W(4+a_)}, {vr(c,4)}")
    else:
        for ct in range(6):
            for rt in range(4):
                c = ACC + 4*(6*rt + ct); out.append(f"v_mfma_f32_16x16x32_bf16 {vr(c,4)}, {W(ct)}, {X(rt)}, {vr(c,4)}")
    return out

def p1_dma(role, bufreg):
    g = []
    if role == "att":
        g.append(["s_cmp_lt_u32 s40, 2", f"s_cbranch_scc0 1f", f"s_add_u32 m0, s{bufreg}, s49", "s_nop 0",
                  f"buffer_load_dwordx4 v{XO+4}, s[16:19], s51 offen lds", "1:"])
    for j in range(4):
        m = f"s_add_u32 m0, s{bufreg}, s48" if j == 0 else "s_add_u32 m0, m0, 1024"
        g.append([m, "s_nop 0", f"buffer_load_dwordx4 v{XO+j}, s[16:19], s51 offen lds"])
    for j in range(6):
        m = f"s_add_u32 m0, s{bufreg}, s50" if j == 0 else "s_add_u32 m0, m0, 1024"
        g.append([m, "s_nop 0", f"buffer_load_dwordx4 v{WO+j}, s[20:23], s52 offen lds"])
    return g

def p1_addr_update(role):
    n = 2 if role == "att" else 6
    return [f"v_add_u32 v{XA+h}, s46, v{XB+h}" for h in range(2)] + [f"v_add_u32 v{WA+t}, s46, v{WB+t}" for t in range(n)]

def rot(a, reg):
    a(f"s_add_u32 s{reg}, s{reg}, {STAGE}")
    a(f"s_cmp_eq_u32 s{reg}, {3*STAGE}")
    a(f"s_cselect_b32 s{reg}, 0, s{reg}")

def p1_body(a, role, dma, tag):
    a("s_waitcnt lgkmcnt(0)")
    for x in interleave(p1_mfmas(role, 0), p1_reads(role, 1, 1)): a(x)
    if dma:
        a("s_waitcnt vmcnt(10) lgkmcnt(0)")
    else:
        a("s_waitcnt vmcnt(10) lgkmcnt(0)")
        a("s_cmp_eq_u32 s54, 5")
        a(f"s_cbranch_scc1 L{tag}_nw")
        a("s_waitcnt vmcnt(0)")
        a.label(f"L{tag}_nw")
    a("s_barrier")
    a("s_mov_b32 s47, s46")
    rot(a, 46)
    for x in p1_addr_update(role): a(x)
    fill = p1_reads(role, 0, 0)
    if dma: fill = fill + p1_dma(role, 47)
    for x in interleave(p1_mfmas(role, 1), fill): a(x)
    if dma:
        a("s_add_u32 s51, s51, 128")
        a("s_add_u32 s52, s52, s53")
    a("s_add_u32 s54, s54, 1")

def p1_main(a, role):
    R = role
    a("s_mov_b32 s51, 0"); a("s_mov_b32 s52, 0")
    for st in range(3):
        a(f"s_mov_b32 s47, {st*STAGE}")
        for g in p1_dma(R, 47):
            for x in g: a(x)
        if st == 0:
            a(f"buffer_load_dwordx4 {vr(GX,4)}, v4, s[16:19], 0 offen")
            a(f"buffer_load_dwordx4 {vr(GX+4,4)}, v4, s[16:19], 0 offen offset:1024")
            a(f"buffer_load_dwordx4 {vr(GW,4)}, v5, s[28:31], 0 offen")
            if R == "ffn":
                for tt in range(6):
                    a(f"buffer_load_dwordx2 {vr(BIAS+2*tt,2)}, v6, s[24:27], 0 offen offset:{tt*32}")
        a("s_add_u32 s51, s51, 128")
        a("s_add_u32 s52, s52, s53")
    nacc = 112 if R == "att" else 96
    for r in range(nacc): a(f"v_mov_b32 v{ACC+r}, 0")
    a("s_mov_b32 s46, 0"); a("s_mov_b32 s54, 0")
    for x in p1_addr_update(R): a(x)
    a("s_waitcnt vmcnt(20)")
    a("s_barrier")
    for x in p1_reads(R, 0, 0): a(x)
    for row in range(2):
        d = GR + row
        a(f"v_mov_b32 v{d}, 0")
    for q in range(4):
        for row in range(2):
            a(f"v_dot2_f32_bf16 v{GR+row}, v{GX+4*row+q}, v{GW+q}, v{GR+row}")
    a.nop(3)
    for sh in (8, 4, 2, 1):
        for row in range(2):
            a(f"v_add_f32_dpp v{GR+row}, v{GR+row}, v{GR+row} row_ror:{sh} row_mask:0xf bank_mask:0xf")
        a.nop(1)
    for op in ("v_permlane16_swap_b32", "v_permlane32_swap_b32"):
        for row in range(2): a(f"v_mov_b32 v{7+row}, v{GR+row}")
        a.nop(2)
        for row in range(2): a(f"{op} v{GR+row}, v{7+row}")
        a.nop(1)
        for row in range(2): a(f"v_add_f32 v{GR+row}, v{GR+row}, v{7+row}")
        a.nop(1)
    a(f"s_mov_b32 s56, {LOG2E ^ 0x80000000}")
    for row in range(2): a(f"v_mul_f32 v{GR+row}, s56, v{GR+row}")
    for row in range(2): a(f"v_exp_f32 v{GR+row}, v{GR+row}")
    a.nop(1)
    for row in range(2): a(f"v_add_f32 v{GR+row}, 1.0, v{GR+row}")
    for row in range(2): a(f"v_rcp_f32 v{GR+row}, v{GR+row}")
    a.label(f"L{R}_loopA")
    p1_body(a, R, True, R + "A")
    a("s_cmp_lt_u32 s54, 5")
    a(f"s_cbranch_scc1 L{R}_loopA")
    a.label(f"L{R}_loopB")
    p1_body(a, R, False, R + "B")
    a("s_cmp_lt_u32 s54, 8")
    a(f"s_cbranch_scc1 L{R}_loopB")
    a("s_waitcnt lgkmcnt(0)")
    a.nop(10)

def gate_store(a):
    a("v_cmp_eq_u32 vcc, 0, v1")
    a("s_and_saveexec_b64 s[58:59], vcc")
    a(f"buffer_store_dwordx2 {vr(GR,2)}, v86, s[36:39], 0 offen")
    a("s_mov_b64 exec, s[58:59]")

def p1_att_epilogue(a):
    Q = lambda t, h: ACC + 4*(2*(t-1) + h)
    Kc = lambda t, h: ACC + 4*(8 + 2*t + h)
    V = lambda t, h: ACC + 4*(18 + 2*t + h)
    KF, VF, QF = 208, 228, 16
    kf = lambda t, h: KF + 2*(2*t + h)
    vf = lambda t, h: VF + 2*(2*t + h)
    qf = lambda t, h: QF + 2*(2*(t-1) + h)
    for t in range(5):
        for h in range(2):
            for src, dst in ((Kc(t,h), kf(t,h)), (V(t,h), vf(t,h))):
                a(f"v_cvt_pk_bf16_f32 v{dst}, v{src}, v{src+1}")
                a(f"v_cvt_pk_bf16_f32 v{dst+1}, v{src+2}, v{src+3}")
    for t in range(1,5):
        for h in range(2):
            a(f"v_cvt_pk_bf16_f32 v{qf(t,h)}, v{Q(t,h)}, v{Q(t,h)+1}")
            a(f"v_cvt_pk_bf16_f32 v{qf(t,h)+1}, v{Q(t,h)+2}, v{Q(t,h)+3}")
    MC, MP, MF = 32, 36, 40
    a("v_lshlrev_b32 v4, 2, v2")
    a("v_sub_u32 v4, v3, v4")
    a("v_mov_b32 v5, 0xf149f2ca")
    for r in range(4):
        for blk, dst in ((0, MC), (16, MP)):
            a(f"v_add_u32 v6, {blk - r}, v4")
            a("v_and_b32 v7, 0x80000001, v6")
            a("v_cmp_eq_u32 vcc, 0, v7")
            a("v_cmp_ge_i32 s[58:59], 14, v6")
            a("s_nop 1")
            a("s_and_b64 vcc, vcc, s[58:59]")
            a("s_nop 1")
            a(f"v_cndmask_b32 v{dst+r}, v5, 0, vcc")
    a("s_or_b32 s56, s41, s44")
    a("s_cmp_eq_u32 s56, 0")
    a("s_cselect_b64 s[58:59], -1, 0")
    a("s_nop 1")
    for r in range(4):
        a(f"v_cndmask_b32 v{MF+r}, v{MP+r}, v5, s[58:59]")
    S = lambda t, h, blk: ACC + 8*(2*(t-1) + h) + 4*blk
    a.nop(2)
    for t in range(1,5):
        for h in range(2):
            a(f"v_mfma_f32_16x16x16_bf16 {vr(S(t,h,0),4)}, {vr(kf(t-1,h),2)}, {vr(qf(t,h),2)}, 0")
            a(f"v_mfma_f32_16x16x16_bf16 {vr(S(t,h,1),4)}, {vr(kf(t,h),2)}, {vr(qf(t,h),2)}, 0")
    a.nop(10)
    a(f"s_mov_b32 s56, {0x3eb8aa3b}")
    combos = [(t,h) for t in range(1,5) for h in range(2)]
    MX, SM = 4, 12
    T1 = 44
    for ci,(t,h) in enumerate(combos):
        mp = MF if t == 1 else MP
        for r in range(4):
            a(f"v_fma_f32 v{S(t,h,0)+r}, v{S(t,h,0)+r}, s56, v{mp+r}")
            a(f"v_fma_f32 v{S(t,h,1)+r}, v{S(t,h,1)+r}, s56, v{MC+r}")
    for ci,(t,h) in enumerate(combos):
        b = S(t,h,0)
        a(f"v_max3_f32 v{MX+ci}, v{b}, v{b+1}, v{b+2}")
        a(f"v_max3_f32 v{MX+ci}, v{MX+ci}, v{b+3}, v{b+4}")
        a(f"v_max3_f32 v{MX+ci}, v{MX+ci}, v{b+5}, v{b+6}")
        a(f"v_max_f32 v{MX+ci}, v{MX+ci}, v{b+7}")
    def xreduce(base, op):
        for sw in ("v_permlane16_swap_b32", "v_permlane32_swap_b32"):
            for ci in range(8): a(f"v_mov_b32 v{T1+ci}, v{base+ci}")
            a.nop(1)
            for ci in range(8): a(f"{sw} v{base+ci}, v{T1+ci}")
            a.nop(1)
            for ci in range(8): a(f"{op} v{base+ci}, v{base+ci}, v{T1+ci}")
    xreduce(MX, "v_max_f32")
    for ci,(t,h) in enumerate(combos):
        b = S(t,h,0)
        for r in range(8): a(f"v_sub_f32 v{b+r}, v{b+r}, v{MX+ci}")
    for ci,(t,h) in enumerate(combos):
        b = S(t,h,0)
        for r in range(8): a(f"v_exp_f32 v{b+r}, v{b+r}")
    a.nop(1)
    for ci,(t,h) in enumerate(combos):
        b = S(t,h,0)
        a(f"v_add_f32 v{MX+ci}, v{b}, v{b+1}")
        for r in range(2,8): a(f"v_add_f32 v{MX+ci}, v{MX+ci}, v{b+r}")
    xreduce(MX, "v_add_f32")
    for ci in range(8): a(f"v_rcp_f32 v{MX+ci}, v{MX+ci}")
    a.nop(1)
    PF = 52
    a(f"v_mov_b32 v84, v{GR}"); a(f"v_mov_b32 v85, v{GR+1}")
    for ci,(t,h) in enumerate(combos):
        b = S(t,h,0)
        for r in range(8): a(f"v_mul_f32 v{b+r}, v{b+r}, v{MX+ci}")
        for q in range(4): a(f"v_cvt_pk_bf16_f32 v{PF+4*ci+q}, v{b+2*q}, v{b+2*q+1}")
    a.nop(2)
    O = lambda ci: ACC + 64 + 4*ci
    for ci,(t,h) in enumerate(combos):
        a(f"v_mfma_f32_16x16x16_bf16 {vr(O(ci),4)}, {vr(vf(t-1,h),2)}, {vr(PF+4*ci,2)}, 0")
    for ci,(t,h) in enumerate(combos):
        a(f"v_mfma_f32_16x16x16_bf16 {vr(O(ci),4)}, {vr(vf(t,h),2)}, {vr(PF+4*ci+2,2)}, {vr(O(ci),4)}")
    a.nop(10)
    a("s_lshl_b32 s56, s43, 1"); a("s_add_u32 s56, s56, s45"); a(f"s_mul_i32 s56, s56, {AWS_U}")
    a("s_lshl_b32 s57, s41, 3"); a("s_lshl_b32 s60, s44, 2"); a("s_add_u32 s57, s57, s60"); a("s_lshl_b32 s57, s57, 10")
    a("v_lshlrev_b32 v4, 4, v1"); a("v_add_u32 v4, s57, v4")
    for t in range(1,5):
        d = 16 + 4*(t-1)
        for h in range(2):
            o = O(2*(t-1)+h)
            a(f"v_cvt_pk_bf16_f32 v{d+2*h}, v{o}, v{o+1}")
            a(f"v_cvt_pk_bf16_f32 v{d+2*h+1}, v{o+2}, v{o+3}")
        a(f"buffer_store_dwordx4 {vr(d,4)}, v4, s[32:35], s56 offen offset:{(t-1)*1024}")
    a(f"v_mov_b32 v{GR}, v84"); a(f"v_mov_b32 v{GR+1}, v85")

def p1_ffn_epilogue(a):
    BF = 208
    for tt in range(6):
        for q in range(2):
            a(f"v_lshlrev_b32 v{BF+4*tt+2*q}, 16, v{BIAS+2*tt+q}")
            a(f"v_and_b32 v{BF+4*tt+2*q+1}, 0xffff0000, v{BIAS+2*tt+q}")
    a(f"s_mov_b32 s56, {LOG2E}")
    a("s_mul_i32 s57, s45, 3"); a("s_add_u32 s57, s57, s55"); a("s_add_u32 s57, s57, 16"); a(f"s_mul_i32 s57, s57, {AWS_U}")
    a("s_lshl_b32 s60, s41, 3"); a("s_lshl_b32 s61, s44, 2"); a("s_add_u32 s60, s60, s61"); a("s_lshl_b32 s60, s60, 10")
    a("v_lshlrev_b32 v4, 4, v1"); a("v_add_u32 v4, s60, v4")
    T, U = 16, 24
    for m in range(3):
        if m == 2:
            a("s_cmp_ge_u32 s43, 3"); a("s_cselect_b32 s61, s45, 0"); a("s_cmp_eq_u32 s61, 1"); a("s_cbranch_scc1 Lffn_done")
        for rr in range(4):
            D = 32 + 4*(rr & 1)
            for hh in range(2):
                ct = 2*m + hh; c = ACC + 4*(6*rr + ct); b = BF + 4*ct
                for r in range(4): a(f"v_add_f32 v{c+r}, v{c+r}, v{b+r}")
                for r in range(4): a(f"v_mul_f32 v{T+r}, s56, v{c+r}")
                for r in range(4): a(f"v_exp_f32 v{T+r}, v{T+r}")
                for r in range(4): a(f"v_add_f32 v{T+r}, 1.0, v{T+r}")
                for r in range(4): a(f"v_fma_f32 v{T+r}, v{T+r}, v{T+r}, 1.0")
                for r in range(4): a(f"v_rcp_f32 v{T+r}, v{T+r}")
                for r in range(4): a(f"v_mul_f32 v{T+r}, v{c+r}, v{T+r}")
                for r in range(4): a(f"v_fma_f32 v{T+r}, v{T+r}, -2.0, v{c+r}")
                a(f"v_cvt_pk_bf16_f32 v{D+2*hh}, v{T}, v{T+1}")
                a(f"v_cvt_pk_bf16_f32 v{D+2*hh+1}, v{T+2}, v{T+3}")
            a(f"buffer_store_dwordx4 {vr(D,4)}, v4, s[32:35], s57 offen offset:{rr*1024}")
        a(f"s_add_u32 s57, s57, {AWS_U}")
    a.label("Lffn_done")

def phase1():
    a = Asm()
    K = "p1_kernel"
    a(f".globl {K}"); a(".p2align 8"); a(f".type {K},@function"); a.label(K)
    a("s_cmp_ge_u32 s2, 256"); a("s_cbranch_scc1 Lp1_end")
    a("s_load_dwordx4 s[4:7], s[0:1], 0")
    a("s_load_dwordx4 s[8:11], s[0:1], 32")
    a("s_load_dwordx2 s[12:13], s[0:1], 56")
    a("s_load_dwordx2 s[14:15], s[0:1], 80")
    a("v_and_b32 v1, 63, v0"); a("v_lshrrev_b32 v4, 6, v0"); a("v_lshrrev_b32 v2, 4, v1"); a("v_and_b32 v3, 15, v1")
    a("v_readfirstlane_b32 s40, v4")
    a("s_and_b32 s56, s2, 7"); a("s_lshr_b32 s57, s2, 3")
    a("s_lshr_b32 s58, s56, 2"); a("s_and_b32 s59, s56, 3")
    a("s_lshl_b32 s41, s58, 3"); a("s_lshr_b32 s60, s57, 2"); a("s_add_u32 s41, s41, s60")
    a("s_and_b32 s60, s57, 3"); a("s_lshr_b32 s42, s60, 1")
    a("s_lshl_b32 s43, s59, 1"); a("s_and_b32 s60, s60, 1"); a("s_add_u32 s43, s43, s60")
    a("s_lshr_b32 s44, s40, 1"); a("s_and_b32 s45, s40, 1")
    a("s_mul_i32 s55, s43, 6"); a("s_mul_i32 s56, s43, 5"); a("s_add_u32 s56, s56, 3")
    a("s_cmp_le_u32 s43, 3"); a("s_cselect_b32 s55, s55, s56")
    a("s_lshl_b32 s63, s41, 7")
    a("s_cmp_eq_u32 s42, 0")
    a("s_movk_i32 s56, 2752"); a("s_cselect_b32 s60, 3072, s56"); a("s_movk_i32 s56, 128"); a("s_cselect_b32 s61, 1024, s56")
    a("s_lshl_b32 s56, s43, 7"); a("s_lshl_b32 s57, s55, 6"); a("s_cmp_eq_u32 s42, 0"); a("s_cselect_b32 s62, s56, s57")
    a("s_cmp_eq_u32 s42, 0")
    a("s_cselect_b32 s56, 16, 0"); a("s_sub_u32 s63, s63, s56")
    a("s_lshl_b32 s53, s60, 6")
    a("s_lshl_b32 s48, s40, 12")
    a("s_add_u32 s49, s40, 16"); a("s_lshl_b32 s49, s49, 10")
    a("s_mul_i32 s50, s40, 6144"); a(f"s_add_u32 s50, s50, {WOFF}")
    a("v_lshrrev_b32 v4, 3, v1")
    a("v_and_b32 v5, 7, v1")
    a("v_xor_b32 v6, v5, v2")
    a("s_lshl_b32 s56, s40, 5"); a("s_add_u32 s56, s56, s63")
    for j in range(5):
        if j < 4:
            a(f"v_add_u32 v7, s56, v4"); a(f"v_add_u32 v7, {8*j}, v7")
            a(f"v_xor_b32 v8, {4*(j&1)}, v6")
        else:
            a("s_lshl_b32 s57, s40, 3"); a("s_add_u32 s57, s57, s63"); a("s_add_u32 s57, s57, 128")
            a("v_add_u32 v7, s57, v4")
            a("s_and_b32 s57, s40, 1"); a("s_lshl_b32 s57, s57, 2")
            a("v_xor_b32 v8, s57, v6")
        a("v_add_u32 v9, 16, v7"); a("v_cmp_gt_i32 vcc, 0, v7"); a("s_nop 1"); a("v_cndmask_b32 v7, v7, v9, vcc")
        a("v_lshlrev_b32 v7, 10, v7"); a(f"v_lshl_add_u32 v{XO+j}, v8, 4, v7")
    a("v_mul_lo_u32 v7, s60, v4")
    a("v_and_b32 v8, 1, v2"); a("v_lshlrev_b32 v8, 1, v8"); a("v_xor_b32 v8, v8, v5"); a("v_lshlrev_b32 v8, 4, v8")
    for j in range(6):
        a("s_mul_i32 s56, s40, 6"); a(f"s_add_u32 s56, s56, {j}")
        a("s_lshr_b32 s57, s56, 3"); a("s_and_b32 s56, s56, 7")
        a("s_mul_i32 s57, s57, s61"); a("s_add_u32 s57, s57, s62")
        a("s_lshl_b32 s58, s56, 3"); a("s_mul_i32 s58, s58, s60"); a("s_add_u32 s57, s57, s58")
        a("s_and_b32 s56, s56, 1"); a("s_lshl_b32 s56, s56, 6")
        a("v_xor_b32 v9, s56, v8"); a("v_add_u32 v9, v9, v7"); a(f"v_add_u32 v{WO+j}, s57, v9")
    a("v_lshrrev_b32 v4, 1, v3")
    a("s_lshl_b32 s56, s44, 13")
    for h in range(2):
        a(f"v_or_b32 v5, {4*h}, v2"); a("v_xor_b32 v5, v5, v4"); a("v_lshlrev_b32 v5, 4, v5")
        a("v_lshl_add_u32 v5, v3, 7, v5"); a(f"v_add_u32 v{XB+h}, s56, v5")
    a("v_bfe_u32 v4, v1, 2, 2")
    a("v_and_b32 v5, 3, v1")
    a("v_lshl_add_u32 v6, v2, 3, v4"); a("v_lshlrev_b32 v6, 7, v6")
    a("v_and_b32 v7, 1, v5"); a("v_lshl_add_u32 v6, v7, 3, v6")
    a("v_lshrrev_b32 v7, 1, v4"); a("v_lshlrev_b32 v7, 1, v7")
    a("v_and_b32 v8, 1, v2"); a("v_lshl_or_b32 v7, v8, 2, v7")
    a("v_lshrrev_b32 v8, 1, v5"); a("v_xor_b32 v7, v7, v8")
    a("s_cmp_eq_u32 s42, 0"); a("s_cbranch_scc0 Lp1_ffnaddr")
    for t in range(2):
        a("s_lshl_b32 s56, s45, 1"); a(f"s_add_u32 s56, s56, {t}"); a("s_lshl_b32 s56, s56, 1")
        a("v_xor_b32 v8, s56, v7"); a("v_lshl_add_u32 v8, v8, 4, v6"); a(f"v_add_u32 v{WB+t}, {WOFF}, v8")
    a("s_branch Lp1_addrdone")
    a.label("Lp1_ffnaddr")
    for t in range(6):
        a("s_mul_i32 s56, s45, 6"); a(f"s_add_u32 s56, s56, {t}")
        a("s_lshr_b32 s57, s56, 2"); a("s_and_b32 s56, s56, 3"); a("s_lshl_b32 s56, s56, 1")
        a("s_lshl_b32 s57, s57, 13"); a(f"s_add_u32 s57, s57, {WOFF}")
        a("v_xor_b32 v8, s56, v7"); a("v_lshl_add_u32 v8, v8, 4, v6"); a(f"v_add_u32 v{WB+t}, s57, v8")
    a.label("Lp1_addrdone")
    a("s_lshl_b32 s56, s42, 3"); a("s_add_u32 s56, s56, s43"); a("s_lshl_b32 s56, s56, 3")
    a("s_lshl_b32 s57, s41, 7"); a("s_add_u32 s56, s56, s57"); a("s_lshl_b32 s57, s40, 1"); a("s_add_u32 s56, s56, s57")
    a("s_lshl_b32 s57, s56, 10"); a("s_lshl_b32 s56, s56, 2")
    a("v_lshlrev_b32 v5, 4, v1"); a("v_add_u32 v4, s57, v5"); a("v_mov_b32 v86, s56")
    a("s_lshl_b32 s56, s55, 6"); a("s_mul_i32 s57, s45, 192"); a("s_add_u32 s56, s56, s57")
    a("v_lshlrev_b32 v6, 3, v2"); a("v_add_u32 v6, s56, v6")
    a("s_waitcnt lgkmcnt(0)")
    srd(a, 16, 4, 2048*1024)
    a("s_cmp_eq_u32 s42, 0")
    a("s_cselect_b32 s20, s6, s8"); a("s_cselect_b32 s21, s7, s9"); a("s_and_b32 s21, s21, 0xffff")
    a("s_cmp_eq_u32 s42, 0")
    a(f"s_mov_b32 s22, {512*2752}"); a(f"s_cselect_b32 s22, {512*3072}, s22"); a("s_mov_b32 s23, 0x00020000")
    srd(a, 24, 10, 2752); srd(a, 28, 12, 1024); srd(a, 32, 14, 59*AWS_U)
    a(f"s_add_u32 s36, s14, {G_OFF}"); a("s_addc_u32 s37, s15, 0"); a("s_and_b32 s37, s37, 0xffff")
    a("s_mov_b32 s38, 8192"); a("s_mov_b32 s39, 0x00020000")
    a("s_cmp_eq_u32 s42, 0"); a("s_cbranch_scc0 Lp1_ffn")
    p1_main(a, "att"); p1_att_epilogue(a); gate_store(a); a("s_endpgm")
    a.label("Lp1_ffn")
    p1_main(a, "ffn"); p1_ffn_epilogue(a); gate_store(a)
    a.label("Lp1_end")
    a("s_endpgm")
    return a.text(), kd(K, 344, 256)

def phase2():
    a = Asm()
    K = "p2_kernel"
    ACC2, AR, BFR = 16, 80, 208
    a(f".globl {K}"); a(".p2align 8"); a(f".type {K},@function"); a.label(K)
    a("s_cmp_ge_u32 s2, 256"); a("s_cbranch_scc1 Lp2_end")
    a("s_load_dwordx2 s[4:5], s[0:1], 16")
    a("s_load_dwordx2 s[6:7], s[0:1], 48")
    a("s_load_dwordx2 s[8:9], s[0:1], 64")
    a("s_load_dwordx2 s[10:11], s[0:1], 80")
    a("v_and_b32 v1, 63, v0"); a("v_lshrrev_b32 v4, 6, v0"); a("v_lshrrev_b32 v2, 4, v1"); a("v_and_b32 v3, 15, v1")
    a("v_readfirstlane_b32 s40, v4")
    a("s_and_b32 s56, s2, 7"); a("s_lshr_b32 s57, s2, 3")
    a("s_lshl_b32 s41, s56, 2"); a("s_lshr_b32 s58, s57, 3"); a("s_add_u32 s41, s41, s58")
    a("s_and_b32 s42, s57, 7")
    a("s_mov_b32 s43, 0"); a("s_mov_b32 s44, 16")
    a("s_cmp_eq_u32 s40, 1"); a("s_cselect_b32 s43, 16, s43"); a("s_cselect_b32 s44, 15, s44")
    a("s_cmp_eq_u32 s40, 2"); a("s_cselect_b32 s43, 31, s43"); a("s_cselect_b32 s44, 14, s44")
    a("s_cmp_eq_u32 s40, 3"); a("s_cselect_b32 s43, 45, s43"); a("s_cselect_b32 s44, 14, s44")
    a("v_lshlrev_b32 v4, 4, v1"); a("s_lshl_b32 s56, s41, 12"); a("v_add_u32 v4, s56, v4")
    a("v_lshrrev_b32 v5, 3, v1"); a("v_and_b32 v6, 7, v1"); a("v_lshlrev_b32 v7, 1, v2"); a("v_xor_b32 v6, v6, v7")
    a("v_lshlrev_b32 v6, 4, v6"); a("v_lshl_add_u32 v5, v5, 10, v6"); a("s_lshl_b32 s56, s42, 7"); a("v_add_u32 v5, s56, v5")
    a("v_bfe_u32 v6, v1, 2, 2"); a("v_and_b32 v7, 3, v1")
    a("v_lshl_add_u32 v12, v2, 2, v6"); a("v_lshrrev_b32 v13, 1, v12"); a("v_and_b32 v13, 3, v13"); a("v_lshlrev_b32 v13, 1, v13")
    a("v_lshlrev_b32 v12, 7, v12"); a("v_and_b32 v14, 1, v7"); a("v_lshl_add_u32 v12, v14, 3, v12")
    a("v_lshrrev_b32 v14, 1, v7"); a("v_xor_b32 v13, v13, v14")
    a("s_lshl_b32 s45, s40, 15")
    for c in range(4):
        a(f"v_xor_b32 v14, {2*c}, v13"); a("v_lshl_add_u32 v14, v14, 4, v12"); a(f"v_add_u32 v{8+c}, s45, v14")
    a("s_lshl_b32 s56, s41, 8"); a("v_lshlrev_b32 v6, 2, v3"); a("v_add_u32 v6, s56, v6")
    a("s_waitcnt lgkmcnt(0)")
    a(f"s_mul_i32 s56, s43, {AWS_U}"); a("s_add_u32 s16, s10, s56"); a("s_addc_u32 s17, s11, 0"); a("s_and_b32 s17, s17, 0xffff")
    a(f"s_mul_i32 s18, s44, {AWS_U}"); a("s_mov_b32 s19, 0x00020000")
    a("s_sub_u32 s56, s43, 16"); a("s_lshl_b32 s56, s56, 15"); a("s_add_u32 s58, s6, s56"); a("s_addc_u32 s59, s7, 0")
    a("s_cmp_eq_u32 s40, 0"); a("s_cselect_b32 s20, s4, s58"); a("s_cselect_b32 s21, s5, s59"); a("s_and_b32 s21, s21, 0xffff")
    a("s_lshl_b32 s22, s44, 15"); a("s_mov_b32 s23, 0x00020000")
    srd(a, 24, 8, 2048*1024)
    a(f"s_add_u32 s28, s10, {G_OFF}"); a("s_addc_u32 s29, s11, 0"); a("s_and_b32 s29, s29, 0xffff")
    a("s_mov_b32 s30, 8192"); a("s_mov_b32 s31, 0x00020000")
    for rt in range(4): a(f"buffer_load_dword v{224+rt}, v6, s[28:31], 0 offen offset:{rt*64}")
    def issue(step):
        slot = step % 8
        for dd in range(4):
            a(f"s_add_u32 m0, s45, {slot*4096 + dd*1024}")
            a(f"s_mov_b32 s46, {step*32768 + dd*8192}")
            a("buffer_load_dwordx4 v5, s[20:23], s46 offen lds")
        a(f"s_mov_b32 s47, {step*AWS_U}")
        for rt in range(4):
            a(f"buffer_load_dwordx4 {vr(AR+16*slot+4*rt,4)}, v4, s[16:19], s47 offen offset:{rt*1024}")
    for st in range(7): issue(st)
    for r in range(64): a(f"v_mov_b32 v{ACC2+r}, 0")
    NS = 16
    for st in range(NS):
        younger = min(6, NS - 1 - st)
        a(f"s_waitcnt vmcnt({8*younger})")
        slot = st % 8
        for c in range(4):
            a(f"ds_read_b64_tr_b16 {vr(BFR+4*c,2)}, v{8+c} offset:{slot*4096}")
            a(f"ds_read_b64_tr_b16 {vr(BFR+4*c+2,2)}, v{8+c} offset:{slot*4096+2048}")
        a("s_waitcnt lgkmcnt(0)")
        if st + 7 < NS: issue(st + 7)
        for c in range(4):
            for rt in range(4):
                d = ACC2 + 4*(4*rt + c)
                a(f"v_mfma_f32_16x16x32_bf16 {vr(d,4)}, {vr(BFR+4*c,4)}, {vr(AR+16*slot+4*rt,4)}, {vr(d,4)}")
    a.nop(10)
    a("s_cmp_eq_u32 s40, 0"); a("s_cbranch_scc1 Lp2_scale")
    for rt in range(4): a(f"v_sub_f32 v{224+rt}, 1.0, v{224+rt}")
    a.label("Lp2_scale")
    for rt in range(4):
        for r in range(16): a(f"v_mul_f32 v{ACC2+16*rt+r}, v{ACC2+16*rt+r}, v{224+rt}")
    a("s_barrier")
    a("s_lshl_b32 s56, s40, 14")
    for par in range(2):
        a("v_lshrrev_b32 v12, 1, v2"); a(f"v_add_u32 v12, {2*par}, v12"); a("v_lshl_add_u32 v12, v12, 2, v3"); a("v_and_b32 v12, 15, v12")
        a("v_lshl_add_u32 v12, v2, 4, v12"); a("v_lshlrev_b32 v12, 4, v12"); a(f"v_add_u32 v{8+par}, s56, v12")
    for rt in range(4):
        for c in range(4):
            a(f"ds_write_b128 v{8+(c&1)}, {vr(ACC2+4*(4*rt+c),4)} offset:{rt*4096+c*1024}")
    a("s_waitcnt lgkmcnt(0)"); a("s_barrier")
    a("v_lshrrev_b32 v4, 3, v1"); a("v_and_b32 v5, 7, v1"); a("v_lshrrev_b32 v6, 1, v5"); a("v_and_b32 v7, 1, v5")
    a("v_and_b32 v12, 1, v6"); a("v_lshl_add_u32 v12, v12, 1, v7")
    a("s_lshl_b32 s56, s40, 12")
    for sp in range(2):
        a(f"v_add_u32 v13, {8*sp}, v4"); a("v_lshl_add_u32 v13, v12, 2, v13"); a("v_and_b32 v13, 15, v13")
        a("v_lshl_add_u32 v13, v7, 5, v13")
        a("v_lshlrev_b32 v13, 4, v13"); a("v_lshl_add_u32 v13, v6, 10, v13"); a(f"v_add_u32 v{8+sp}, s56, v13")
    R = 80
    for sp in range(2):
        for src in range(4):
            for e in range(2):
                a(f"ds_read_b128 {vr(R+32*sp+8*src+4*e,4)}, v{8+sp} offset:{src*16384 + e*256}")
    a("s_lshl_b32 s56, s41, 6"); a("s_lshl_b32 s57, s40, 4"); a("s_add_u32 s56, s56, s57"); a("s_lshl_b32 s56, s56, 10")
    a("s_lshl_b32 s57, s42, 7"); a("s_add_u32 s56, s56, s57")
    a("v_lshlrev_b32 v4, 10, v4"); a("v_lshl_add_u32 v4, v5, 4, v4"); a("v_add_u32 v4, s56, v4")
    a("s_waitcnt lgkmcnt(0)")
    for sp in range(2):
        b = R + 32*sp
        for r in range(8):
            a(f"v_add_f32 v{b+r}, v{b+r}, v{b+8+r}"); a(f"v_add_f32 v{b+16+r}, v{b+16+r}, v{b+24+r}")
        for r in range(8): a(f"v_add_f32 v{b+r}, v{b+r}, v{b+16+r}")
        for q in range(4): a(f"v_cvt_pk_bf16_f32 v{160+4*sp+q}, v{b+2*q}, v{b+2*q+1}")
        a(f"buffer_store_dwordx4 {vr(160+4*sp,4)}, v4, s[24:27], 0 offen offset:0" if sp == 0 else "v_add_u32 v4, 8192, v4")
        if sp == 1: a(f"buffer_store_dwordx4 {vr(164,4)}, v4, s[24:27], 0 offen")
    a.label("Lp2_end")
    a("s_endpgm")
    return a.text(), kd(K, 232, 232)

def main(out):
    t1, k1 = phase1(); t2, k2 = phase2()
    src = HEADER + f"; @launch kernel=p1_kernel grid=(256,1,1) block=(256,1,1) lds={3*STAGE}\n"
    src += f"; @launch kernel=p2_kernel grid=(256,1,1) block=(256,1,1) lds=131072\n"
    src += '.amdgcn_target "amdgcn-amd-amdhsa--gfx950"\n.text\n' + t1 + t2 + k1 + k2
    open(out, "w").write(src)

if __name__ == "__main__":
    main(sys.argv[1] if len(sys.argv) > 1 else "cdna_kernels/" + NAME + ".s")
```

```python
import sys
from asmlib import *

NAME = "gated_mix__sliding_local_dilated__dense_activation_mish__prompt"
KNAME = NAME + "_kernel"
LOG2E = 0x3fb8aa3b
STAGE = 43008
WOFF = 18432
AWS_U = 131072
G_OFF = 8 << 20
LDS_BYTES = 163840
GA, GB, GC, GC2, R2 = 86016, 0, 43008, 86016 + 16*4096, 28672
INSTR = False
OPT = {}
STAMP_OFF = 16 << 20
NST = 12

sW_, sRB, sTYPE, sGRP = 40, 41, 42, 43
sRH, sCH, sBUF, sFREE, sXD, sXE, sWD, sKX, sKW, sKW2, sRS64, sIT, sU0 = range(52, 65)
T0, T1, T2, T3, T4, T5, T6 = range(65, 72)
XO, WO, XB, WB, XA, WA = 16, 21, 27, 29, 35, 37
GX, GW, GR, BIAS = 44, 52, 56, 58
vGST, vBD, vBF, vAO, vGRD, vOUT = 86, 87, 88, 208, 92, 93
ACC = 96
BF32 = 70
SET = [0, 44]

def srd(a, s, ptr, size):
    a(f"s_mov_b32 s{s}, s{ptr}")
    a(f"s_and_b32 s{s+1}, s{ptr+1}, 0xffff")
    a(f"s_mov_b32 s{s+2}, {size}")
    a(f"s_mov_b32 s{s+3}, 0x00020000")

def stamp(a, k):
    if INSTR: a(f"s_memrealtime s[{72+2*k}:{73+2*k}]")
def stamp_flush(a):
    if not INSTR: return
    a("s_waitcnt vmcnt(0) lgkmcnt(0)")
    stamp(a, NST-1)
    a("s_waitcnt lgkmcnt(0)")
    a(f"s_add_u32 s24, s10, {STAMP_OFF}"); a("s_addc_u32 s25, s11, 0"); a("s_and_b32 s25, s25, 0xffff")
    a("s_mov_b32 s26, 65536"); a("s_mov_b32 s27, 0x00020000")
    a(f"s_lshl_b32 s{T0}, s2, 8"); a(f"s_lshl_b32 s{T1}, s{sW_}, 6"); a(f"s_add_u32 s{T0}, s{T0}, s{T1}")
    a(f"v_mov_b32 v0, s{T0}")
    a("v_cmp_eq_u32 vcc, 0, v1"); a("s_and_saveexec_b64 s[28:29], vcc")
    for k in range(NST):
        a(f"v_mov_b32 v2, s{72+2*k}"); a(f"buffer_store_dword v2, v0, s[24:27], 0 offen offset:{4*k}")
    a("s_mov_b64 exec, s[28:29]")

def bias_reg(ct, r):
    k = 4*ct + r
    return (BF32 + k) if k < 16 else (8 + k - 16)

def p1_reads(role, st, h):
    base = SET[st]
    nx = 5 if role == "att" else 4
    w = []
    for tt in range(6):
        off = h * 4096 + ((tt >> 1) * 8192 if role == "att" else 0)
        r = base + 20 + 4 * tt; ad = WA + (tt & 1 if role == "att" else tt)
        w.append(f"ds_read_b64_tr_b16 {ar(r,2)}, v{ad} offset:{off}")
        w.append(f"ds_read_b64_tr_b16 {ar(r+2,2)}, v{ad} offset:{off+512}")
    x = [f"ds_read_b128 {ar(base+4*t,4)}, v{XA+h} offset:{t*2048}" for t in range(nx)]
    if role == "att":
        return [w[4], w[5], x[0], x[1], x[2], w[6], w[7], x[3], x[4], w[0], w[1], w[2], w[3]] + w[8:]
    return [w[0], w[1], x[0], x[1], x[2], x[3]] + w[2:]

def p1_mfmas(role, st, first=False):
    base = SET[st]; X = lambda t: ar(base + 4*t, 4); W = lambda t: ar(base + 20 + 4*t, 4)
    out = []
    def m(c, A, B, cin=None):
        C = vr(c,4) if not first else cin
        out.append(f"v_mfma_f32_16x16x32_bf16 {vr(c,4)}, {A}, {B}, {C}")
    if role == "att":
        for a_ in range(2):
            for t in range(5): m(ACC + 4*(8 + 2*t + a_), W(2+a_), X(t), "0")
        for a_ in range(2):
            for t in range(1, 5): m(ACC + 4*(2*(t-1) + a_), W(a_), X(t), "0")
        for a_ in range(2):
            for t in range(5): m(ACC + 4*(18 + 2*t + a_), X(t), W(4+a_), "0")
    else:
        for ct in range(6):
            for rt in range(4): m(ACC + 4*(6*rt + ct), W(ct), X(rt), vr(bias_reg(ct,0), 4))
    return out

def dma_x(role, bufreg):
    g = []
    if role == "att":
        g.append(([f"s_add_u32 m0, s{bufreg}, s{sXE}"],
                  [f"s_cmp_lt_u32 s{sW_}, 2", "s_cbranch_scc0 1f", f"buffer_load_dwordx4 v{XO+4}, s[16:19], s{sKX} offen lds", "1:"]))
    for j in range(4):
        m = f"s_add_u32 m0, s{bufreg}, s{sXD}" if j == 0 else "s_add_u32 m0, m0, 1024"
        g.append(([m], [f"buffer_load_dwordx4 v{XO+j}, s[16:19], s{sKX} offen lds"]))
    return g
def dma_w(bufreg, js, sw):
    g = []
    for k, j in enumerate(js):
        if k == 0: m = [f"s_add_u32 m0, s{bufreg}, s{sWD}"] + ([f"s_add_u32 m0, m0, {1024*j}"] if j else [])
        else: m = ["s_add_u32 m0, m0, 1024"]
        g.append((m, [f"buffer_load_dwordx4 v{WO+j}, s[20:23], s{sw} offen lds"]))
    return g
def h1(role, buf): return dma_x(role, buf) + dma_w(buf, [0], sKW)
def h2(role, buf, sw=None): return dma_w(buf, [1,2,3,4,5], sKW2 if sw is None else sw)

def emit_pairs(a, pairs):
    for m, l in pairs:
        for x in m: a(x)
        a("s_nop 0")
        for x in l: a(x)

def schedule(mf, reads, dmas, extra=(), dma_first=2, read_span=20):
    n = len(mf); after = [[] for _ in range(n)]
    if dmas:
        step = (n - dma_first) / len(dmas)
        for k, (m, l) in enumerate(dmas):
            p = int(dma_first + k * step)
            after[max(p-1, 0)] += m
            after[p] += l
    for k, r in enumerate(reads):
        after[min(int(k * read_span / len(reads)), n-1)].insert(0, r)
    for k, x in enumerate(extra):
        after[min(int(k * n / len(extra)), n-1)].append(x)
    out = []
    for i in range(n):
        out.append(mf[i]); out += after[i]
    return out

ROT = {0: STAGE, STAGE: 2*STAGE, 2*STAGE: 0}
def addr_update(role):
    n = 2 if role == "att" else 6
    return [f"v_add_u32 v{XA+h}, s{sBUF}, v{XB+h}" for h in range(2)] + [f"v_add_u32 v{WA+t}, s{sBUF}, v{WB+t}" for t in range(n)]
def rot(a):
    a(f"s_mov_b32 s{sFREE}, s{sBUF}")
    a(f"s_add_u32 s{sBUF}, s{sBUF}, {STAGE}")
    a(f"s_cmp_eq_u32 s{sBUF}, {3*STAGE}")
    a(f"s_cselect_b32 s{sBUF}, 0, s{sBUF}")

def gate_instrs():
    g = []
    for q in range(4):
        for row in range(2):
            g.append(f"v_dot2_f32_bf16 v{GR+row}, v{GX+4*row+q}, v{GW+q}, {'0' if q == 0 else 'v%d' % (GR+row)}")
    g += ["s_nop 0", "s_nop 0"]
    for sh in (8, 4, 2, 1):
        for row in range(2):
            g.append(f"v_add_f32_dpp v{GR+row}, v{GR+row}, v{GR+row} row_ror:{sh} row_mask:0xf bank_mask:0xf")
    for op in ("v_permlane16_swap_b32", "v_permlane32_swap_b32"):
        for row in range(2): g.append(f"v_mov_b32 v{4+row}, v{GR+row}")
        for row in range(2): g.append(f"{op} v{GR+row}, v{4+row}")
        for row in range(2): g.append(f"v_add_f32 v{GR+row}, v{GR+row}, v{4+row}")
    for row in range(2): g.append(f"v_mul_f32 v{GR+row}, 0xbfb8aa3b, v{GR+row}")
    for row in range(2): g.append(f"v_exp_f32 v{GR+row}, v{GR+row}")
    for row in range(2): g.append(f"v_add_f32 v{GR+row}, 1.0, v{GR+row}")
    for row in range(2): g.append(f"v_rcp_f32 v{GR+row}, v{GR+row}")
    return g

def body(a, role, d1, d2, wait, first=False, last=False, x1=(), x2=(), dx1=(), dx2=()):
    a("s_waitcnt lgkmcnt(0)")
    for x in schedule(p1_mfmas(role, 0, first), p1_reads(role, 1, 1), list(d1) + list(dx1), x1): a(x)
    if last:
        a("s_waitcnt lgkmcnt(0)")
        a("s_barrier")
        for x in schedule(p1_mfmas(role, 1), [], list(d2) + list(dx2), x2): a(x)
        return
    a(f"s_waitcnt vmcnt({wait}) lgkmcnt(0)")
    a("s_barrier")
    rot(a)
    for x in addr_update(role): a(x)
    for x in schedule(p1_mfmas(role, 1), p1_reads(role, 0, 0), list(d2) + list(dx2), x2): a(x)
    if d2:
        a(f"s_mov_b32 s{sKW2}, s{sKW}")
        a(f"s_add_u32 s{sKX}, s{sKX}, 128")
        a(f"s_add_u32 s{sKW}, s{sKW}, s{sRS64}")

sBA, sBB, sBC, sBR = 96, 97, 98, 101
def b_base(step):
    if step < 4: return sBA, step*4096
    if step < 6: return sBB, (step-4)*4096
    if step < 9: return sBC + step - 6, 0
    return sBR, (step-9)*4096
def b_dma(step):
    g = []; sb, im = b_base(step)
    for dd in range(4):
        g.append(([f"s_add_u32 m0, s{sb}, {im + dd*1024}", f"s_mov_b32 s57, {step*32768 + dd*8192}"],
                  [f"buffer_load_dwordx4 v{vBD}, s[24:27], s57 offen lds"]))
    return g
def b_addr(step, regs):
    sb, im = b_base(step)
    return [f"v_add_u32 v{regs[c]}, s{sb}, v{vBF+c}" for c in range(4)]
def b_reads(step, dst, regs):
    out = []; sb, im = b_base(step)
    for c in range(4):
        out.append(f"ds_read_b64_tr_b16 {ar(dst+4*c,2)}, v{regs[c]} offset:{im}")
        out.append(f"ds_read_b64_tr_b16 {ar(dst+4*c+2,2)}, v{regs[c]} offset:{im+2048}")
    return out

sRB2, sCT2, sU2, sN2 = 12, 13, 14, 15
def p2_scalar_setup(a):
    a(f"s_and_b32 s{T0}, s2, 7"); a(f"s_lshr_b32 s{T1}, s2, 3")
    a(f"s_lshl_b32 s{sRB2}, s{T0}, 2"); a(f"s_lshr_b32 s{T2}, s{T1}, 3"); a(f"s_add_u32 s{sRB2}, s{sRB2}, s{T2}")
    a(f"s_and_b32 s{sCT2}, s{T1}, 7")
    a(f"s_mov_b32 s{sU2}, 0"); a(f"s_mov_b32 s{sN2}, 16")
    for w, u0, n in ((1,16,15), (2,31,14), (3,45,14)):
        a(f"s_cmp_eq_u32 s{sW_}, {w}"); a(f"s_cselect_b32 s{sU2}, {u0}, s{sU2}"); a(f"s_cselect_b32 s{sN2}, {n}, s{sN2}")
    a(f"s_lshl_b32 s{sBA}, s{sW_}, 14"); a(f"s_add_u32 s{sBA}, s{sBA}, {GA}")
    a(f"s_lshl_b32 s{sBB}, s{sW_}, 13")
    a(f"s_mul_i32 s{T0}, s{sW_}, 12288"); a(f"s_add_u32 s{T0}, s{T0}, {GC}")
    for k in range(3):
        a(f"s_add_u32 s{sBC+k}, s{T0}, {4096*k}")
    a(f"s_cmp_eq_u32 s{sW_}, 3")
    a(f"s_cselect_b32 s{sBC+1}, {GC2}, s{sBC+1}"); a(f"s_cselect_b32 s{sBC+2}, {GC2+4096}, s{sBC+2}")
    a(f"s_mul_i32 s{sBR}, s{sW_}, {R2}")
    a(f"s_sub_u32 s{T0}, s{sU2}, 16"); a(f"s_lshl_b32 s{T0}, s{T0}, 15"); a(f"s_add_u32 s{T2}, s44, s{T0}"); a(f"s_addc_u32 s{T3}, s45, 0")
    a(f"s_cmp_eq_u32 s{sW_}, 0"); a(f"s_cselect_b32 s24, s8, s{T2}"); a(f"s_cselect_b32 s25, s9, s{T3}"); a("s_and_b32 s25, s25, 0xffff")
    a(f"s_lshl_b32 s26, s{sN2}, 15"); a("s_mov_b32 s27, 0x00020000")
    a(f"s_mul_i32 s{T0}, s{sU2}, {AWS_U}"); a(f"s_add_u32 s28, s10, s{T0}"); a("s_addc_u32 s29, s11, 0"); a("s_and_b32 s29, s29, 0xffff")
    a(f"s_mul_i32 s30, s{sN2}, {AWS_U}"); a("s_mov_b32 s31, 0x00020000")

def mix(a, valu, dmas, every):
    d = list(dmas); cnt = 0
    for k, x in enumerate(valu):
        a(x)
        if x.endswith(":") or x.startswith("s_cbranch"): continue
        cnt += 1
        if d and cnt % every == every - 2:
            for y in d[0][0]: a(y)
        if d and cnt % every == 0:
            for y in d[0][1]: a(y)
            d.pop(0)
    return d

def att_epilogue():
    e = []
    Q = lambda t, h: ACC + 4*(2*(t-1) + h)
    Kc = lambda t, h: ACC + 4*(8 + 2*t + h)
    V = lambda t, h: ACC + 4*(18 + 2*t + h)
    KF, VF, QF = 208, 228, 16
    kf = lambda t, h: KF + 10*h + 2*t
    vf = lambda t, h: VF + 10*h + 2*t
    qf = lambda t, h: QF + 2*(2*(t-1) + h)
    cv = lambda d, s: [f"v_cvt_pk_bf16_f32 v{d}, v{s}, v{s+1}", f"v_cvt_pk_bf16_f32 v{d+1}, v{s+2}, v{s+3}"]
    combos = [(t,h) for t in range(1,5) for h in range(2)]
    MC, MP, MF, SEL0, SEL1, ONES = 44, 46, 48, 50, 51, 52
    for t in range(5):
        for h in range(2): e += cv(kf(t,h), Kc(t,h))
    for (t,h) in combos: e += cv(qf(t,h), Q(t,h))
    S = lambda ci, blk: ACC + 8*ci + 4*blk
    vcv = []
    for t in range(5):
        for h in range(2): vcv += cv(vf(t,h), V(t,h))
    sm = []
    for ci,(t,h) in enumerate(combos):
        sm.append(f"v_mfma_f32_16x16x16_bf16 {vr(S(ci,0),4)}, {vr(kf(t-1,h),2)}, {vr(qf(t,h),2)}, 0")
        sm.append(f"v_mfma_f32_16x16x16_bf16 {vr(S(ci,1),4)}, {vr(kf(t,h),2)}, {vr(qf(t,h),2)}, 0")
    e.append("s_nop 1")
    for k, m in enumerate(sm):
        e.append(m)
        e += vcv[k*20//16:(k+1)*20//16]
    e += ["s_nop 7"]
    A = lambda ci: 160 + 4*ci
    for ci in range(8):
        for blk in range(2):
            s = S(ci, blk)
            e.append(f"v_cndmask_b32 v{A(ci)+2*blk}, v{s}, v{s+1}, s[46:47]")
            e.append(f"v_cndmask_b32 v{A(ci)+2*blk+1}, v{s+2}, v{s+3}, s[46:47]")
    for ci,(t,h) in enumerate(combos):
        mp = MF if t == 1 else MP
        e.append(f"v_pk_fma_f32 {vr(A(ci),2)}, {vr(A(ci),2)}, s[4:5], {vr(mp,2)} op_sel_hi:[1,0,1]")
        e.append(f"v_pk_fma_f32 {vr(A(ci)+2,2)}, {vr(A(ci)+2,2)}, s[4:5], {vr(MC,2)} op_sel_hi:[1,0,1]")
    MX = 4
    for ci in range(8):
        e.append(f"v_max3_f32 v{MX+ci}, v{A(ci)}, v{A(ci)+1}, v{A(ci)+2}")
    for ci in range(8):
        e.append(f"v_max_f32 v{MX+ci}, v{MX+ci}, v{A(ci)+3}")
    for q in range(2):
        b = MX + 4*q
        e += ["s_nop 0"] if q == 0 else []
        e.append(f"v_permlane32_swap_b32 v{b}, v{b+1}"); e.append(f"v_permlane32_swap_b32 v{b+2}, v{b+3}")
    for q in range(2):
        b = MX + 4*q
        e.append(f"v_max_f32 v{b}, v{b}, v{b+1}"); e.append(f"v_max_f32 v{b+2}, v{b+2}, v{b+3}")
    e.append("s_nop 0")
    for q in range(2):
        b = MX + 4*q
        e.append(f"v_permlane16_swap_b32 v{b}, v{b+2}")
    e.append("s_nop 0")
    for q in range(2):
        b = MX + 4*q
        e.append(f"v_max_f32 v{b}, v{b}, v{b+2}")
    for q in range(2):
        b = MX + 4*q
        e.append(f"v_mov_b32 v{b+1}, v{b}")
    e.append("s_nop 0")
    for q in range(2):
        b = MX + 4*q
        e.append(f"v_permlane32_swap_b32 v{b}, v{b+1}")
    e.append("s_nop 0")
    for q in range(2):
        b = MX + 4*q
        e.append(f"v_mov_b32 v{b+2}, v{b}"); e.append(f"v_mov_b32 v{b+3}, v{b+1}")
    e.append("s_nop 0")
    for q in range(2):
        b = MX + 4*q
        e.append(f"v_permlane16_swap_b32 v{b}, v{b+2}")
        e.append(f"v_permlane16_swap_b32 v{b+1}, v{b+3}")
    e.append("s_nop 0")
    for ci in range(8):
        e.append(f"v_pk_add_f32 {vr(A(ci),2)}, {vr(A(ci),2)}, {vr(MX+ci - (MX+ci)%2,2)} op_sel:[0,{(MX+ci)%2}] op_sel_hi:[1,{(MX+ci)%2}] neg_lo:[0,1] neg_hi:[0,1]")
        e.append(f"v_pk_add_f32 {vr(A(ci)+2,2)}, {vr(A(ci)+2,2)}, {vr(MX+ci - (MX+ci)%2,2)} op_sel:[0,{(MX+ci)%2}] op_sel_hi:[1,{(MX+ci)%2}] neg_lo:[0,1] neg_hi:[0,1]")
    P = lambda ci: ACC + 4*ci
    for ci in range(8):
        for r in range(4): e.append(f"v_exp_f32 v{A(ci)+r}, v{A(ci)+r}")
        if ci > 0:
            c1 = ci - 1
            e += [f"v_cvt_pk_bf16_f32 v12, v{A(c1)}, v{A(c1)+1}", f"v_cvt_pk_bf16_f32 v13, v{A(c1)+2}, v{A(c1)+3}",
                  f"v_perm_b32 v{P(c1)}, v12, v12, v{SEL0}", f"v_perm_b32 v{P(c1)+1}, v12, v12, v{SEL1}",
                  f"v_perm_b32 v{P(c1)+2}, v13, v13, v{SEL0}", f"v_perm_b32 v{P(c1)+3}, v13, v13, v{SEL1}"]
    e.append("s_nop 0")
    e += [f"v_cvt_pk_bf16_f32 v12, v{A(7)}, v{A(7)+1}", f"v_cvt_pk_bf16_f32 v13, v{A(7)+2}, v{A(7)+3}",
          f"v_perm_b32 v{P(7)}, v12, v12, v{SEL0}", f"v_perm_b32 v{P(7)+1}, v12, v12, v{SEL1}",
          f"v_perm_b32 v{P(7)+2}, v13, v13, v{SEL0}", f"v_perm_b32 v{P(7)+3}, v13, v13, v{SEL1}"]
    e.append("s_nop 1")
    O = lambda ci: 128 + 4*ci
    L = lambda ci: 160 + 4*ci
    for ci,(t,h) in enumerate(combos):
        e.append(f"v_mfma_f32_16x16x32_bf16 {vr(O(ci),4)}, {vr(vf(t-1,h),4)}, {vr(P(ci),4)}, 0")
        e.append(f"v_mfma_f32_16x16x32_bf16 {vr(L(ci),4)}, {vr(ONES,4)}, {vr(P(ci),4)}, 0")
    e.append("s_nop 6")
    for ci in range(8): e.append(f"v_rcp_f32 v{MX+ci}, v{L(ci)}")
    e.append("s_nop 0")
    for ci in range(8):
        sel = (MX+ci) % 2; pr = vr(MX+ci - sel, 2)
        e.append(f"v_pk_mul_f32 {vr(O(ci),2)}, {vr(O(ci),2)}, {pr} op_sel:[0,{sel}] op_sel_hi:[1,{sel}]")
        e.append(f"v_pk_mul_f32 {vr(O(ci)+2,2)}, {vr(O(ci)+2,2)}, {pr} op_sel:[0,{sel}] op_sel_hi:[1,{sel}]")
    for t in range(1,5):
        d = 16 + 4*(t-1)
        for h in range(2): e += cv(d + 2*h, O(2*(t-1)+h))
        e.append(f"buffer_store_dwordx4 {vr(d,4)}, v14, s[32:35], s{T6} offen offset:{(t-1)*1024} sc1")
    return e

def att_consts(a):
    a("s_mov_b32 s46, 0xaaaaaaaa"); a("s_mov_b32 s47, 0xaaaaaaaa")
    a("s_mov_b32 s4, 0x3eb8aa3b"); a("s_mov_b32 s5, 0x3eb8aa3b")
    a("v_and_b32 v8, 14, v3"); a("v_lshlrev_b32 v9, 2, v2"); a("v_sub_u32 v8, v8, v9")
    a("v_mov_b32 v9, 0xf149f2ca")
    for dst, blk in ((44, 0), (46, 16)):
        for k in range(2):
            a(f"v_add_u32 v10, {blk - 2*k}, v8")
            a("v_cmp_gt_u32 s[6:7], 15, v10")
            a("s_nop 1")
            a(f"v_cndmask_b32 v{dst+k}, v9, 0, s[6:7]")
    a(f"s_or_b32 s{T0}, s{sRB}, s{sRH}"); a(f"s_cmp_eq_u32 s{T0}, 0"); a("s_cselect_b64 s[6:7], -1, 0")
    for k in range(2): a(f"v_cndmask_b32 v{48+k}, v{46+k}, v9, s[6:7]")
    a("v_mov_b32 v50, 0x0c0c0100"); a("v_mov_b32 v10, 0x01000c0c"); a("v_cndmask_b32 v50, v50, v10, s[46:47]")
    a("v_mov_b32 v51, 0x0c0c0302"); a("v_mov_b32 v10, 0x03020c0c"); a("v_cndmask_b32 v51, v51, v10, s[46:47]")
    for r in range(4): a(f"v_mov_b32 v{52+r}, 0x3f803f80")
    a(f"s_lshl_b32 s{T6}, s{sGRP}, 1"); a(f"s_add_u32 s{T6}, s{T6}, s{sCH}"); a(f"s_mul_i32 s{T6}, s{T6}, {AWS_U}")
    a(f"s_lshl_b32 s{T0}, s{sRB}, 3"); a(f"s_lshl_b32 s{T1}, s{sRH}, 2"); a(f"s_add_u32 s{T0}, s{T0}, s{T1}"); a(f"s_lshl_b32 s{T0}, s{T0}, 10")
    a("v_lshlrev_b32 v14, 4, v1"); a(f"v_add_u32 v14, s{T0}, v14")

def ffn_pairs(m, rr, D):
    e = []
    prs = [ACC + 4*(6*rr + 2*m + hh) + 2*q for hh in range(2) for q in range(2)]
    T = [16 + 2*k for k in range(4)]
    for k in range(4): e.append(f"v_pk_mul_f32 {vr(T[k],2)}, {vr(prs[k],2)}, s[4:5] op_sel_hi:[1,0]")
    for k in range(4):
        e.append(f"v_exp_f32 v{T[k]}, v{T[k]}"); e.append(f"v_exp_f32 v{T[k]+1}, v{T[k]+1}")
    U = [24 + 2*k for k in range(4)]
    for k in range(4): e.append(f"v_pk_fma_f32 {vr(U[k],2)}, {vr(T[k],2)}, 0.5, 1.0 op_sel_hi:[1,0,0]")
    for k in range(4): e.append(f"v_pk_fma_f32 {vr(U[k],2)}, {vr(U[k],2)}, {vr(T[k],2)}, 1.0 op_sel_hi:[1,1,0]")
    for k in range(4):
        e.append(f"v_rcp_f32 v{U[k]}, v{U[k]}"); e.append(f"v_rcp_f32 v{U[k]+1}, v{U[k]+1}")
    for k in range(4): e.append(f"v_pk_fma_f32 {vr(prs[k],2)}, {vr(prs[k],2)}, {vr(U[k],2)}, {vr(prs[k],2)} neg_lo:[1,0,0] neg_hi:[1,0,0]")
    for k in range(4): e.append(f"v_cvt_pk_bf16_f32 v{D+k}, v{prs[k]}, v{prs[k]+1}")
    return e

def ffn_epilogue(nunits):
    e = []
    for m in range(nunits):
        for rr in range(4):
            D = 32 + 4*(rr & 1)
            e += ffn_pairs(m, rr, D)
            e.append(f"buffer_store_dwordx4 {vr(D,4)}, v14, s[32:35], s{T6} offen offset:{rr*1024} sc1")
        e.append(f"s_add_u32 s{T6}, s{T6}, {AWS_U}")
    return e

def ffn_consts(a):
    a(f"s_mov_b32 s4, {LOG2E}"); a(f"s_mov_b32 s5, {LOG2E}")
    a(f"s_mul_i32 s{T6}, s{sCH}, 3"); a(f"s_add_u32 s{T6}, s{T6}, s{sU0}"); a(f"s_add_u32 s{T6}, s{T6}, 16"); a(f"s_mul_i32 s{T6}, s{T6}, {AWS_U}")
    a(f"s_lshl_b32 s{T0}, s{sRB}, 3"); a(f"s_lshl_b32 s{T1}, s{sRH}, 2"); a(f"s_add_u32 s{T0}, s{T0}, s{T1}"); a(f"s_lshl_b32 s{T0}, s{T0}, 10")
    a("v_lshlrev_b32 v14, 4, v1"); a(f"v_add_u32 v14, s{T0}, v14")

def gate_store(a):
    a("v_cmp_eq_u32 s[68:69], 0, v1")
    a("s_nop 1")
    a("s_and_saveexec_b64 s[66:67], s[68:69]")
    a(f"buffer_store_dwordx2 {vr(GR,2)}, v{vGST}, s[36:39], 0 offen sc1")
    a("s_mov_b64 exec, s[66:67]")

NB1 = 9
def phase1_role(a, R):
    a(f"s_mov_b32 s{sKX}, 0"); a(f"s_mov_b32 s{sKW}, 0")
    if R == "ffn":
        for tt in range(6): a(f"buffer_load_dwordx2 {vr(BIAS+2*tt,2)}, v6, s[24:27], 0 offen offset:{tt*32}")
    for st in range(2):
        a(f"s_mov_b32 s{sFREE}, {st*STAGE}")
        emit_pairs(a, h1(R, sFREE)); emit_pairs(a, h2(R, sFREE, sKW))
        a(f"s_add_u32 s{sKX}, s{sKX}, 128"); a(f"s_add_u32 s{sKW}, s{sKW}, s{sRS64}")
    a(f"buffer_load_dwordx4 {vr(GX,4)}, v4, s[16:19], 0 offen")
    a(f"buffer_load_dwordx4 {vr(GX+4,4)}, v4, s[16:19], 0 offen offset:1024")
    a(f"buffer_load_dwordx4 {vr(GW,4)}, v5, s[28:31], 0 offen")
    stamp(a, 2)
    late_setup(a, R)
    a(f"s_mov_b32 s{sBUF}, 0")
    for x in addr_update(R): a(x)
    if R == "ffn":
        a("s_waitcnt vmcnt(23)")
        for tt in range(6):
            for q in range(2):
                a(f"v_lshlrev_b32 v{bias_reg(tt,2*q)}, 16, v{BIAS+2*tt+q}")
                a(f"v_and_b32 v{bias_reg(tt,2*q+1)}, 0xffff0000, v{BIAS+2*tt+q}")
    a("s_waitcnt vmcnt(13)")
    a("s_barrier")
    stamp(a, 3)
    for x in p1_reads(R, 0, 0): a(x)
    a(f"s_mov_b32 s{sFREE}, {2*STAGE}"); a(f"s_mov_b32 s{sKW2}, s{sKW}")
    d1 = h1(R, sFREE) + h2(R, sFREE, sKW)
    a("s_waitcnt lgkmcnt(0)")
    for x in schedule(p1_mfmas(R, 0, True), p1_reads(R, 1, 1), d1, dma_first=1): a(x)
    a(f"s_add_u32 s{sKX}, s{sKX}, 128"); a(f"s_add_u32 s{sKW}, s{sKW}, s{sRS64}")
    a("s_waitcnt vmcnt(10) lgkmcnt(0)"); a("s_barrier"); rot(a)
    for x in addr_update(R): a(x)
    for x in schedule(p1_mfmas(R, 1), p1_reads(R, 0, 0), h1(R, sFREE)): a(x)
    a(f"s_mov_b32 s{sKW2}, s{sKW}"); a(f"s_add_u32 s{sKX}, s{sKX}, 128"); a(f"s_add_u32 s{sKW}, s{sKW}, s{sRS64}")
    a(f"s_mov_b32 s{sIT}, 1")
    a.label(f"L{R}_loop")
    body(a, R, h2(R, sFREE), h1(R, sFREE), 10)
    a(f"s_add_u32 s{sIT}, s{sIT}, 1"); a(f"s_cmp_lt_u32 s{sIT}, 5"); a(f"s_cbranch_scc1 L{R}_loop")
    body(a, R, h2(R, sFREE), [], 10, dx2=b_dma(0) + b_dma(1))
    g = gate_instrs()
    body(a, R, [], [], 16, x1=g[:22], x2=g[22:], dx1=b_dma(2) + b_dma(3), dx2=b_dma(4) + b_dma(5))
    tmp = Asm(); (att_consts if R == "att" else ffn_consts)(tmp)
    fl = [x.strip() for x in tmp.L]
    body(a, R, [], [], 0, last=True, x1=fl, dx2=b_dma(6) + b_dma(7) + b_dma(8))
    stamp(a, 4)
    a.nop(8)
    if R == "att":
        for x in att_epilogue(): a(x)
    else:
        a(f"s_cmp_ge_u32 s{sGRP}, 3"); a(f"s_cselect_b32 s{T0}, s{sCH}, 0"); a(f"s_cmp_eq_u32 s{T0}, 1")
        e = ffn_epilogue(3); k = 2*len(e)//3
        for x in e[:k]: a(x)
        a("s_cbranch_scc1 Lffn_done") if False else None
        a(f"s_cmp_ge_u32 s{sGRP}, 3"); a(f"s_cselect_b32 s{T0}, s{sCH}, 0"); a(f"s_cmp_eq_u32 s{T0}, 1"); a("s_cbranch_scc1 Lffn_done")
        for x in e[k:]: a(x)
        a.label("Lffn_done")
    gate_store(a)
    stamp(a, 5)
    a("s_waitcnt vmcnt(0)")
    a("s_barrier")
    a(f"s_cmp_eq_u32 s{sW_}, 0"); a(f"s_cbranch_scc0 L{R}_nosig")
    a(f"s_lshl_b32 s{T0}, s{sRB}, 4"); a(f"v_mov_b32 v4, s{T0}"); a("v_mov_b32 v5, 1")
    a("v_cmp_eq_u32 s[68:69], 0, v1"); a("s_nop 1"); a("s_and_saveexec_b64 s[66:67], s[68:69]")
    a("global_atomic_add v4, v5, s[50:51] sc1")
    a("s_mov_b64 exec, s[66:67]")
    a.label(f"L{R}_nosig")
    stamp(a, 6)
    a("s_branch Lphase2") if R == "att" else None

def late_setup(a, R):
    a("v_lshrrev_b32 v7, 1, v3")
    a(f"s_lshl_b32 s{T0}, s{sRH}, 13")
    for h in range(2):
        a(f"v_or_b32 v8, {4*h}, v2"); a("v_xor_b32 v8, v8, v7"); a("v_lshlrev_b32 v8, 4, v8")
        a("v_lshl_add_u32 v8, v3, 7, v8"); a(f"v_add_u32 v{XB+h}, s{T0}, v8")
    a("v_bfe_u32 v7, v1, 2, 2"); a("v_and_b32 v8, 3, v1")
    a("v_lshl_add_u32 v9, v2, 3, v7"); a("v_lshlrev_b32 v9, 7, v9")
    a("v_and_b32 v10, 1, v8"); a("v_lshl_add_u32 v9, v10, 3, v9")
    a("v_and_b32 v10, 2, v7"); a("v_and_b32 v11, 1, v2"); a("v_lshl_or_b32 v10, v11, 2, v10")
    a("v_lshrrev_b32 v11, 1, v8"); a("v_xor_b32 v10, v10, v11")
    if R == "att":
        for t in range(2):
            a(f"s_lshl_b32 s{T0}, s{sCH}, 2"); a(f"s_add_u32 s{T0}, s{T0}, {2*t}")
            a(f"v_xor_b32 v11, s{T0}, v10"); a("v_lshl_add_u32 v11, v11, 4, v9"); a(f"v_add_u32 v{WB+t}, {WOFF}, v11")
    else:
        for t in range(6):
            a(f"s_mul_i32 s{T0}, s{sCH}, 6"); a(f"s_add_u32 s{T0}, s{T0}, {t}")
            a(f"s_lshr_b32 s{T1}, s{T0}, 2"); a(f"s_and_b32 s{T0}, s{T0}, 3"); a(f"s_lshl_b32 s{T0}, s{T0}, 1")
            a(f"s_lshl_b32 s{T1}, s{T1}, 13"); a(f"s_add_u32 s{T1}, s{T1}, {WOFF}")
            a(f"v_xor_b32 v11, s{T0}, v10"); a("v_lshl_add_u32 v11, v11, 4, v9"); a(f"v_add_u32 v{WB+t}, s{T1}, v11")
    srd(a, 32, 10, 59*AWS_U)
    a(f"s_add_u32 s36, s10, {G_OFF}"); a("s_addc_u32 s37, s11, 0"); a("s_and_b32 s37, s37, 0xffff")
    a("s_mov_b32 s38, 8192"); a("s_mov_b32 s39, 0x00020000")
    p2_scalar_setup(a)
    a("v_lshrrev_b32 v7, 3, v1"); a("v_and_b32 v8, 7, v1"); a("v_lshlrev_b32 v9, 1, v2"); a("v_xor_b32 v8, v8, v9")
    a("v_lshlrev_b32 v8, 4, v8"); a("v_lshl_add_u32 v7, v7, 10, v8"); a(f"s_lshl_b32 s{T0}, s{sCT2}, 7"); a(f"v_add_u32 v{vBD}, s{T0}, v7")
    a("v_bfe_u32 v7, v1, 2, 2"); a("v_and_b32 v8, 3, v1")
    a("v_lshl_add_u32 v9, v2, 2, v7"); a("v_bfe_u32 v10, v9, 1, 2"); a("v_lshlrev_b32 v10, 1, v10")
    a("v_lshlrev_b32 v9, 7, v9"); a("v_and_b32 v11, 1, v8"); a("v_lshl_add_u32 v9, v11, 3, v9")
    a("v_lshrrev_b32 v11, 1, v8"); a("v_xor_b32 v10, v10, v11")
    for c in range(4):
        a(f"v_xor_b32 v11, {2*c}, v10"); a(f"v_lshl_add_u32 v{vBF+c}, v11, 4, v9")
    a(f"s_lshl_b32 s{T0}, s{sRB2}, 2"); a(f"s_add_u32 s{T0}, s{T0}, s{sW_}"); a(f"s_lshl_b32 s{T0}, s{T0}, 6")
    a("v_lshlrev_b32 v7, 2, v3"); a(f"v_add_u32 v{vGRD}, s{T0}, v7")
    a(f"s_lshl_b32 s{T0}, s{T0}, 8"); a(f"s_lshl_b32 s{T1}, s{sCT2}, 7"); a(f"s_add_u32 s{T0}, s{T0}, s{T1}")
    a("v_and_b32 v7, 1, v2"); a("v_lshlrev_b32 v7, 5, v7"); a("v_lshrrev_b32 v8, 1, v2"); a("v_lshl_add_u32 v7, v8, 4, v7")
    a("v_lshl_add_u32 v7, v3, 10, v7"); a(f"v_add_u32 v{vOUT}, s{T0}, v7")

def phase2(a):
    ACC2, AR, NR, DEP = 16, 80, 6, 4
    JIT = [144, 160]
    JR = [2, 3, 14, 15]
    a.label("Lphase2")
    tr = [4, 5, 6, 7]
    for st in range(NB1):
        if st in (0, 4, 6, 7, 8):
            for x in b_addr(st, tr): a(x)
        for x in b_reads(st, 16*st, tr): a(x)
    for x in b_addr(NB1, JR): a(x)
    a(f"v_mov_b32 v0, v{vOUT}")
    a("v_lshlrev_b32 v4, 4, v1"); a(f"s_lshl_b32 s{T1}, s{sRB2}, 12")
    for tau in range(4):
        a(f"s_add_u32 s{T0}, s{sW_}, {tau}"); a(f"s_and_b32 s{T0}, s{T0}, 3"); a(f"s_lshl_b32 s{T0}, s{T0}, 10"); a(f"s_add_u32 s{T0}, s{T0}, s{T1}")
        a(f"v_add_u32 v{8+tau}, s{T0}, v4")
    srd(a, 16, 48, 2048*1024)
    a("s_waitcnt lgkmcnt(0)")
    a("s_barrier")
    for st in range(NB1, 16): emit_pairs(a, b_dma(st))
    a(f"s_cmp_eq_u32 s{sW_}, 0"); a("s_cbranch_scc0 Lp2_go")
    a(f"s_lshr_b32 s{T0}, s{sRB2}, 1"); a(f"s_lshl_b32 s{T0}, s{T0}, 4"); a(f"v_mov_b32 v5, s{T0}")
    a(f"s_mov_b32 s{T1}, 0")
    a.label("Lp2_poll")
    a("global_load_dword v6, v5, s[50:51] sc1")
    a(f"s_add_u32 s{T1}, s{T1}, 1")
    a("s_waitcnt vmcnt(0)")
    a("v_readfirstlane_b32 s68, v6")
    a(f"s_cmp_gt_u32 s{T1}, 0x200000"); a("s_cbranch_scc1 Lp2_go")
    a("s_cmp_ge_u32 s68, 16"); a("s_cbranch_scc1 Lp2_go")
    a("s_sleep 2"); a("s_branch Lp2_poll")
    a.label("Lp2_go")
    a("s_barrier")
    stamp(a, 7)
    def loadA(step):
        return [f"buffer_load_dwordx4 {vr(AR+16*(step%NR)+4*tau,4)}, v{8+tau}, s[28:31], s{T0 + (step & 1)} offen sc1" for tau in (1, 2, 3, 0)]
    a(f"buffer_load_dword v12, v{vGRD}, s[36:39], 0 offen sc1")
    for st in range(DEP):
        a(f"s_mov_b32 s{T0 + (st & 1)}, {st*AWS_U}")
        for x in loadA(st): a(x)
    NS = 16
    for st in range(NS):
        younger = min(st + DEP - 1, NS - 1) - st
        cnt = 4*younger
        a(f"s_waitcnt vmcnt({cnt})" + (" lgkmcnt(0)" if st >= NB1 else ""))
        if st == 0: stamp(a, 8)
        bsrc = 16*st if st < NB1 else JIT[(st - NB1) & 1]
        mf = []
        for tau in (1, 2, 3, 0):
            for c in range(4):
                d = ACC2 + 4*(4*tau + c)
                C = vr(d,4) if st > 0 else "0"
                mf.append(f"v_mfma_f32_16x16x32_bf16 {vr(d,4)}, {ar(bsrc+4*c,4)}, {vr(AR+16*(st%NR)+4*tau,4)}, {C}")
        nxt = st + 1
        rd = b_reads(nxt, JIT[(nxt - NB1) & 1], JR) if NB1 <= nxt < NS else []
        after = [[] for _ in mf]
        for k, x in enumerate(rd): after[k].append(x)
        if st + DEP < NS:
            after[0].append(f"s_mov_b32 s{T0 + ((st+DEP) & 1)}, {(st+DEP)*AWS_U}")
            for k, x in enumerate(loadA(st + DEP)): after[1 + 4*k].append(x)
        for m, f in zip(mf, after):
            a(m)
            for x in f: a(x)
    stamp(a, 9)
    a("v_lshlrev_b32 v4, 4, v1")
    for tau in range(1, 4):
        a(f"s_add_u32 s{T0}, s{sW_}, {tau}"); a(f"s_and_b32 s{T0}, s{T0}, 3"); a(f"s_mul_i32 s{T0}, s{T0}, 12288"); a(f"v_add_u32 v{4+tau}, s{T0}, v4")
    a(f"s_mul_i32 s{T0}, s{sW_}, 12288"); a(f"v_add_u32 v4, s{T0}, v4")
    a("v_sub_f32 v13, 1.0, v12")
    a("s_barrier")
    for tau in range(1, 4):
        for c in range(4):
            a(f"ds_write_b128 v{4+tau}, {vr(ACC2+4*(4*tau+c),4)} offset:{(tau-1)*4096 + c*1024}")
    for k in range(4):
        a(f"s_sub_u32 s{T0}, s{sW_}, {k}"); a(f"s_and_b32 s{T0}, s{T0}, 3"); a(f"s_cmp_eq_u32 s{T0}, 0"); a("s_cselect_b64 s[68:69], -1, 0")
        a(f"v_cndmask_b32 v{8+k}, v13, v12, s[68:69]")
    a("s_waitcnt lgkmcnt(0)"); a("s_barrier")
    R = 80
    for pos in range(3):
        for c in range(4):
            a(f"ds_read_b128 {vr(R+16*pos+4*c,4)}, v4 offset:{pos*4096 + c*1024}")
    for r in range(16): a(f"v_mul_f32 v{ACC2+r}, v{ACC2+r}, v8")
    for pos in range(3):
        a(f"s_waitcnt lgkmcnt({8 - 4*pos})")
        for r in range(16): a(f"v_fmac_f32 v{ACC2+r}, v{R+16*pos+r}, v{9+pos}")
    for c in range(4):
        a(f"v_cvt_pk_bf16_f32 v{32+2*c}, v{ACC2+4*c}, v{ACC2+4*c+1}"); a(f"v_cvt_pk_bf16_f32 v{33+2*c}, v{ACC2+4*c+2}, v{ACC2+4*c+3}")
    a("s_nop 1")
    for p in range(2):
        b = 32 + 4*p
        a(f"v_permlane16_swap_b32 v{b}, v{b+2}"); a(f"v_permlane16_swap_b32 v{b+1}, v{b+3}")
    for p in range(2):
        a(f"buffer_store_dwordx4 {vr(32+4*p,4)}, v0, s[16:19], 0 offen offset:{64*p}")
    stamp(a, 10)

def kernel():
    a = Asm()
    a(f".globl {KNAME}"); a(".p2align 8"); a(f".type {KNAME},@function"); a.label(KNAME)
    a("s_cmp_ge_u32 s2, 256"); a("s_cbranch_scc1 Lend")
    stamp(a, 0)
    a("s_load_dwordx4 s[4:7], s[0:1], 0")
    a("s_load_dwordx4 s[12:15], s[0:1], 32")
    a("s_load_dwordx4 s[44:47], s[0:1], 48")
    a("s_load_dwordx2 s[8:9], s[0:1], 16")
    a("s_load_dwordx4 s[48:51], s[0:1], 64")
    a("s_load_dwordx2 s[10:11], s[0:1], 80")
    a("v_and_b32 v1, 63, v0"); a("v_lshrrev_b32 v4, 6, v0"); a("v_lshrrev_b32 v2, 4, v1"); a("v_and_b32 v3, 15, v1")
    a(f"v_readfirstlane_b32 s{sW_}, v4")
    a(f"s_and_b32 s{T0}, s2, 7"); a(f"s_lshr_b32 s{T1}, s2, 3")
    a(f"s_lshr_b32 s{T2}, s{T0}, 2"); a(f"s_and_b32 s{T3}, s{T0}, 3")
    a(f"s_lshl_b32 s{sRB}, s{T2}, 3"); a(f"s_lshr_b32 s{T4}, s{T1}, 2"); a(f"s_add_u32 s{sRB}, s{sRB}, s{T4}")
    a(f"s_and_b32 s{T4}, s{T1}, 3"); a(f"s_lshr_b32 s{sTYPE}, s{T4}, 1")
    a(f"s_lshl_b32 s{sGRP}, s{T3}, 1"); a(f"s_and_b32 s{T4}, s{T4}, 1"); a(f"s_add_u32 s{sGRP}, s{sGRP}, s{T4}")
    a(f"s_lshr_b32 s{sRH}, s{sW_}, 1"); a(f"s_and_b32 s{sCH}, s{sW_}, 1")
    a(f"s_mul_i32 s{sU0}, s{sGRP}, 6"); a(f"s_mul_i32 s{T0}, s{sGRP}, 5"); a(f"s_add_u32 s{T0}, s{T0}, 3")
    a(f"s_cmp_le_u32 s{sGRP}, 3"); a(f"s_cselect_b32 s{sU0}, s{sU0}, s{T0}")
    a(f"s_lshl_b32 s{T0}, s{sGRP}, 7"); a(f"s_lshl_b32 s{T1}, s{sU0}, 6"); a(f"s_lshl_b32 s{T5}, s{sRB}, 17")
    a(f"s_cmp_eq_u32 s{sTYPE}, 0")
    a(f"s_cselect_b32 s{T4}, s{T0}, s{T1}")
    a(f"s_movk_i32 s{T0}, 2752"); a(f"s_cselect_b32 s{T2}, 3072, s{T0}"); a(f"s_movk_i32 s{T0}, 128"); a(f"s_cselect_b32 s{T3}, 1024, s{T0}")
    a(f"s_cselect_b32 s{T0}, 16384, 0"); a(f"s_sub_u32 s{T5}, s{T5}, s{T0}")
    a(f"s_lshl_b32 s{sRS64}, s{T2}, 6")
    a(f"s_lshl_b32 s{sXD}, s{sW_}, 12"); a(f"s_add_u32 s{sXE}, s{sW_}, 16"); a(f"s_lshl_b32 s{sXE}, s{sXE}, 10")
    a(f"s_mul_i32 s{sWD}, s{sW_}, 6144"); a(f"s_add_u32 s{sWD}, s{sWD}, {WOFF}")
    a("v_lshrrev_b32 v4, 3, v1"); a("v_and_b32 v5, 7, v1"); a("v_xor_b32 v6, v5, v2")
    a("v_lshlrev_b32 v7, 10, v4"); a("v_lshl_add_u32 v8, v6, 4, v7"); a("v_xor_b32 v9, 64, v8")
    a(f"s_lshl_b32 s{T0}, s{sW_}, 15"); a(f"s_add_u32 s{T0}, s{T0}, s{T5}")
    a(f"s_cmp_lt_i32 s{T0}, 0"); a(f"s_cselect_b32 s{T1}, 16384, 0"); a(f"s_add_u32 s{T1}, s{T1}, s{T0}")
    for j in range(4):
        src = T1 if j < 2 else T0
        a(f"s_add_u32 s{T6}, s{src}, {8192*j}"); a(f"v_add_u32 v{XO+j}, s{T6}, v{8 + (j&1)}")
    a(f"s_lshl_b32 s{T0}, s{sW_}, 13"); a(f"s_add_u32 s{T0}, s{T0}, s{T5}"); a(f"s_add_u32 s{T0}, s{T0}, {128*1024}")
    a(f"s_and_b32 s{T1}, s{sW_}, 1"); a(f"s_lshl_b32 s{T1}, s{T1}, 6"); a(f"v_xor_b32 v10, s{T1}, v8"); a(f"v_add_u32 v{XO+4}, s{T0}, v10")
    a(f"v_mul_lo_u32 v7, s{T2}, v4")
    a("v_and_b32 v8, 1, v2"); a("v_lshlrev_b32 v8, 1, v8"); a("v_xor_b32 v8, v8, v5")
    a("v_xor_b32 v9, 4, v8")
    a("v_cmp_le_u32 s[44:45], 4, v8") if False else None
    a("v_lshl_add_u32 v10, v8, 4, v7"); a("v_lshl_add_u32 v11, v9, 4, v7")
    a(f"s_cmp_ge_u32 s{sGRP}, 3"); a(f"s_cselect_b32 s{T0}, s{sTYPE}, 0")
    a(f"s_lshl_b32 s{T0}, s{T0}, 30")
    a("v_lshrrev_b32 v12, 2, v8"); a(f"v_mul_lo_u32 v12, s{T0}, v12"); a(f"v_xor_b32 v13, s{T0}, v12")
    for j in range(6):
        a(f"s_mul_i32 s{T0}, s{sW_}, 6"); a(f"s_add_u32 s{T0}, s{T0}, {j}")
        a(f"s_lshr_b32 s{T1}, s{T0}, 3"); a(f"s_and_b32 s{T0}, s{T0}, 7")
        a(f"s_mul_i32 s{T5}, s{T1}, s{T3}"); a(f"s_add_u32 s{T5}, s{T5}, s{T4}")
        a(f"s_mul_i32 s{T6}, s{T0}, s{T2}"); a(f"s_lshl_b32 s{T6}, s{T6}, 3"); a(f"s_add_u32 s{T5}, s{T5}, s{T6}")
        a(f"v_add_u32 v{WO+j}, s{T5}, v{10 + (j&1)}")
        if j >= 4 or True:
            a(f"s_cmp_eq_u32 s{T1}, 2"); a(f"s_cselect_b64 s[16:17], -1, 0")
            a(f"v_cndmask_b32 v14, 0, v{12 + (j&1)}, s[16:17]"); a(f"v_add_u32 v{WO+j}, v{WO+j}, v14")
    a(f"s_lshl_b32 s{T0}, s{sTYPE}, 3"); a(f"s_add_u32 s{T0}, s{T0}, s{sGRP}"); a(f"s_lshl_b32 s{T0}, s{T0}, 3")
    a(f"s_lshl_b32 s{T1}, s{sRB}, 7"); a(f"s_add_u32 s{T0}, s{T0}, s{T1}"); a(f"s_lshl_b32 s{T1}, s{sW_}, 1"); a(f"s_add_u32 s{T0}, s{T0}, s{T1}")
    a(f"s_lshl_b32 s{T1}, s{T0}, 10"); a(f"s_lshl_b32 s{T0}, s{T0}, 2")
    a("v_lshlrev_b32 v5, 4, v1"); a(f"v_add_u32 v4, s{T1}, v5"); a(f"v_mov_b32 v{vGST}, s{T0}")
    a(f"s_lshl_b32 s{T0}, s{sU0}, 6"); a(f"s_mul_i32 s{T1}, s{sCH}, 192"); a(f"s_add_u32 s{T0}, s{T0}, s{T1}")
    a("v_lshlrev_b32 v6, 3, v2"); a(f"v_add_u32 v6, s{T0}, v6")
    a("s_waitcnt lgkmcnt(0)")
    stamp(a, 1)
    srd(a, 16, 4, 2048*1024)
    a(f"s_cmp_eq_u32 s{sTYPE}, 0")
    a("s_cselect_b32 s20, s6, s12"); a("s_cselect_b32 s21, s7, s13"); a(f"s_mov_b32 s22, {512*2752}"); a(f"s_cselect_b32 s22, {512*3072}, s22")
    a("s_and_b32 s21, s21, 0xffff"); a("s_mov_b32 s23, 0x00020000")
    srd(a, 24, 14, 2752); srd(a, 28, 46, 1024)
    a(f"s_cmp_eq_u32 s{sTYPE}, 0"); a("s_cbranch_scc0 Lffn")
    phase1_role(a, "att")
    a.label("Lffn")
    phase1_role(a, "ffn")
    phase2(a)
    stamp_flush(a)
    a.label("Lend")
    a("s_endpgm")
    return a.text()

def main(out):
    t = kernel()
    src = "; Single launch: phase 1 (QKV projection + windowed attention | FFN1 + mish, gate), per-row-block counters in d_debug,\n"
    src += "; phase 2 (output projection of both branches, blended by the gate).\n"
    src += f"; @launch grid=(256,1,1) block=(256,1,1) lds={LDS_BYTES}\n"
    src += '.amdgcn_target "amdgcn-amd-amdhsa--gfx950"\n.text\n' + t + kd(KNAME, 512, 256)
    open(out, "w").write(src)

if __name__ == "__main__":
    if "--instr" in sys.argv: INSTR = True; sys.argv.remove("--instr")
    for x in list(sys.argv):
        if x.startswith("--"):
            sys.argv.remove(x); k, _, v = x[2:].partition("="); OPT[k] = int(v) if v else 1
    main(sys.argv[1] if len(sys.argv) > 1 else "cdna_kernels/" + NAME + ".s")
```

```python
import sys
from asmlib import *

NAME = "gated_mix__sliding_local_dilated__dense_activation_mish__prompt"
KNAME = NAME + "_kernel"
LOG2E = 0x3fb8aa3b
STAGE = 43008
WOFF = 18432
AWS_U = 131072
G_OFF = 8 << 20
LDS_BYTES = 163840
GA, GB, GC, GC2, R2 = 86016, 0, 43008, 86016 + 16*4096, 28672
INSTR = False
OPT = {}
STAMP_OFF = 16 << 20
NST = 12

sW_, sRB, sTYPE, sGRP = 40, 41, 42, 43
sRH, sCH, sBUF, sFREE, sXD, sXE, sWD, sKX, sKW, sKW2, sRS64, sIT, sU0 = range(52, 65)
T0, T1, T2, T3, T4, T5, T6 = range(65, 72)
XO, WO, XB, WB, XA, WA = 16, 21, 27, 29, 35, 37
WA1 = 208
GX, GW, GR, BIAS = 44, 52, 56, 58
vGST, vBD, vBF, vAO, vGRD, vOUT = 86, 87, 88, 208, 92, 93
ACC = 96
BF32 = 70
SET = [0, 44]

def srd(a, s, ptr, size):
    a(f"s_mov_b32 s{s}, s{ptr}")
    a(f"s_and_b32 s{s+1}, s{ptr+1}, 0xffff")
    a(f"s_mov_b32 s{s+2}, {size}")
    a(f"s_mov_b32 s{s+3}, 0x00020000")

def istamp(a, k):
    if INSTR and OPT.get("iter"): a(f"{'s_memtime' if OPT.get('cyc') else 's_memrealtime'} s[{72+2*k}:{73+2*k}]")
def stamp(a, k):
    if OPT.get("iter") and k not in (0, NST-1): return
    if INSTR: a(f"{'s_memtime' if OPT.get('cyc') else 's_memrealtime'} s[{72+2*k}:{73+2*k}]")
def stamp_flush(a):
    if not INSTR: return
    a("s_waitcnt vmcnt(0) lgkmcnt(0)")
    stamp(a, NST-1)
    a("s_waitcnt lgkmcnt(0)")
    a(f"s_add_u32 s24, s10, {STAMP_OFF}"); a("s_addc_u32 s25, s11, 0"); a("s_and_b32 s25, s25, 0xffff")
    a("s_mov_b32 s26, 65536"); a("s_mov_b32 s27, 0x00020000")
    a(f"s_lshl_b32 s{T0}, s2, 8"); a(f"s_lshl_b32 s{T1}, s{sW_}, 6"); a(f"s_add_u32 s{T0}, s{T0}, s{T1}")
    a(f"v_mov_b32 v0, s{T0}")
    a("v_cmp_eq_u32 vcc, 0, v1"); a("s_and_saveexec_b64 s[28:29], vcc")
    for k in range(NST):
        a(f"v_mov_b32 v2, s{72+2*k}"); a(f"buffer_store_dword v2, v0, s[24:27], 0 offen offset:{4*k}")
    a("s_mov_b64 exec, s[28:29]")

def bias_reg(ct, r):
    k = 4*ct + r
    return (BF32 + k) if k < 16 else (8 + k - 16)

def p1_reads(role, st, h):
    base = SET[st]
    nx = 5 if role == "att" else 4
    w = []
    for tt in range(6):
        off = h * 4096 + ((tt >> 1) * 8192 if role == "att" else 0)
        r = base + 20 + 4 * tt; ad = (WA if h == 0 else WA1) + (tt & 1 if role == "att" else tt)
        w.append(f"ds_read_b64_tr_b16 {ar(r,2)}, v{ad} offset:{off}")
        w.append(f"ds_read_b64_tr_b16 {ar(r+2,2)}, v{ad} offset:{off+512}")
    x = [f"ds_read_b128 {ar(base+4*t,4)}, v{XA+h} offset:{t*2048}" for t in range(nx)]
    if role == "att":
        return [w[4], w[5], x[0], x[1], x[2], w[6], w[7], x[3], x[4], w[0], w[1], w[2], w[3]] + w[8:]
    return [w[0], w[1], x[0], x[1], x[2], x[3]] + w[2:]

def p1_mfmas(role, st, first=False):
    base = SET[st]; X = lambda t: ar(base + 4*t, 4); W = lambda t: ar(base + 20 + 4*t, 4)
    out = []
    def m(c, A, B, cin=None):
        C = vr(c,4) if not first else cin
        out.append(f"v_mfma_f32_16x16x32_bf16 {vr(c,4)}, {A}, {B}, {C}")
    if role == "att":
        for a_ in range(2):
            for t in range(5): m(ACC + 4*(8 + 2*t + a_), W(2+a_), X(t), "0")
        for a_ in range(2):
            for t in range(1, 5): m(ACC + 4*(2*(t-1) + a_), W(a_), X(t), "0")
        for a_ in range(2):
            for t in range(5): m(ACC + 4*(18 + 2*t + a_), X(t), W(4+a_), "0")
    else:
        for ct in range(6):
            for rt in range(4): m(ACC + 4*(6*rt + ct), W(ct), X(rt), vr(bias_reg(ct,0), 4))
    return out

def dma_x(role, bufreg):
    g = []
    if role == "att":
        g.append(([f"s_add_u32 m0, s{bufreg}, s{sXE}"],
                  [f"s_cmp_lt_u32 s{sW_}, 2", "s_cbranch_scc0 1f", f"buffer_load_dwordx4 v{XO+4}, s[16:19], s{sKX} offen lds", "1:"]))
    for j in range(4):
        m = f"s_add_u32 m0, s{bufreg}, s{sXD}" if j == 0 else "s_add_u32 m0, m0, 1024"
        g.append(([m], [f"buffer_load_dwordx4 v{XO+j}, s[16:19], s{sKX} offen lds"]))
    return g
def dma_w(bufreg, js, sw):
    g = []
    for k, j in enumerate(js):
        if k == 0: m = [f"s_add_u32 m0, s{bufreg}, s{sWD}"] + ([f"s_add_u32 m0, m0, {1024*j}"] if j else [])
        else: m = ["s_add_u32 m0, m0, 1024"]
        g.append((m, [f"buffer_load_dwordx4 v{WO+j}, s[20:23], s{sw} offen lds"]))
    return g
def h1(role, buf): return dma_x(role, buf) + dma_w(buf, [0], sKW)
def h2(role, buf, sw=None): return dma_w(buf, [1,2,3,4,5], sKW2 if sw is None else sw)

SCC_READ = ("s_cselect", "s_cbranch_scc", "s_addc", "s_subb")
SCC_WRITE = ("s_cmp", "s_add_u32", "s_sub_u32", "s_addc", "s_subb", "s_and_b", "s_or_b", "s_xor_b", "s_lshl_b", "s_lshr_b", "s_bitcmp", "s_add_i32")
def chunks(lines):
    n = len(lines); live = [False]*(n+1)
    for i in range(n-1, -1, -1):
        x = lines[i]
        if x.startswith(SCC_READ): live[i] = True
        elif x.startswith(SCC_WRITE): live[i] = False
        else: live[i] = live[i+1]
    out = []
    for i, x in enumerate(lines):
        if out and live[i]: out[-1].append(x)
        else: out.append([x])
    return out
def capture(fn, *args):
    t = Asm(); fn(t, *args); return [x.strip() for x in t.L]

def emit_pairs(a, pairs):
    for m, l in pairs:
        for x in m: a(x)
        a("s_nop 0")
        for x in l: a(x)

def schedule(mf, reads, dmas, extra=(), dma_first=2, read_span=20, xspan=None, tail=()):
    n = len(mf); after = [[] for _ in range(n)]
    if dmas:
        step = (n - dma_first) / len(dmas)
        for k, (m, l) in enumerate(dmas):
            p = int(dma_first + k * step)
            after[max(p-1, 0)] += m
            after[p] += l
    for k, r in enumerate(reads):
        after[min(int(k * read_span / len(reads)), n-1)].insert(0, r)
    for k, x in enumerate(extra):
        lo, hi = xspan or (0, n)
        after[min(int(lo + k * (hi - lo) / len(extra)), n-1)] += (x if isinstance(x, list) else [x])
    for k, x in enumerate(tail):
        after[n - len(tail) - 1 + k] += (x if isinstance(x, list) else [x])
    out = []
    for i in range(n):
        out.append(mf[i]); out += after[i]
    return out

sPRV, sCUR, sNXT = sFREE, sBUF, sIT + 0
sNXT = 63
def addr_set(role, h, sreg):
    n = 2 if role == "att" else 6
    w = WA if h == 0 else WA1
    return [f"v_add_u32 v{XA+h}, s{sreg}, v{XB+h}"] + [f"v_add_u32 v{w+t}, s{sreg}, v{WB+t}" for t in range(n)]
def rot_instrs():
    return [[f"s_mov_b32 s{T0}, s{sPRV}", f"s_mov_b32 s{sPRV}, s{sCUR}"], [f"s_mov_b32 s{sCUR}, s{sNXT}", f"s_mov_b32 s{sNXT}, s{T0}"]]
def adv_k():
    return [f"s_add_u32 s{sKX}, s{sKX}, 128", f"s_and_b32 s{sKX}, s{sKX}, 1023",
            f"s_add_u32 s{sKW}, s{sKW}, s{sRS64}", f"s_cmp_eq_u32 s{sKW}, s22", f"s_cselect_b32 s{sKW}, 0, s{sKW}"]
def adv_instrs():
    return [[f"s_mov_b32 s{sKW2}, s{sKW}"] + adv_k()]

def gate_instrs():
    g = []
    for q in range(4):
        for row in range(2):
            g.append(f"v_dot2_f32_bf16 v{GR+row}, v{GX+4*row+q}, v{GW+q}, {'0' if q == 0 else 'v%d' % (GR+row)}")
    g += ["s_nop 0", "s_nop 0"]
    for sh in (8, 4, 2, 1):
        for row in range(2):
            g.append(f"v_add_f32_dpp v{GR+row}, v{GR+row}, v{GR+row} row_ror:{sh} row_mask:0xf bank_mask:0xf")
    for op in ("v_permlane16_swap_b32", "v_permlane32_swap_b32"):
        for row in range(2): g.append(f"v_mov_b32 v{4+row}, v{GR+row}")
        for row in range(2): g.append(f"{op} v{GR+row}, v{4+row}")
        for row in range(2): g.append(f"v_add_f32 v{GR+row}, v{GR+row}, v{4+row}")
    for row in range(2): g.append(f"v_mul_f32 v{GR+row}, 0xbfb8aa3b, v{GR+row}")
    for row in range(2): g.append(f"v_exp_f32 v{GR+row}, v{GR+row}")
    for row in range(2): g.append(f"v_add_f32 v{GR+row}, 1.0, v{GR+row}")
    for row in range(2): g.append(f"v_rcp_f32 v{GR+row}, v{GR+row}")
    return g

def body(a, role, d1, d2, wait, first=False, last=False, x1=(), x2=(), dx1=(), dx2=(), loop=None, tail1=()):
    up0 = addr_set(role, 0, sNXT) if not last else []
    for x in schedule(p1_mfmas(role, 0, first), p1_reads(role, 1, 1), list(d1) + list(dx1), list(x1) + up0,
                      dma_first=1 if first else 2, tail=tail1, xspan=(0, 18)): a(x)
    if last:
        a("s_waitcnt lgkmcnt(0)")
        a("s_barrier")
        for x in schedule(p1_mfmas(role, 1), [], list(d2) + list(dx2), x2): a(x)
        return
    a(f"s_waitcnt vmcnt({wait}) lgkmcnt(0)")
    a("s_barrier")
    tail = (adv_instrs() if d2 else []) + rot_instrs()
    if loop: tail.append([f"s_add_u32 s{sLOOP}, s{sLOOP}, 1", f"s_cmp_lt_u32 s{sLOOP}, {loop[1]}"])
    for x in schedule(p1_mfmas(role, 1), p1_reads(role, 0, 0), list(d2) + list(dx2), list(x2) + addr_set(role, 1, sNXT),
                      tail=tail, xspan=(0, 20)): a(x)
    a("s_waitcnt lgkmcnt(0)")
    if loop: a(f"s_cbranch_scc1 {loop[0]}")

sLOOP = 66
sBA, sBB, sBC, sBR = 96, 97, 98, 101
def b_base(step):
    if step < 4: return sBA, step*4096
    if step < 6: return sBB, (step-4)*4096
    if step < 9: return sBC + step - 6, 0
    return sBR, (step-9)*4096
sUB, sBO, sUA = 44, 45, 8
def next_step(u, dst, shift, pos):
    if pos >= 14:
        l = [f"s_cmp_gt_u32 s{sN2}, {pos}", f"s_cselect_b32 s{dst}, s{u}, 31", f"s_lshl_b32 s{dst}, s{dst}, {shift}"]
    else:
        l = [f"s_lshl_b32 s{dst}, s{u}, {shift}"]
    return l + [f"s_add_u32 s{u}, s{u}, 1", f"s_cmp_eq_u32 s{u}, s{sN2}", f"s_cselect_b32 s{u}, 0, s{u}"]
def b_dma(step):
    g = []; sb, im = b_base(step)
    for dd in range(4):
        m = next_step(sUB, sBO, 15, step) if dd == 0 else []
        g.append((m + [f"s_add_u32 m0, s{sb}, {im + dd*1024}", f"s_add_u32 s57, s{sBO}, {dd*8192}"],
                  [f"buffer_load_dwordx4 v{vBD}, s[24:27], s57 offen lds"]))
    return g
def b_addr(step, regs):
    sb, im = b_base(step)
    return [f"v_add_u32 v{regs[c]}, s{sb}, v{vBF+c}" for c in range(4)]
def b_reads(step, dst, regs):
    out = []; sb, im = b_base(step)
    for c in range(4):
        out.append(f"ds_read_b64_tr_b16 {ar(dst+4*c,2)}, v{regs[c]} offset:{im}")
        out.append(f"ds_read_b64_tr_b16 {ar(dst+4*c+2,2)}, v{regs[c]} offset:{im+2048}")
    return out

sRB2, sCT2, sU2, sN2 = 12, 13, 14, 15
def p2_scalar_setup(a):
    a(f"s_and_b32 s{T0}, s2, 7"); a(f"s_lshr_b32 s{T1}, s2, 3")
    if OPT.get("p2b", 1) == 1:
        a(f"s_lshl_b32 s{sRB2}, s{T0}, 2"); a(f"s_lshr_b32 s{T2}, s{T1}, 3"); a(f"s_add_u32 s{sRB2}, s{sRB2}, s{T2}")
        a(f"s_and_b32 s{sCT2}, s{T1}, 7")
    else:
        a(f"s_lshr_b32 s{sRB2}, s{T0}, 1"); a(f"s_lshl_b32 s{sRB2}, s{sRB2}, 3"); a(f"s_lshr_b32 s{T2}, s{T1}, 2"); a(f"s_add_u32 s{sRB2}, s{sRB2}, s{T2}")
        a(f"s_and_b32 s{sCT2}, s{T0}, 1"); a(f"s_lshl_b32 s{sCT2}, s{sCT2}, 2"); a(f"s_and_b32 s{T2}, s{T1}, 3"); a(f"s_add_u32 s{sCT2}, s{sCT2}, s{T2}")
    a(f"s_mov_b32 s{sU2}, 0"); a(f"s_mov_b32 s{sN2}, 16")
    for w, u0, n in ((1,16,15), (2,31,14), (3,45,14)):
        a(f"s_cmp_eq_u32 s{sW_}, {w}"); a(f"s_cselect_b32 s{sU2}, {u0}, s{sU2}"); a(f"s_cselect_b32 s{sN2}, {n}, s{sN2}")
    a(f"s_lshl_b32 s{sBA}, s{sW_}, 14"); a(f"s_add_u32 s{sBA}, s{sBA}, {GA}")
    a(f"s_lshl_b32 s{sBB}, s{sW_}, 13")
    a(f"s_mul_i32 s{T0}, s{sW_}, 12288"); a(f"s_add_u32 s{T0}, s{T0}, {GC}")
    for k in range(3):
        a(f"s_add_u32 s{sBC+k}, s{T0}, {4096*k}")
    a(f"s_cmp_eq_u32 s{sW_}, 3")
    a(f"s_cselect_b32 s{sBC+1}, {GC2}, s{sBC+1}"); a(f"s_cselect_b32 s{sBC+2}, {GC2+4096}, s{sBC+2}")
    a(f"s_mul_i32 s{sBR}, s{sW_}, {R2}")
    a(f"s_sub_u32 s{T0}, s{sU2}, 16"); a(f"s_lshl_b32 s{T0}, s{T0}, 15"); a(f"s_add_u32 s{T2}, s44, s{T0}"); a(f"s_addc_u32 s{T3}, s45, 0")
    a(f"s_cmp_eq_u32 s{sW_}, 0"); a(f"s_cselect_b32 s24, s8, s{T2}"); a(f"s_cselect_b32 s25, s9, s{T3}"); a("s_and_b32 s25, s25, 0xffff")
    a(f"s_lshl_b32 s26, s{sN2}, 15"); a("s_mov_b32 s27, 0x00020000")
    a(f"s_mul_i32 s{T0}, s{sU2}, {AWS_U}"); a(f"s_add_u32 s28, s10, s{T0}"); a("s_addc_u32 s29, s11, 0"); a("s_and_b32 s29, s29, 0xffff")
    a(f"s_mul_i32 s30, s{sN2}, {AWS_U}"); a("s_mov_b32 s31, 0x00020000")
    a(f"s_and_b32 s{T0}, s{sRB2}, 3"); a(f"s_lshl_b32 s{T0}, s{T0}, 2"); a(f"s_lshl_b32 s{T1}, s{sCT2}, 1"); a(f"s_add_u32 s{T0}, s{T0}, s{T1}")
    if not OPT.get("rot2", 1): a(f"s_mov_b32 s{T0}, 0")
    a(f"s_sub_u32 s{T1}, s{T0}, s{sN2}"); a(f"s_cmp_ge_u32 s{T0}, s{sN2}"); a(f"s_cselect_b32 s{sUB}, s{T1}, s{T0}")
    a(f"s_mov_b32 s{sUA}, s{sUB}")

def mix(a, valu, dmas, every):
    d = list(dmas); cnt = 0
    for k, x in enumerate(valu):
        a(x)
        if x.endswith(":") or x.startswith("s_cbranch"): continue
        cnt += 1
        if d and cnt % every == every - 2:
            for y in d[0][0]: a(y)
        if d and cnt % every == 0:
            for y in d[0][1]: a(y)
            d.pop(0)
    return d

def att_epilogue():
    e = []
    Q = lambda t, h: ACC + 4*(2*(t-1) + h)
    Kc = lambda t, h: ACC + 4*(8 + 2*t + h)
    V = lambda t, h: ACC + 4*(18 + 2*t + h)
    KF, VF, QF = 208, 228, 16
    kf = lambda t, h: KF + 10*h + 2*t
    vf = lambda t, h: VF + 10*h + 2*t
    qf = lambda t, h: QF + 2*(2*(t-1) + h)
    cv = lambda d, s: [f"v_cvt_pk_bf16_f32 v{d}, v{s}, v{s+1}", f"v_cvt_pk_bf16_f32 v{d+1}, v{s+2}, v{s+3}"]
    combos = [(t,h) for t in range(1,5) for h in range(2)]
    MC, MP, MF, SEL0, SEL1, ONES = 44, 46, 48, 50, 51, 52
    for t in range(5):
        for h in range(2): e += cv(kf(t,h), Kc(t,h))
    for (t,h) in combos: e += cv(qf(t,h), Q(t,h))
    S = lambda ci, blk: ACC + 8*ci + 4*blk
    vcv = []
    for t in range(5):
        for h in range(2): vcv += cv(vf(t,h), V(t,h))
    sm = []
    for ci,(t,h) in enumerate(combos):
        sm.append(f"v_mfma_f32_16x16x16_bf16 {vr(S(ci,0),4)}, {vr(kf(t-1,h),2)}, {vr(qf(t,h),2)}, 0")
        sm.append(f"v_mfma_f32_16x16x16_bf16 {vr(S(ci,1),4)}, {vr(kf(t,h),2)}, {vr(qf(t,h),2)}, 0")
    e.append("s_nop 1")
    for k, m in enumerate(sm):
        e.append(m)
        e += vcv[k*20//16:(k+1)*20//16]
    e += ["s_nop 7"]
    A = lambda ci: 160 + 4*ci
    for ci in range(8):
        for blk in range(2):
            s = S(ci, blk)
            e.append(f"v_cndmask_b32 v{A(ci)+2*blk}, v{s}, v{s+1}, s[46:47]")
            e.append(f"v_cndmask_b32 v{A(ci)+2*blk+1}, v{s+2}, v{s+3}, s[46:47]")
    for ci,(t,h) in enumerate(combos):
        mp = MF if t == 1 else MP
        e.append(f"v_pk_fma_f32 {vr(A(ci),2)}, {vr(A(ci),2)}, s[4:5], {vr(mp,2)} op_sel_hi:[1,0,1]")
        e.append(f"v_pk_fma_f32 {vr(A(ci)+2,2)}, {vr(A(ci)+2,2)}, s[4:5], {vr(MC,2)} op_sel_hi:[1,0,1]")
    MX = 4
    for ci in range(8):
        e.append(f"v_max3_f32 v{MX+ci}, v{A(ci)}, v{A(ci)+1}, v{A(ci)+2}")
    for ci in range(8):
        e.append(f"v_max_f32 v{MX+ci}, v{MX+ci}, v{A(ci)+3}")
    for q in range(2):
        b = MX + 4*q
        e += ["s_nop 0"] if q == 0 else []
        e.append(f"v_permlane32_swap_b32 v{b}, v{b+1}"); e.append(f"v_permlane32_swap_b32 v{b+2}, v{b+3}")
    for q in range(2):
        b = MX + 4*q
        e.append(f"v_max_f32 v{b}, v{b}, v{b+1}"); e.append(f"v_max_f32 v{b+2}, v{b+2}, v{b+3}")
    e.append("s_nop 0")
    for q in range(2):
        b = MX + 4*q
        e.append(f"v_permlane16_swap_b32 v{b}, v{b+2}")
    e.append("s_nop 0")
    for q in range(2):
        b = MX + 4*q
        e.append(f"v_max_f32 v{b}, v{b}, v{b+2}")
    for q in range(2):
        b = MX + 4*q
        e.append(f"v_mov_b32 v{b+1}, v{b}")
    e.append("s_nop 0")
    for q in range(2):
        b = MX + 4*q
        e.append(f"v_permlane32_swap_b32 v{b}, v{b+1}")
    e.append("s_nop 0")
    for q in range(2):
        b = MX + 4*q
        e.append(f"v_mov_b32 v{b+2}, v{b}"); e.append(f"v_mov_b32 v{b+3}, v{b+1}")
    e.append("s_nop 0")
    for q in range(2):
        b = MX + 4*q
        e.append(f"v_permlane16_swap_b32 v{b}, v{b+2}")
        e.append(f"v_permlane16_swap_b32 v{b+1}, v{b+3}")
    e.append("s_nop 0")
    for ci in range(8):
        e.append(f"v_pk_add_f32 {vr(A(ci),2)}, {vr(A(ci),2)}, {vr(MX+ci - (MX+ci)%2,2)} op_sel:[0,{(MX+ci)%2}] op_sel_hi:[1,{(MX+ci)%2}] neg_lo:[0,1] neg_hi:[0,1]")
        e.append(f"v_pk_add_f32 {vr(A(ci)+2,2)}, {vr(A(ci)+2,2)}, {vr(MX+ci - (MX+ci)%2,2)} op_sel:[0,{(MX+ci)%2}] op_sel_hi:[1,{(MX+ci)%2}] neg_lo:[0,1] neg_hi:[0,1]")
    P = lambda ci: ACC + 4*ci
    for ci in range(8):
        for r in range(4): e.append(f"v_exp_f32 v{A(ci)+r}, v{A(ci)+r}")
        if ci > 0:
            c1 = ci - 1
            e += [f"v_cvt_pk_bf16_f32 v12, v{A(c1)}, v{A(c1)+1}", f"v_cvt_pk_bf16_f32 v13, v{A(c1)+2}, v{A(c1)+3}",
                  f"v_perm_b32 v{P(c1)}, v12, v12, v{SEL0}", f"v_perm_b32 v{P(c1)+1}, v12, v12, v{SEL1}",
                  f"v_perm_b32 v{P(c1)+2}, v13, v13, v{SEL0}", f"v_perm_b32 v{P(c1)+3}, v13, v13, v{SEL1}"]
    e.append("s_nop 0")
    e += [f"v_cvt_pk_bf16_f32 v12, v{A(7)}, v{A(7)+1}", f"v_cvt_pk_bf16_f32 v13, v{A(7)+2}, v{A(7)+3}",
          f"v_perm_b32 v{P(7)}, v12, v12, v{SEL0}", f"v_perm_b32 v{P(7)+1}, v12, v12, v{SEL1}",
          f"v_perm_b32 v{P(7)+2}, v13, v13, v{SEL0}", f"v_perm_b32 v{P(7)+3}, v13, v13, v{SEL1}"]
    e.append("s_nop 1")
    O = lambda ci: 128 + 4*ci
    L = lambda ci: 160 + 4*ci
    for ci,(t,h) in enumerate(combos):
        e.append(f"v_mfma_f32_16x16x32_bf16 {vr(O(ci),4)}, {vr(vf(t-1,h),4)}, {vr(P(ci),4)}, 0")
        e.append(f"v_mfma_f32_16x16x32_bf16 {vr(L(ci),4)}, {vr(ONES,4)}, {vr(P(ci),4)}, 0")
    e.append("s_nop 6")
    for ci in range(8): e.append(f"v_rcp_f32 v{MX+ci}, v{L(ci)}")
    e.append("s_nop 0")
    for ci in range(8):
        sel = (MX+ci) % 2; pr = vr(MX+ci - sel, 2)
        e.append(f"v_pk_mul_f32 {vr(O(ci),2)}, {vr(O(ci),2)}, {pr} op_sel:[0,{sel}] op_sel_hi:[1,{sel}]")
        e.append(f"v_pk_mul_f32 {vr(O(ci)+2,2)}, {vr(O(ci)+2,2)}, {pr} op_sel:[0,{sel}] op_sel_hi:[1,{sel}]")
    for t in range(1,5):
        d = 16 + 4*(t-1)
        for h in range(2): e += cv(d + 2*h, O(2*(t-1)+h))
        e.append(f"buffer_store_dwordx4 {vr(d,4)}, v14, s[32:35], s{T6} offen offset:{(t-1)*1024} sc1")
    return e

def att_consts(a):
    a("s_mov_b32 s46, 0xaaaaaaaa"); a("s_mov_b32 s47, 0xaaaaaaaa")
    a("s_mov_b32 s4, 0x3eb8aa3b"); a("s_mov_b32 s5, 0x3eb8aa3b")
    a("v_and_b32 v8, 14, v3"); a("v_lshlrev_b32 v9, 2, v2"); a("v_sub_u32 v8, v8, v9")
    a("v_mov_b32 v9, 0xf149f2ca")
    for dst, blk in ((44, 0), (46, 16)):
        for k in range(2):
            a(f"v_add_u32 v10, {blk - 2*k}, v8")
            a("v_cmp_gt_u32 s[6:7], 15, v10")
            a("s_nop 1")
            a(f"v_cndmask_b32 v{dst+k}, v9, 0, s[6:7]")
    a(f"s_or_b32 s{T0}, s{sRB}, s{sRH}"); a(f"s_cmp_eq_u32 s{T0}, 0"); a("s_cselect_b64 s[6:7], -1, 0")
    for k in range(2): a(f"v_cndmask_b32 v{48+k}, v{46+k}, v9, s[6:7]")
    a("v_mov_b32 v50, 0x0c0c0100"); a("v_mov_b32 v10, 0x01000c0c"); a("v_cndmask_b32 v50, v50, v10, s[46:47]")
    a("v_mov_b32 v51, 0x0c0c0302"); a("v_mov_b32 v10, 0x03020c0c"); a("v_cndmask_b32 v51, v51, v10, s[46:47]")
    for r in range(4): a(f"v_mov_b32 v{52+r}, 0x3f803f80")
    a(f"s_lshl_b32 s{T6}, s{sGRP}, 1"); a(f"s_add_u32 s{T6}, s{T6}, s{sCH}"); a(f"s_mul_i32 s{T6}, s{T6}, {AWS_U}")
    a(f"s_lshl_b32 s{T0}, s{sRB}, 3"); a(f"s_lshl_b32 s{T1}, s{sRH}, 2"); a(f"s_add_u32 s{T0}, s{T0}, s{T1}"); a(f"s_lshl_b32 s{T0}, s{T0}, 10")
    a("v_lshlrev_b32 v14, 4, v1"); a(f"v_add_u32 v14, s{T0}, v14")

def ffn_pairs(m, rr, D):
    e = []
    prs = [ACC + 4*(6*rr + 2*m + hh) + 2*q for hh in range(2) for q in range(2)]
    T = [16 + 2*k for k in range(4)]
    for k in range(4): e.append(f"v_pk_mul_f32 {vr(T[k],2)}, {vr(prs[k],2)}, s[4:5] op_sel_hi:[1,0]")
    for k in range(4):
        e.append(f"v_exp_f32 v{T[k]}, v{T[k]}"); e.append(f"v_exp_f32 v{T[k]+1}, v{T[k]+1}")
    U = [24 + 2*k for k in range(4)]
    for k in range(4): e.append(f"v_pk_fma_f32 {vr(U[k],2)}, {vr(T[k],2)}, 0.5, 1.0 op_sel_hi:[1,0,0]")
    for k in range(4): e.append(f"v_pk_fma_f32 {vr(U[k],2)}, {vr(U[k],2)}, {vr(T[k],2)}, 1.0 op_sel_hi:[1,1,0]")
    for k in range(4):
        e.append(f"v_rcp_f32 v{U[k]}, v{U[k]}"); e.append(f"v_rcp_f32 v{U[k]+1}, v{U[k]+1}")
    for k in range(4): e.append(f"v_pk_fma_f32 {vr(prs[k],2)}, {vr(prs[k],2)}, {vr(U[k],2)}, {vr(prs[k],2)} neg_lo:[1,0,0] neg_hi:[1,0,0]")
    for k in range(4): e.append(f"v_cvt_pk_bf16_f32 v{D+k}, v{prs[k]}, v{prs[k]+1}")
    return e

def ffn_epilogue(nunits):
    e = []
    for m in range(nunits):
        for rr in range(4):
            D = 32 + 4*(rr & 1)
            e += ffn_pairs(m, rr, D)
            e.append(f"buffer_store_dwordx4 {vr(D,4)}, v14, s[32:35], s{T6} offen offset:{rr*1024} sc1")
        e.append(f"s_add_u32 s{T6}, s{T6}, {AWS_U}")
    return e

def ffn_consts(a):
    a(f"s_mov_b32 s4, {LOG2E}"); a(f"s_mov_b32 s5, {LOG2E}")
    a(f"s_mul_i32 s{T6}, s{sCH}, 3"); a(f"s_add_u32 s{T6}, s{T6}, s{sU0}"); a(f"s_add_u32 s{T6}, s{T6}, 16"); a(f"s_mul_i32 s{T6}, s{T6}, {AWS_U}")
    a(f"s_lshl_b32 s{T0}, s{sRB}, 3"); a(f"s_lshl_b32 s{T1}, s{sRH}, 2"); a(f"s_add_u32 s{T0}, s{T0}, s{T1}"); a(f"s_lshl_b32 s{T0}, s{T0}, 10")
    a("v_lshlrev_b32 v14, 4, v1"); a(f"v_add_u32 v14, s{T0}, v14")

def gate_store(a):
    a("v_cmp_eq_u32 s[68:69], 0, v1")
    a("s_nop 1")
    a("s_and_saveexec_b64 s[66:67], s[68:69]")
    a(f"buffer_store_dwordx2 {vr(GR,2)}, v{vGST}, s[36:39], 0 offen sc1")
    a("s_mov_b64 exec, s[66:67]")

NB1 = 9
def weave(a, main, inserts):
    ins = {}
    for p, l in inserts: ins.setdefault(min(p, len(main)-1), []).extend(l)
    for i, x in enumerate(main):
        a(x)
        for y in ins.get(i, []): a(y)

def dma_inserts(dmas, lo, hi):
    out = []
    for k, (m, l) in enumerate(dmas):
        p = int(lo + 2 + k * (hi - lo - 2) / len(dmas))
        out.append((p - 2, m)); out.append((p, l))
    return out

def round1_copy():
    tr = [60, 61, 62, 63]; out = []
    for st in range(NB1):
        if st in (0, 4, 6, 7, 8): out += b_addr(st, tr)
        out += b_reads(st, 16*st, tr)
    return out

def count_vmem(lines): return sum(1 for x in lines if x.startswith("buffer_") or x.startswith("global_"))

def epilogue_with_staging(a, R, e, rest, frac):
    n = len(e)
    p_r1, p_cp0, p_cp1, p_bar = frac[0], int(n*frac[1]), int(n*frac[2]), int(n*frac[3])
    assert count_vmem(e[:p_r1+1]) == 0
    ins = dma_inserts(rest, 0, p_r1)
    later = count_vmem(e[:p_cp0+1])
    ins.append((p_cp0, [f"s_waitcnt vmcnt({later})"]))
    cp = round1_copy()
    for k, x in enumerate(cp): ins.append((p_cp0 + int(k * (p_cp1 - p_cp0) / len(cp)), [x]))
    ins.append((p_bar, ["s_waitcnt lgkmcnt(0)", "s_barrier"]))
    r2 = []
    for st in range(NB1, 16): r2 += b_dma(st)
    k2 = OPT.get(R + "r2", 10)
    ins += dma_inserts(r2[:k2], p_bar + 1, n - 1)
    weave(a, e, ins)
    return r2[k2:]

def phase1_role(a, R):
    a(f"s_lshr_b32 s{T0}, s2, 5"); a(f"s_lshr_b32 s{T1}, s2, 2"); a(f"s_and_b32 s{T1}, s{T1}, 6"); a(f"s_add_u32 s{T0}, s{T0}, s{T1}")
    a(f"s_and_b32 s{T0}, s{T0}, {7 if OPT.get('rot1', 1) else 0}")
    a(f"s_lshl_b32 s{sKX}, s{T0}, 7"); a(f"s_mul_i32 s{sKW}, s{T0}, s{sRS64}")
    if R == "ffn":
        for tt in range(6): a(f"buffer_load_dwordx2 {vr(BIAS+2*tt,2)}, v6, s[24:27], 0 offen offset:{tt*32}")
    late = chunks(capture(late_setup, R))
    pieces = []
    for st in range(2):
        pieces.append(([f"s_mov_b32 s{sPRV}, {st*STAGE}"], []))
        pieces += h1(R, sPRV) + h2(R, sPRV, sKW)
        pieces.append((adv_k(), []))
    gl = [f"buffer_load_dwordx4 {vr(GX,4)}, v4, s[16:19], 0 offen", f"buffer_load_dwordx4 {vr(GX+4,4)}, v4, s[16:19], 0 offen offset:1024",
          f"buffer_load_dwordx4 {vr(GW,4)}, v5, s[28:31], 0 offen"]
    nload = sum(1 for m, l in pieces if l); per = -(-len(late) // (nload - 2)); k = 0; seen = 0
    for m, l in pieces:
        for x in m: a(x)
        if l:
            a("s_nop 0")
            for x in l: a(x)
            seen += 1
            if seen == 2:
                for x in gl: a(x)
            if seen >= 2:
                for ch in late[k:k+per]:
                    for x in ch: a(x)
                k += per
    for ch in late[k:]:
        for x in ch: a(x)
    stamp(a, 2)
    a(f"s_mov_b32 s{sCUR}, 0"); a(f"s_mov_b32 s{sNXT}, {STAGE}"); a(f"s_mov_b32 s{sPRV}, {2*STAGE}")
    for x in addr_set(R, 0, sCUR) + addr_set(R, 1, sCUR): a(x)
    nst = 10
    if R == "ffn":
        a(f"s_waitcnt vmcnt({2*nst + 3})")
        for tt in range(6):
            for q in range(2):
                a(f"v_lshlrev_b32 v{bias_reg(tt,2*q)}, 16, v{BIAS+2*tt+q}")
                a(f"v_and_b32 v{bias_reg(tt,2*q+1)}, 0xffff0000, v{BIAS+2*tt+q}")
    a(f"s_waitcnt vmcnt({nst})")
    a("s_barrier")
    stamp(a, 3)
    for x in p1_reads(R, 0, 0): a(x)
    a("s_waitcnt lgkmcnt(0)")
    istamp(a, 1)
    adv0 = [adv_k()]
    body(a, R, h1(R, sPRV) + h2(R, sPRV, sKW), h1(R, sCUR), 10, first=True, tail1=adv0)
    if OPT.get("iter"):
        for it in range(1, 5):
            istamp(a, 1 + it)
            body(a, R, h2(R, sPRV), h1(R, sCUR), 10)
    else:
        a(f"s_mov_b32 s{sLOOP}, 1")
        a.label(f"L{R}_loop")
        body(a, R, h2(R, sPRV), h1(R, sCUR), 10, loop=(f"L{R}_loop", 5))
    istamp(a, 6)
    bd = []
    for st in range(NB1): bd += b_dma(st)
    n = OPT.get("bper", 6)
    assert 4*n <= 24 and 3*n <= 24 and 2*n <= 16
    body(a, R, h2(R, sPRV), [], 10, dx2=bd[:n])
    g = gate_instrs()
    istamp(a, 7)
    body(a, R, [], [], 2*n, x1=g[:22], x2=g[22:], dx1=bd[n:2*n], dx2=bd[2*n:3*n])
    fl = chunks(capture(att_consts if R == "att" else ffn_consts))
    istamp(a, 8)
    n7 = OPT.get("b7", 8)
    body(a, R, [], [], 0, last=True, x1=fl, dx1=bd[3*n:4*n], dx2=bd[4*n:4*n+n7])
    rest = bd[4*n+n7:]
    istamp(a, 9)
    stamp(a, 4)
    a.nop(8)
    early = OPT.get("early", 0)
    if R == "att":
        if early:
            left = epilogue_with_staging(a, R, att_epilogue(), rest, (40, 0.34, 0.56, 0.58))
            emit_pairs(a, left)
        else:
            weave(a, att_epilogue(), dma_inserts(rest, 0, 40))
    else:
        e = ffn_epilogue(3); k = 2*len(e)//3
        if early: left = epilogue_with_staging(a, R, e[:k], rest, (30, 0.36, 0.58, 0.60))
        else:
            weave(a, e[:k], dma_inserts(rest, 0, 30)); left = []
        a(f"s_cmp_ge_u32 s{sGRP}, 3"); a(f"s_cselect_b32 s{T0}, s{sCH}, 0"); a(f"s_cmp_eq_u32 s{T0}, 1"); a("s_cbranch_scc1 Lffn_two")
        weave(a, e[k:], dma_inserts(left, 0, len(e) - k - 1) if left else [])
        a("s_branch Lffn_done")
        a.label("Lffn_two")
        emit_pairs(a, left)
        a.label("Lffn_done")
    gate_store(a)
    p2_pre(a)
    istamp(a, 10)
    stamp(a, 5)
    a("s_waitcnt vmcnt(0)")
    a("s_barrier")
    a(f"s_cmp_eq_u32 s{sW_}, 0"); a(f"s_cbranch_scc0 L{R}_nosig")
    a(f"s_lshl_b32 s{T0}, s{sRB}, 4"); a(f"v_mov_b32 v4, s{T0}"); a("v_mov_b32 v5, 1")
    a("v_cmp_eq_u32 s[68:69], 0, v1"); a("s_nop 1"); a("s_and_saveexec_b64 s[66:67], s[68:69]")
    a("global_atomic_add v4, v5, s[50:51] sc1")
    a("s_mov_b64 exec, s[66:67]")
    a.label(f"L{R}_nosig")
    stamp(a, 6)
    if R == "att": a("s_branch Lphase2")

JR = [2, 3, 14, 15]
def p2_pre(a):
    for x in b_addr(NB1, JR): a(x)
    a(f"v_mov_b32 v0, v{vOUT}")
    a("v_lshlrev_b32 v4, 4, v1"); a(f"s_lshl_b32 s{T1}, s{sRB2}, 12")
    for tau in range(4):
        a(f"s_add_u32 s{T0}, s{sW_}, {tau}"); a(f"s_and_b32 s{T0}, s{T0}, 3"); a(f"s_lshl_b32 s{T0}, s{T0}, 10"); a(f"s_add_u32 s{T0}, s{T0}, s{T1}")
        a(f"v_add_u32 v{8+tau}, s{T0}, v4")
    srd(a, 16, 48, 2048*1024)

def late_setup(a, R):
    a("v_lshrrev_b32 v7, 1, v3")
    a(f"s_lshl_b32 s{T0}, s{sRH}, 13")
    for h in range(2):
        a(f"v_or_b32 v8, {4*h}, v2"); a("v_xor_b32 v8, v8, v7"); a("v_lshlrev_b32 v8, 4, v8")
        a("v_lshl_add_u32 v8, v3, 7, v8"); a(f"v_add_u32 v{XB+h}, s{T0}, v8")
    a("v_bfe_u32 v7, v1, 2, 2"); a("v_and_b32 v8, 3, v1")
    a("v_lshl_add_u32 v9, v2, 3, v7"); a("v_lshlrev_b32 v9, 7, v9")
    a("v_and_b32 v10, 1, v8"); a("v_lshl_add_u32 v9, v10, 3, v9")
    a("v_and_b32 v10, 2, v7"); a("v_and_b32 v11, 1, v2"); a("v_lshl_or_b32 v10, v11, 2, v10")
    a("v_lshrrev_b32 v11, 1, v8"); a("v_xor_b32 v10, v10, v11")
    if R == "att":
        for t in range(2):
            a(f"s_lshl_b32 s{T0}, s{sCH}, 2"); a(f"s_add_u32 s{T0}, s{T0}, {2*t}")
            a(f"v_xor_b32 v11, s{T0}, v10"); a("v_lshl_add_u32 v11, v11, 4, v9"); a(f"v_add_u32 v{WB+t}, {WOFF}, v11")
    else:
        for t in range(6):
            a(f"s_mul_i32 s{T0}, s{sCH}, 6"); a(f"s_add_u32 s{T0}, s{T0}, {t}")
            a(f"s_lshr_b32 s{T1}, s{T0}, 2"); a(f"s_and_b32 s{T0}, s{T0}, 3"); a(f"s_lshl_b32 s{T0}, s{T0}, 1")
            a(f"s_lshl_b32 s{T1}, s{T1}, 13"); a(f"s_add_u32 s{T1}, s{T1}, {WOFF}")
            a(f"v_xor_b32 v11, s{T0}, v10"); a("v_lshl_add_u32 v11, v11, 4, v9"); a(f"v_add_u32 v{WB+t}, s{T1}, v11")
    srd(a, 32, 10, 59*AWS_U)
    a(f"s_add_u32 s36, s10, {G_OFF}"); a("s_addc_u32 s37, s11, 0"); a("s_and_b32 s37, s37, 0xffff")
    a("s_mov_b32 s38, 8192"); a("s_mov_b32 s39, 0x00020000")
    p2_scalar_setup(a)
    a("v_lshrrev_b32 v7, 3, v1"); a("v_and_b32 v8, 7, v1"); a("v_lshlrev_b32 v9, 1, v2"); a("v_xor_b32 v8, v8, v9")
    a("v_lshlrev_b32 v8, 4, v8"); a("v_lshl_add_u32 v7, v7, 10, v8"); a(f"s_lshl_b32 s{T0}, s{sCT2}, 7"); a(f"v_add_u32 v{vBD}, s{T0}, v7")
    a("v_bfe_u32 v7, v1, 2, 2"); a("v_and_b32 v8, 3, v1")
    a("v_lshl_add_u32 v9, v2, 2, v7"); a("v_bfe_u32 v10, v9, 1, 2"); a("v_lshlrev_b32 v10, 1, v10")
    a("v_lshlrev_b32 v9, 7, v9"); a("v_and_b32 v11, 1, v8"); a("v_lshl_add_u32 v9, v11, 3, v9")
    a("v_lshrrev_b32 v11, 1, v8"); a("v_xor_b32 v10, v10, v11")
    for c in range(4):
        a(f"v_xor_b32 v11, {2*c}, v10"); a(f"v_lshl_add_u32 v{vBF+c}, v11, 4, v9")
    a(f"s_lshl_b32 s{T0}, s{sRB2}, 2"); a(f"s_add_u32 s{T0}, s{T0}, s{sW_}"); a(f"s_lshl_b32 s{T0}, s{T0}, 6")
    a("v_lshlrev_b32 v7, 2, v3"); a(f"v_add_u32 v{vGRD}, s{T0}, v7")
    a(f"s_lshl_b32 s{T0}, s{T0}, 8"); a(f"s_lshl_b32 s{T1}, s{sCT2}, 7"); a(f"s_add_u32 s{T0}, s{T0}, s{T1}")
    a("v_and_b32 v7, 1, v2"); a("v_lshlrev_b32 v7, 5, v7"); a("v_lshrrev_b32 v8, 1, v2"); a("v_lshl_add_u32 v7, v8, 4, v7")
    a("v_lshl_add_u32 v7, v3, 10, v7"); a(f"v_add_u32 v{vOUT}, s{T0}, v7")

RED = 114688
def phase2(a):
    ACC2, AR, NR, DEP = 16, 80, 6, 4
    JIT = [144, 160]
    a.label("Lphase2")
    if not OPT.get("early", 0):
        for x in round1_copy(): a(x)
        a("s_waitcnt lgkmcnt(0)")
        a("s_barrier")
        for st in range(NB1, 16): emit_pairs(a, b_dma(st))
    a(f"s_cmp_eq_u32 s{sW_}, 0"); a("s_cbranch_scc0 Lp2_go")
    a(f"s_lshr_b32 s{T0}, s{sRB2}, 1"); a(f"s_lshl_b32 s{T0}, s{T0}, 4"); a(f"v_mov_b32 v5, s{T0}")
    a(f"s_mov_b32 s{T1}, 0")
    a.label("Lp2_poll")
    a("global_load_dword v6, v5, s[50:51] sc1")
    a(f"s_add_u32 s{T1}, s{T1}, 1")
    a("s_waitcnt vmcnt(0)")
    a("v_readfirstlane_b32 s68, v6")
    a(f"s_cmp_gt_u32 s{T1}, 0x200000"); a("s_cbranch_scc1 Lp2_go")
    a("s_cmp_ge_u32 s68, 16"); a("s_cbranch_scc1 Lp2_go")
    a("s_sleep 1"); a("s_branch Lp2_poll")
    a.label("Lp2_go")
    a("s_barrier")
    stamp(a, 7)
    def loadA(step):
        return [f"buffer_load_dwordx4 {vr(AR+16*(step%NR)+4*tau,4)}, v{8+tau}, s[28:31], s{T0 + (step & 1)} offen sc1" for tau in (1, 2, 3, 0)]
    a(f"buffer_load_dword v12, v{vGRD}, s[36:39], 0 offen sc1")
    for st in range(DEP):
        for x in next_step(sUA, T0 + (st & 1), 17, st): a(x)
        for x in loadA(st): a(x)
    NS = 16
    pre = []
    pre.append(["v_lshlrev_b32 v4, 4, v1", f"v_add_u32 v4, {RED}, v4"])
    for tau in range(1, 4):
        pre.append([f"s_add_u32 s{T2}, s{sW_}, {tau}", f"s_and_b32 s{T2}, s{T2}, 3", f"s_mul_i32 s{T2}, s{T2}, 12288", f"v_add_u32 v{175+tau}, s{T2}, v4"])
    pre.append([f"s_mul_i32 s{T2}, s{sW_}, 12288", f"v_add_u32 v179, s{T2}, v4"])
    pre.append(["v_sub_f32 v13, 1.0, v12"])
    for k in range(4):
        pre.append([f"s_sub_u32 s{T2}, s{sW_}, {k}", f"s_and_b32 s{T2}, s{T2}, 3", f"s_cmp_eq_u32 s{T2}, 0", "s_cselect_b64 s[68:69], -1, 0",
                    f"v_cndmask_b32 v{180+k}, v13, v12, s[68:69]"])
    for st in range(NS):
        younger = min(st + DEP - 1, NS - 1) - st
        a(f"s_waitcnt vmcnt({4*younger})" + (" lgkmcnt(0)" if st >= NB1 else ""))
        if st == 0: stamp(a, 8)
        bsrc = 16*st if st < NB1 else JIT[(st - NB1) & 1]
        mf = []
        for tau in (1, 2, 3, 0):
            for c in range(4):
                d = ACC2 + 4*(4*tau + c)
                C = vr(d,4) if st > 0 else "0"
                mf.append(f"v_mfma_f32_16x16x32_bf16 {vr(d,4)}, {ar(bsrc+4*c,4)}, {vr(AR+16*(st%NR)+4*tau,4)}, {C}")
        nxt = st + 1
        rd = b_reads(nxt, JIT[(nxt - NB1) & 1], JR) if NB1 <= nxt < NS else []
        after = [[] for _ in mf]
        for k, x in enumerate(rd): after[k].append(x)
        if st + DEP < NS:
            after[0] += next_step(sUA, T0 + ((st+DEP) & 1), 17, st + DEP)
            for k, x in enumerate(loadA(st + DEP)): after[1 + 4*k].append(x)
        if 1 <= st <= 5:
            for k, ch in enumerate(pre[2*(st-1):2*st]): after[3 + 6*k] += ch
        if st == NS - 1:
            for tau in (1, 2):
                for c in range(4):
                    after[min(4*tau + 4 + c, 15)].append(f"ds_write_b128 v{175+tau}, {vr(ACC2+4*(4*tau+c),4)} offset:{(tau-1)*4096 + c*1024}")
        for m, f in zip(mf, after):
            a(m)
            for x in f: a(x)
    stamp(a, 9)
    a.nop(2)
    for c in range(4):
        a(f"ds_write_b128 v178, {vr(ACC2+4*(12+c),4)} offset:{2*4096 + c*1024}")
    for r in range(0, 16, 2): a(f"v_pk_mul_f32 {vr(ACC2+r,2)}, {vr(ACC2+r,2)}, {vr(180,2)} op_sel_hi:[1,0]")
    a("s_waitcnt lgkmcnt(0)"); a("s_barrier")
    R = 80
    for pos in range(3):
        for c in range(4):
            a(f"ds_read_b128 {vr(R+16*pos+4*c,4)}, v179 offset:{pos*4096 + c*1024}")
    for pos in range(3):
        a(f"s_waitcnt lgkmcnt({8 - 4*pos})")
        f = 181 + pos; pr = vr(f - f % 2, 2); sel = f % 2
        for r in range(0, 16, 2):
            a(f"v_pk_fma_f32 {vr(ACC2+r,2)}, {vr(R+16*pos+r,2)}, {pr}, {vr(ACC2+r,2)} op_sel:[0,{sel},0] op_sel_hi:[1,{sel},1]")
    for c in range(4):
        a(f"v_cvt_pk_bf16_f32 v{32+2*c}, v{ACC2+4*c}, v{ACC2+4*c+1}"); a(f"v_cvt_pk_bf16_f32 v{33+2*c}, v{ACC2+4*c+2}, v{ACC2+4*c+3}")
    a("s_nop 1")
    for p in range(2):
        b = 32 + 4*p
        a(f"v_permlane16_swap_b32 v{b}, v{b+2}"); a(f"v_permlane16_swap_b32 v{b+1}, v{b+3}")
    for p in range(2):
        a(f"buffer_store_dwordx4 {vr(32+4*p,4)}, v0, s[16:19], 0 offen offset:{64*p}")
    stamp(a, 10)

def kernel():
    a = Asm()
    a(f".globl {KNAME}"); a(".p2align 8"); a(f".type {KNAME},@function"); a.label(KNAME)
    a("s_cmp_ge_u32 s2, 256"); a("s_cbranch_scc1 Lend")
    stamp(a, 0)
    a("s_load_dwordx4 s[4:7], s[0:1], 0")
    a("s_load_dwordx4 s[12:15], s[0:1], 32")
    a("s_load_dwordx4 s[44:47], s[0:1], 48")
    a("s_load_dwordx2 s[8:9], s[0:1], 16")
    a("s_load_dwordx4 s[48:51], s[0:1], 64")
    a("s_load_dwordx2 s[10:11], s[0:1], 80")
    a("v_and_b32 v1, 63, v0"); a("v_lshrrev_b32 v4, 6, v0"); a("v_lshrrev_b32 v2, 4, v1"); a("v_and_b32 v3, 15, v1")
    a(f"v_readfirstlane_b32 s{sW_}, v4")
    a(f"s_and_b32 s{T0}, s2, 7"); a(f"s_lshr_b32 s{T1}, s2, 3")
    a(f"s_lshr_b32 s{T2}, s{T0}, 2"); a(f"s_and_b32 s{T3}, s{T0}, 3")
    a(f"s_lshl_b32 s{sRB}, s{T2}, 3"); a(f"s_lshr_b32 s{T4}, s{T1}, 2"); a(f"s_add_u32 s{sRB}, s{sRB}, s{T4}")
    a(f"s_and_b32 s{T4}, s{T1}, 3"); a(f"s_lshr_b32 s{sTYPE}, s{T4}, 1")
    a(f"s_lshl_b32 s{sGRP}, s{T3}, 1"); a(f"s_and_b32 s{T4}, s{T4}, 1"); a(f"s_add_u32 s{sGRP}, s{sGRP}, s{T4}")
    a(f"s_lshr_b32 s{sRH}, s{sW_}, 1"); a(f"s_and_b32 s{sCH}, s{sW_}, 1")
    a(f"s_mul_i32 s{sU0}, s{sGRP}, 6"); a(f"s_mul_i32 s{T0}, s{sGRP}, 5"); a(f"s_add_u32 s{T0}, s{T0}, 3")
    a(f"s_cmp_le_u32 s{sGRP}, 3"); a(f"s_cselect_b32 s{sU0}, s{sU0}, s{T0}")
    a(f"s_lshl_b32 s{T0}, s{sGRP}, 7"); a(f"s_lshl_b32 s{T1}, s{sU0}, 6"); a(f"s_lshl_b32 s{T5}, s{sRB}, 17")
    a(f"s_cmp_eq_u32 s{sTYPE}, 0")
    a(f"s_cselect_b32 s{T4}, s{T0}, s{T1}")
    a(f"s_movk_i32 s{T0}, 2752"); a(f"s_cselect_b32 s{T2}, 3072, s{T0}"); a(f"s_movk_i32 s{T0}, 128"); a(f"s_cselect_b32 s{T3}, 1024, s{T0}")
    a(f"s_cselect_b32 s{T0}, 16384, 0"); a(f"s_sub_u32 s{T5}, s{T5}, s{T0}")
    a(f"s_lshl_b32 s{sRS64}, s{T2}, 6")
    a(f"s_lshl_b32 s{sXD}, s{sW_}, 12"); a(f"s_add_u32 s{sXE}, s{sW_}, 16"); a(f"s_lshl_b32 s{sXE}, s{sXE}, 10")
    a(f"s_mul_i32 s{sWD}, s{sW_}, 6144"); a(f"s_add_u32 s{sWD}, s{sWD}, {WOFF}")
    a("v_lshrrev_b32 v4, 3, v1"); a("v_and_b32 v5, 7, v1"); a("v_xor_b32 v6, v5, v2")
    a("v_lshlrev_b32 v7, 10, v4"); a("v_lshl_add_u32 v8, v6, 4, v7"); a("v_xor_b32 v9, 64, v8")
    a(f"s_lshl_b32 s{T0}, s{sW_}, 15"); a(f"s_add_u32 s{T0}, s{T0}, s{T5}")
    a(f"s_cmp_lt_i32 s{T0}, 0"); a(f"s_cselect_b32 s{T1}, 16384, 0"); a(f"s_add_u32 s{T1}, s{T1}, s{T0}")
    for j in range(4):
        src = T1 if j < 2 else T0
        a(f"s_add_u32 s{T6}, s{src}, {8192*j}"); a(f"v_add_u32 v{XO+j}, s{T6}, v{8 + (j&1)}")
    a(f"s_lshl_b32 s{T0}, s{sW_}, 13"); a(f"s_add_u32 s{T0}, s{T0}, s{T5}"); a(f"s_add_u32 s{T0}, s{T0}, {128*1024}")
    a(f"s_and_b32 s{T1}, s{sW_}, 1"); a(f"s_lshl_b32 s{T1}, s{T1}, 6"); a(f"v_xor_b32 v10, s{T1}, v8"); a(f"v_add_u32 v{XO+4}, s{T0}, v10")
    a(f"v_mul_lo_u32 v7, s{T2}, v4")
    a("v_and_b32 v8, 1, v2"); a("v_lshlrev_b32 v8, 1, v8"); a("v_xor_b32 v8, v8, v5")
    a("v_xor_b32 v9, 4, v8")
    a("v_cmp_le_u32 s[44:45], 4, v8") if False else None
    a("v_lshl_add_u32 v10, v8, 4, v7"); a("v_lshl_add_u32 v11, v9, 4, v7")
    a(f"s_cmp_ge_u32 s{sGRP}, 3"); a(f"s_cselect_b32 s{T0}, s{sTYPE}, 0")
    a(f"s_lshl_b32 s{T0}, s{T0}, 30")
    a("v_lshrrev_b32 v12, 2, v8"); a(f"v_mul_lo_u32 v12, s{T0}, v12"); a(f"v_xor_b32 v13, s{T0}, v12")
    for j in range(6):
        a(f"s_mul_i32 s{T0}, s{sW_}, 6"); a(f"s_add_u32 s{T0}, s{T0}, {j}")
        a(f"s_lshr_b32 s{T1}, s{T0}, 3"); a(f"s_and_b32 s{T0}, s{T0}, 7")
        a(f"s_mul_i32 s{T5}, s{T1}, s{T3}"); a(f"s_add_u32 s{T5}, s{T5}, s{T4}")
        a(f"s_mul_i32 s{T6}, s{T0}, s{T2}"); a(f"s_lshl_b32 s{T6}, s{T6}, 3"); a(f"s_add_u32 s{T5}, s{T5}, s{T6}")
        a(f"v_add_u32 v{WO+j}, s{T5}, v{10 + (j&1)}")
        if j >= 4 or True:
            a(f"s_cmp_eq_u32 s{T1}, 2"); a(f"s_cselect_b64 s[16:17], -1, 0")
            a(f"v_cndmask_b32 v14, 0, v{12 + (j&1)}, s[16:17]"); a(f"v_add_u32 v{WO+j}, v{WO+j}, v14")
    a(f"s_lshl_b32 s{T0}, s{sTYPE}, 3"); a(f"s_add_u32 s{T0}, s{T0}, s{sGRP}"); a(f"s_lshl_b32 s{T0}, s{T0}, 3")
    a(f"s_lshl_b32 s{T1}, s{sRB}, 7"); a(f"s_add_u32 s{T0}, s{T0}, s{T1}"); a(f"s_lshl_b32 s{T1}, s{sW_}, 1"); a(f"s_add_u32 s{T0}, s{T0}, s{T1}")
    a(f"s_lshl_b32 s{T1}, s{T0}, 10"); a(f"s_lshl_b32 s{T0}, s{T0}, 2")
    a("v_lshlrev_b32 v5, 4, v1"); a(f"v_add_u32 v4, s{T1}, v5"); a(f"v_mov_b32 v{vGST}, s{T0}")
    a(f"s_lshl_b32 s{T0}, s{sU0}, 6"); a(f"s_mul_i32 s{T1}, s{sCH}, 192"); a(f"s_add_u32 s{T0}, s{T0}, s{T1}")
    a("v_lshlrev_b32 v6, 3, v2"); a(f"v_add_u32 v6, s{T0}, v6")
    a("s_waitcnt lgkmcnt(0)")
    stamp(a, 1)
    srd(a, 16, 4, 2048*1024)
    a(f"s_cmp_eq_u32 s{sTYPE}, 0")
    a("s_cselect_b32 s20, s6, s12"); a("s_cselect_b32 s21, s7, s13"); a(f"s_mov_b32 s22, {512*2752}"); a(f"s_cselect_b32 s22, {512*3072}, s22")
    a("s_and_b32 s21, s21, 0xffff"); a("s_mov_b32 s23, 0x00020000")
    srd(a, 24, 14, 2752); srd(a, 28, 46, 1024)
    a(f"s_cmp_eq_u32 s{sTYPE}, 0"); a("s_cbranch_scc0 Lffn")
    phase1_role(a, "att")
    a.label("Lffn")
    phase1_role(a, "ffn")
    phase2(a)
    stamp_flush(a)
    a.label("Lend")
    a("s_endpgm")
    return a.text()

def main(out):
    t = kernel()
    src = "; Single launch: phase 1 (QKV projection + windowed attention | FFN1 + mish, gate), per-row-block counters in d_debug,\n"
    src += "; phase 2 (output projection of both branches, blended by the gate).\n"
    src += f"; @launch grid=(256,1,1) block=(256,1,1) lds={LDS_BYTES}\n"
    src += '.amdgcn_target "amdgcn-amd-amdhsa--gfx950"\n.text\n' + t + kd(KNAME, 512, 256)
    open(out, "w").write(src)

if __name__ == "__main__":
    if "--instr" in sys.argv: INSTR = True; sys.argv.remove("--instr")
    for x in list(sys.argv):
        if x.startswith("--"):
            sys.argv.remove(x); k, _, v = x[2:].partition("="); OPT[k] = int(v) if v else 1
    main(sys.argv[1] if len(sys.argv) > 1 else "cdna_kernels/" + NAME + ".s")
```

```python
import sys
from asmlib import *

NAME = "gated_mix__sliding_local_dilated__dense_activation_mish__prompt"
KNAME = NAME + "_kernel"
LOG2E = 0x3fb8aa3b
STAGE = 43008
WOFF = 18432
AWS_U = 131072
G_OFF = 8 << 20
LDS_BYTES = 163840
GA, GB, GC, GC2, R2 = 86016, 0, 43008, 86016 + 16*4096, 28672
INSTR = False
OPT = {}
STAMP_OFF = 16 << 20
NST = 12

sW_, sRB, sTYPE, sGRP = 40, 41, 42, 43
sRH, sCH, sBUF, sFREE, sXD, sXE, sWD, sKX, sKW, sKW2, sRS64, sIT, sU0 = range(52, 65)
T0, T1, T2, T3, T4, T5, T6 = range(65, 72)
XO, WO, XB, WB, XA, WA = 16, 21, 27, 29, 35, 37
WA1 = 208
GX, GW, GR, BIAS = 44, 52, 56, 58
vGST, vBD, vBF, vAO, vGRD, vOUT = 86, 87, 88, 208, 92, 93
ACC = 96
BF32 = 70
SET = [0, 44]

def srd(a, s, ptr, size):
    a(f"s_mov_b32 s{s}, s{ptr}")
    a(f"s_and_b32 s{s+1}, s{ptr+1}, 0xffff")
    a(f"s_mov_b32 s{s+2}, {size}")
    a(f"s_mov_b32 s{s+3}, 0x00020000")

def istamp(a, k):
    if INSTR and OPT.get("iter"): a(f"{'s_memtime' if OPT.get('cyc') else 's_memrealtime'} s[{72+2*k}:{73+2*k}]")
def stamp(a, k):
    if OPT.get("iter") and k not in (0, NST-1): return
    if INSTR: a(f"{'s_memtime' if OPT.get('cyc') else 's_memrealtime'} s[{72+2*k}:{73+2*k}]")
def stamp_flush_dbg(a):
    a("s_waitcnt vmcnt(0) lgkmcnt(0)")
    stamp(a, NST-1)
    a("s_waitcnt lgkmcnt(0)")
    a(f"s_cmp_eq_u32 s{sW_}, 0"); a("s_cbranch_scc0 Ldbg_done")
    a("v_cmp_eq_u32 vcc, 0, v1"); a("s_and_saveexec_b64 s[28:29], vcc")
    slots = [1,2,3,5,6,7,9,10,11,13,14,15]
    order = [0, 0, 1, 3, 4, 5, 6, 7, 8, 9, 10, 11]
    for k, (sl, stp) in enumerate(zip(slots, order)):
        a(f"v_mov_b32 v2, s{72+2*stp}")
        if k == 0: a("v_not_b32 v2, v2")
        a(f"v_mov_b32 v3, {4*sl}")
        a("global_atomic_umax v3, v2, s[50:51]")
    a("s_mov_b64 exec, s[28:29]")
    a.label("Ldbg_done")
def stamp_flush(a):
    if not INSTR: return
    if OPT.get("dbg"): return stamp_flush_dbg(a)
    a("s_waitcnt vmcnt(0) lgkmcnt(0)")
    stamp(a, NST-1)
    a("s_waitcnt lgkmcnt(0)")
    a(f"s_add_u32 s24, s10, {STAMP_OFF}"); a("s_addc_u32 s25, s11, 0"); a("s_and_b32 s25, s25, 0xffff")
    a("s_mov_b32 s26, 65536"); a("s_mov_b32 s27, 0x00020000")
    a(f"s_lshl_b32 s{T0}, s2, 8"); a(f"s_lshl_b32 s{T1}, s{sW_}, 6"); a(f"s_add_u32 s{T0}, s{T0}, s{T1}")
    a(f"v_mov_b32 v0, s{T0}")
    a("v_cmp_eq_u32 vcc, 0, v1"); a("s_and_saveexec_b64 s[28:29], vcc")
    for k in range(NST):
        a(f"v_mov_b32 v2, s{72+2*k}"); a(f"buffer_store_dword v2, v0, s[24:27], 0 offen offset:{4*k}")
    a("s_mov_b64 exec, s[28:29]")

def bias_reg(ct, r):
    k = 4*ct + r
    return (BF32 + k) if k < 16 else (8 + k - 16)

def p1_reads(role, st, h):
    base = SET[st]
    nx = 5 if role == "att" else 4
    w = []
    for tt in range(6):
        off = h * 4096 + ((tt >> 1) * 8192 if role == "att" else 0)
        r = base + 20 + 4 * tt; ad = (WA if h == 0 else WA1) + (tt & 1 if role == "att" else tt)
        w.append(f"ds_read_b64_tr_b16 {ar(r,2)}, v{ad} offset:{off}")
        w.append(f"ds_read_b64_tr_b16 {ar(r+2,2)}, v{ad} offset:{off+512}")
    x = [f"ds_read_b128 {ar(base+4*t,4)}, v{XA+h} offset:{t*2048}" for t in range(nx)]
    if role == "att":
        return [w[4], w[5], x[0], x[1], x[2], w[6], w[7], x[3], x[4], w[0], w[1], w[2], w[3]] + w[8:]
    return [w[0], w[1], x[0], x[1], x[2], x[3]] + w[2:]

def p1_mfmas(role, st, first=False):
    base = SET[st]; X = lambda t: ar(base + 4*t, 4); W = lambda t: ar(base + 20 + 4*t, 4)
    out = []
    def m(c, A, B, cin=None):
        C = vr(c,4) if not first else cin
        out.append(f"v_mfma_f32_16x16x32_bf16 {vr(c,4)}, {A}, {B}, {C}")
    if role == "att":
        for a_ in range(2):
            for t in range(5): m(ACC + 4*(8 + 2*t + a_), W(2+a_), X(t), "0")
        for a_ in range(2):
            for t in range(1, 5): m(ACC + 4*(2*(t-1) + a_), W(a_), X(t), "0")
        for a_ in range(2):
            for t in range(5): m(ACC + 4*(18 + 2*t + a_), X(t), W(4+a_), "0")
    else:
        for ct in range(6):
            for rt in range(4): m(ACC + 4*(6*rt + ct), W(ct), X(rt), vr(bias_reg(ct,0), 4))
    return out

def dma_x(role, bufreg):
    g = []
    if role == "att":
        g.append(([f"s_add_u32 m0, s{bufreg}, s{sXE}"],
                  [f"s_cmp_lt_u32 s{sW_}, 2", "s_cbranch_scc0 1f", f"buffer_load_dwordx4 v{XO+4}, s[16:19], s{sKX} offen lds", "1:"]))
    for j in range(4):
        m = f"s_add_u32 m0, s{bufreg}, s{sXD}" if j == 0 else "s_add_u32 m0, m0, 1024"
        g.append(([m], [f"buffer_load_dwordx4 v{XO+j}, s[16:19], s{sKX} offen lds"]))
    return g
def dma_w(bufreg, js, sw):
    g = []
    for k, j in enumerate(js):
        if k == 0: m = [f"s_add_u32 m0, s{bufreg}, s{sWD}"] + ([f"s_add_u32 m0, m0, {1024*j}"] if j else [])
        else: m = ["s_add_u32 m0, m0, 1024"]
        g.append((m, [f"buffer_load_dwordx4 v{WO+j}, s[20:23], s{sw} offen lds"]))
    return g
def h1(role, buf): return dma_x(role, buf) + dma_w(buf, [0], sKW)
def h2(role, buf, sw=None): return dma_w(buf, [1,2,3,4,5], sKW2 if sw is None else sw)

SCC_READ = ("s_cselect", "s_cbranch_scc", "s_addc", "s_subb")
SCC_WRITE = ("s_cmp", "s_add_u32", "s_sub_u32", "s_addc", "s_subb", "s_and_b", "s_or_b", "s_xor_b", "s_lshl_b", "s_lshr_b", "s_bitcmp", "s_add_i32")
def chunks(lines):
    n = len(lines); live = [False]*(n+1)
    for i in range(n-1, -1, -1):
        x = lines[i]
        if x.startswith(SCC_READ): live[i] = True
        elif x.startswith(SCC_WRITE): live[i] = False
        else: live[i] = live[i+1]
    out = []
    for i, x in enumerate(lines):
        if out and live[i]: out[-1].append(x)
        else: out.append([x])
    return out
def capture(fn, *args):
    t = Asm(); fn(t, *args); return [x.strip() for x in t.L]

def emit_pairs(a, pairs):
    for m, l in pairs:
        for x in m: a(x)
        a("s_nop 0")
        for x in l: a(x)

def schedule(mf, reads, dmas, extra=(), dma_first=2, read_span=20, xspan=None, tail=()):
    n = len(mf); after = [[] for _ in range(n)]
    if dmas:
        step = (n - dma_first) / len(dmas)
        for k, (m, l) in enumerate(dmas):
            p = int(dma_first + k * step)
            after[max(p-1, 0)] += m
            after[p] += l
    for k, r in enumerate(reads):
        after[min(int(k * read_span / len(reads)), n-1)].insert(0, r)
    for k, x in enumerate(extra):
        lo, hi = xspan or (0, n)
        after[min(int(lo + k * (hi - lo) / len(extra)), n-1)] += (x if isinstance(x, list) else [x])
    for k, x in enumerate(tail):
        after[n - len(tail) - 1 + k] += (x if isinstance(x, list) else [x])
    out = []
    for i in range(n):
        out.append(mf[i]); out += after[i]
    return out

sPRV, sCUR, sNXT = sFREE, sBUF, sIT + 0
sNXT = 63
def addr_set(role, h, sreg):
    n = 2 if role == "att" else 6
    w = WA if h == 0 else WA1
    return [f"v_add_u32 v{XA+h}, s{sreg}, v{XB+h}"] + [f"v_add_u32 v{w+t}, s{sreg}, v{WB+t}" for t in range(n)]
def rot_instrs():
    return [[f"s_mov_b32 s{T0}, s{sPRV}", f"s_mov_b32 s{sPRV}, s{sCUR}"], [f"s_mov_b32 s{sCUR}, s{sNXT}", f"s_mov_b32 s{sNXT}, s{T0}"]]
def adv_k():
    return [f"s_add_u32 s{sKX}, s{sKX}, 128", f"s_and_b32 s{sKX}, s{sKX}, 1023",
            f"s_add_u32 s{sKW}, s{sKW}, s{sRS64}", f"s_cmp_eq_u32 s{sKW}, s22", f"s_cselect_b32 s{sKW}, 0, s{sKW}"]
def adv_instrs():
    return [[f"s_mov_b32 s{sKW2}, s{sKW}"] + adv_k()]

def gate_instrs():
    g = []
    for q in range(4):
        for row in range(2):
            g.append(f"v_dot2_f32_bf16 v{GR+row}, v{GX+4*row+q}, v{GW+q}, {'0' if q == 0 else 'v%d' % (GR+row)}")
    g += ["s_nop 0", "s_nop 0"]
    for sh in (8, 4, 2, 1):
        for row in range(2):
            g.append(f"v_add_f32_dpp v{GR+row}, v{GR+row}, v{GR+row} row_ror:{sh} row_mask:0xf bank_mask:0xf")
    for op in ("v_permlane16_swap_b32", "v_permlane32_swap_b32"):
        for row in range(2): g.append(f"v_mov_b32 v{4+row}, v{GR+row}")
        for row in range(2): g.append(f"{op} v{GR+row}, v{4+row}")
        for row in range(2): g.append(f"v_add_f32 v{GR+row}, v{GR+row}, v{4+row}")
    for row in range(2): g.append(f"v_mul_f32 v{GR+row}, 0xbfb8aa3b, v{GR+row}")
    for row in range(2): g.append(f"v_exp_f32 v{GR+row}, v{GR+row}")
    for row in range(2): g.append(f"v_add_f32 v{GR+row}, 1.0, v{GR+row}")
    for row in range(2): g.append(f"v_rcp_f32 v{GR+row}, v{GR+row}")
    return g

def body(a, role, d1, d2, wait, first=False, last=False, x1=(), x2=(), dx1=(), dx2=(), loop=None, tail1=()):
    up0 = addr_set(role, 0, sNXT) if not last else []
    for x in schedule(p1_mfmas(role, 0, first), p1_reads(role, 1, 1), list(d1) + list(dx1), list(x1) + up0,
                      dma_first=1 if first else 2, tail=tail1, xspan=(0, 18)): a(x)
    if last:
        a("s_waitcnt lgkmcnt(0)")
        a("s_barrier")
        for x in schedule(p1_mfmas(role, 1), [], list(d2) + list(dx2), x2): a(x)
        return
    a(f"s_waitcnt vmcnt({wait}) lgkmcnt(0)")
    a("s_barrier")
    tail = (adv_instrs() if d2 else []) + rot_instrs()
    if loop: tail.append([f"s_add_u32 s{sLOOP}, s{sLOOP}, 1", f"s_cmp_lt_u32 s{sLOOP}, {loop[1]}"])
    for x in schedule(p1_mfmas(role, 1), p1_reads(role, 0, 0), list(d2) + list(dx2), list(x2) + addr_set(role, 1, sNXT),
                      tail=tail, xspan=(0, 20)): a(x)
    a("s_waitcnt lgkmcnt(0)")
    if loop: a(f"s_cbranch_scc1 {loop[0]}")

sLOOP = 66
sBA, sBB, sBC, sBR = 96, 97, 98, 101
def b_base(step):
    if step < 4: return sBA, step*4096
    if step < 6: return sBB, (step-4)*4096
    if step < 9: return sBC + step - 6, 0
    return sBR, (step-9)*4096
sUB, sBO, sUA = 44, 45, 8
def next_step(u, dst, shift, pos):
    if pos >= 14:
        l = [f"s_cmp_gt_u32 s{sN2}, {pos}", f"s_cselect_b32 s{dst}, s{u}, 31", f"s_lshl_b32 s{dst}, s{dst}, {shift}"]
    else:
        l = [f"s_lshl_b32 s{dst}, s{u}, {shift}"]
    return l + [f"s_add_u32 s{u}, s{u}, 1", f"s_cmp_eq_u32 s{u}, s{sN2}", f"s_cselect_b32 s{u}, 0, s{u}"]
def b_dma(step):
    g = []; sb, im = b_base(step)
    for dd in range(4):
        m = next_step(sUB, sBO, 15, step) if dd == 0 else []
        g.append((m + [f"s_add_u32 m0, s{sb}, {im + dd*1024}", f"s_add_u32 s57, s{sBO}, {dd*8192}"],
                  [f"buffer_load_dwordx4 v{vBD}, s[24:27], s57 offen lds"]))
    return g
def b_addr(step, regs):
    sb, im = b_base(step)
    return [f"v_add_u32 v{regs[c]}, s{sb}, v{vBF+c}" for c in range(4)]
def b_reads(step, dst, regs):
    out = []; sb, im = b_base(step)
    for c in range(4):
        out.append(f"ds_read_b64_tr_b16 {ar(dst+4*c,2)}, v{regs[c]} offset:{im}")
        out.append(f"ds_read_b64_tr_b16 {ar(dst+4*c+2,2)}, v{regs[c]} offset:{im+2048}")
    return out

sRB2, sCT2, sU2, sN2 = 12, 13, 14, 15
def p2_scalar_setup(a):
    a(f"s_and_b32 s{T0}, s2, 7"); a(f"s_lshr_b32 s{T1}, s2, 3")
    if OPT.get("p2b", 1) == 1:
        a(f"s_lshl_b32 s{sRB2}, s{T0}, 2"); a(f"s_lshr_b32 s{T2}, s{T1}, 3"); a(f"s_add_u32 s{sRB2}, s{sRB2}, s{T2}")
        a(f"s_and_b32 s{sCT2}, s{T1}, 7")
    else:
        a(f"s_lshr_b32 s{sRB2}, s{T0}, 1"); a(f"s_lshl_b32 s{sRB2}, s{sRB2}, 3"); a(f"s_lshr_b32 s{T2}, s{T1}, 2"); a(f"s_add_u32 s{sRB2}, s{sRB2}, s{T2}")
        a(f"s_and_b32 s{sCT2}, s{T0}, 1"); a(f"s_lshl_b32 s{sCT2}, s{sCT2}, 2"); a(f"s_and_b32 s{T2}, s{T1}, 3"); a(f"s_add_u32 s{sCT2}, s{sCT2}, s{T2}")
    a(f"s_mov_b32 s{sU2}, 0"); a(f"s_mov_b32 s{sN2}, 16")
    for w, u0, n in ((1,16,15), (2,31,14), (3,45,14)):
        a(f"s_cmp_eq_u32 s{sW_}, {w}"); a(f"s_cselect_b32 s{sU2}, {u0}, s{sU2}"); a(f"s_cselect_b32 s{sN2}, {n}, s{sN2}")
    a(f"s_lshl_b32 s{sBA}, s{sW_}, 14"); a(f"s_add_u32 s{sBA}, s{sBA}, {GA}")
    a(f"s_lshl_b32 s{sBB}, s{sW_}, 13")
    a(f"s_mul_i32 s{T0}, s{sW_}, 12288"); a(f"s_add_u32 s{T0}, s{T0}, {GC}")
    for k in range(3):
        a(f"s_add_u32 s{sBC+k}, s{T0}, {4096*k}")
    a(f"s_cmp_eq_u32 s{sW_}, 3")
    a(f"s_cselect_b32 s{sBC+1}, {GC2}, s{sBC+1}"); a(f"s_cselect_b32 s{sBC+2}, {GC2+4096}, s{sBC+2}")
    a(f"s_mul_i32 s{sBR}, s{sW_}, {R2}")
    a(f"s_sub_u32 s{T0}, s{sU2}, 16"); a(f"s_lshl_b32 s{T0}, s{T0}, 15"); a(f"s_add_u32 s{T2}, s44, s{T0}"); a(f"s_addc_u32 s{T3}, s45, 0")
    a(f"s_cmp_eq_u32 s{sW_}, 0"); a(f"s_cselect_b32 s24, s8, s{T2}"); a(f"s_cselect_b32 s25, s9, s{T3}"); a("s_and_b32 s25, s25, 0xffff")
    a(f"s_lshl_b32 s26, s{sN2}, 15"); a("s_mov_b32 s27, 0x00020000")
    a(f"s_mul_i32 s{T0}, s{sU2}, {AWS_U}"); a(f"s_add_u32 s28, s10, s{T0}"); a("s_addc_u32 s29, s11, 0"); a("s_and_b32 s29, s29, 0xffff")
    a(f"s_mul_i32 s30, s{sN2}, {AWS_U}"); a("s_mov_b32 s31, 0x00020000")
    a(f"s_and_b32 s{T0}, s{sRB2}, 3"); a(f"s_lshl_b32 s{T0}, s{T0}, 2"); a(f"s_lshl_b32 s{T1}, s{sCT2}, 1"); a(f"s_add_u32 s{T0}, s{T0}, s{T1}")
    if not OPT.get("rot2", 1): a(f"s_mov_b32 s{T0}, 0")
    a(f"s_sub_u32 s{T1}, s{T0}, s{sN2}"); a(f"s_cmp_ge_u32 s{T0}, s{sN2}"); a(f"s_cselect_b32 s{sUB}, s{T1}, s{T0}")
    a(f"s_mov_b32 s{sUA}, s{sUB}")

def mix(a, valu, dmas, every):
    d = list(dmas); cnt = 0
    for k, x in enumerate(valu):
        a(x)
        if x.endswith(":") or x.startswith("s_cbranch"): continue
        cnt += 1
        if d and cnt % every == every - 2:
            for y in d[0][0]: a(y)
        if d and cnt % every == 0:
            for y in d[0][1]: a(y)
            d.pop(0)
    return d

def att_epilogue():
    e = []
    Q = lambda t, h: ACC + 4*(2*(t-1) + h)
    Kc = lambda t, h: ACC + 4*(8 + 2*t + h)
    V = lambda t, h: ACC + 4*(18 + 2*t + h)
    KF, VF, QF = 208, 228, 16
    kf = lambda t, h: KF + 10*h + 2*t
    vf = lambda t, h: VF + 10*h + 2*t
    qf = lambda t, h: QF + 2*(2*(t-1) + h)
    cv = lambda d, s: [f"v_cvt_pk_bf16_f32 v{d}, v{s}, v{s+1}", f"v_cvt_pk_bf16_f32 v{d+1}, v{s+2}, v{s+3}"]
    combos = [(t,h) for t in range(1,5) for h in range(2)]
    MC, MP, MF, SEL0, SEL1, ONES = 44, 46, 48, 50, 51, 52
    for t in range(5):
        for h in range(2): e += cv(kf(t,h), Kc(t,h))
    for (t,h) in combos: e += cv(qf(t,h), Q(t,h))
    S = lambda ci, blk: ACC + 8*ci + 4*blk
    vcv = []
    for t in range(5):
        for h in range(2): vcv += cv(vf(t,h), V(t,h))
    sm = []
    for ci,(t,h) in enumerate(combos):
        sm.append(f"v_mfma_f32_16x16x16_bf16 {vr(S(ci,0),4)}, {vr(kf(t-1,h),2)}, {vr(qf(t,h),2)}, 0")
        sm.append(f"v_mfma_f32_16x16x16_bf16 {vr(S(ci,1),4)}, {vr(kf(t,h),2)}, {vr(qf(t,h),2)}, 0")
    e.append("s_nop 1")
    for k, m in enumerate(sm):
        e.append(m)
        e += vcv[k*20//16:(k+1)*20//16]
    e += ["s_nop 7"]
    A = lambda ci: 160 + 4*ci
    for ci in range(8):
        for blk in range(2):
            s = S(ci, blk)
            e.append(f"v_cndmask_b32 v{A(ci)+2*blk}, v{s}, v{s+1}, s[46:47]")
            e.append(f"v_cndmask_b32 v{A(ci)+2*blk+1}, v{s+2}, v{s+3}, s[46:47]")
    for ci,(t,h) in enumerate(combos):
        mp = MF if t == 1 else MP
        e.append(f"v_pk_fma_f32 {vr(A(ci),2)}, {vr(A(ci),2)}, s[4:5], {vr(mp,2)} op_sel_hi:[1,0,1]")
        e.append(f"v_pk_fma_f32 {vr(A(ci)+2,2)}, {vr(A(ci)+2,2)}, s[4:5], {vr(MC,2)} op_sel_hi:[1,0,1]")
    MX = 4
    for ci in range(8):
        e.append(f"v_max3_f32 v{MX+ci}, v{A(ci)}, v{A(ci)+1}, v{A(ci)+2}")
    for ci in range(8):
        e.append(f"v_max_f32 v{MX+ci}, v{MX+ci}, v{A(ci)+3}")
    for q in range(2):
        b = MX + 4*q
        e += ["s_nop 0"] if q == 0 else []
        e.append(f"v_permlane32_swap_b32 v{b}, v{b+1}"); e.append(f"v_permlane32_swap_b32 v{b+2}, v{b+3}")
    for q in range(2):
        b = MX + 4*q
        e.append(f"v_max_f32 v{b}, v{b}, v{b+1}"); e.append(f"v_max_f32 v{b+2}, v{b+2}, v{b+3}")
    e.append("s_nop 0")
    for q in range(2):
        b = MX + 4*q
        e.append(f"v_permlane16_swap_b32 v{b}, v{b+2}")
    e.append("s_nop 0")
    for q in range(2):
        b = MX + 4*q
        e.append(f"v_max_f32 v{b}, v{b}, v{b+2}")
    for q in range(2):
        b = MX + 4*q
        e.append(f"v_mov_b32 v{b+1}, v{b}")
    e.append("s_nop 0")
    for q in range(2):
        b = MX + 4*q
        e.append(f"v_permlane32_swap_b32 v{b}, v{b+1}")
    e.append("s_nop 0")
    for q in range(2):
        b = MX + 4*q
        e.append(f"v_mov_b32 v{b+2}, v{b}"); e.append(f"v_mov_b32 v{b+3}, v{b+1}")
    e.append("s_nop 0")
    for q in range(2):
        b = MX + 4*q
        e.append(f"v_permlane16_swap_b32 v{b}, v{b+2}")
        e.append(f"v_permlane16_swap_b32 v{b+1}, v{b+3}")
    e.append("s_nop 0")
    for ci in range(8):
        e.append(f"v_pk_add_f32 {vr(A(ci),2)}, {vr(A(ci),2)}, {vr(MX+ci - (MX+ci)%2,2)} op_sel:[0,{(MX+ci)%2}] op_sel_hi:[1,{(MX+ci)%2}] neg_lo:[0,1] neg_hi:[0,1]")
        e.append(f"v_pk_add_f32 {vr(A(ci)+2,2)}, {vr(A(ci)+2,2)}, {vr(MX+ci - (MX+ci)%2,2)} op_sel:[0,{(MX+ci)%2}] op_sel_hi:[1,{(MX+ci)%2}] neg_lo:[0,1] neg_hi:[0,1]")
    P = lambda ci: ACC + 4*ci
    for ci in range(8):
        for r in range(4): e.append(f"v_exp_f32 v{A(ci)+r}, v{A(ci)+r}")
        if ci > 0:
            c1 = ci - 1
            e += [f"v_cvt_pk_bf16_f32 v12, v{A(c1)}, v{A(c1)+1}", f"v_cvt_pk_bf16_f32 v13, v{A(c1)+2}, v{A(c1)+3}",
                  f"v_perm_b32 v{P(c1)}, v12, v12, v{SEL0}", f"v_perm_b32 v{P(c1)+1}, v12, v12, v{SEL1}",
                  f"v_perm_b32 v{P(c1)+2}, v13, v13, v{SEL0}", f"v_perm_b32 v{P(c1)+3}, v13, v13, v{SEL1}"]
    e.append("s_nop 0")
    e += [f"v_cvt_pk_bf16_f32 v12, v{A(7)}, v{A(7)+1}", f"v_cvt_pk_bf16_f32 v13, v{A(7)+2}, v{A(7)+3}",
          f"v_perm_b32 v{P(7)}, v12, v12, v{SEL0}", f"v_perm_b32 v{P(7)+1}, v12, v12, v{SEL1}",
          f"v_perm_b32 v{P(7)+2}, v13, v13, v{SEL0}", f"v_perm_b32 v{P(7)+3}, v13, v13, v{SEL1}"]
    e.append("s_nop 1")
    O = lambda ci: 128 + 4*ci
    L = lambda ci: 160 + 4*ci
    for ci,(t,h) in enumerate(combos):
        e.append(f"v_mfma_f32_16x16x32_bf16 {vr(O(ci),4)}, {vr(vf(t-1,h),4)}, {vr(P(ci),4)}, 0")
        e.append(f"v_mfma_f32_16x16x32_bf16 {vr(L(ci),4)}, {vr(ONES,4)}, {vr(P(ci),4)}, 0")
    e.append("s_nop 6")
    for ci in range(8): e.append(f"v_rcp_f32 v{MX+ci}, v{L(ci)}")
    e.append("s_nop 0")
    for ci in range(8):
        sel = (MX+ci) % 2; pr = vr(MX+ci - sel, 2)
        e.append(f"v_pk_mul_f32 {vr(O(ci),2)}, {vr(O(ci),2)}, {pr} op_sel:[0,{sel}] op_sel_hi:[1,{sel}]")
        e.append(f"v_pk_mul_f32 {vr(O(ci)+2,2)}, {vr(O(ci)+2,2)}, {pr} op_sel:[0,{sel}] op_sel_hi:[1,{sel}]")
    for t in range(1,5):
        d = 16 + 4*(t-1)
        for h in range(2): e += cv(d + 2*h, O(2*(t-1)+h))
        e.append(f"buffer_store_dwordx4 {vr(d,4)}, v14, s[32:35], s{T6} offen offset:{(t-1)*1024} sc1")
    return e

def att_consts(a):
    a("s_mov_b32 s46, 0xaaaaaaaa"); a("s_mov_b32 s47, 0xaaaaaaaa")
    a("s_mov_b32 s4, 0x3eb8aa3b"); a("s_mov_b32 s5, 0x3eb8aa3b")
    a("v_and_b32 v8, 14, v3"); a("v_lshlrev_b32 v9, 2, v2"); a("v_sub_u32 v8, v8, v9")
    a("v_mov_b32 v9, 0xf149f2ca")
    for dst, blk in ((44, 0), (46, 16)):
        for k in range(2):
            a(f"v_add_u32 v10, {blk - 2*k}, v8")
            a("v_cmp_gt_u32 s[6:7], 15, v10")
            a("s_nop 1")
            a(f"v_cndmask_b32 v{dst+k}, v9, 0, s[6:7]")
    a(f"s_or_b32 s{T0}, s{sRB}, s{sRH}"); a(f"s_cmp_eq_u32 s{T0}, 0"); a("s_cselect_b64 s[6:7], -1, 0")
    for k in range(2): a(f"v_cndmask_b32 v{48+k}, v{46+k}, v9, s[6:7]")
    a("v_mov_b32 v50, 0x0c0c0100"); a("v_mov_b32 v10, 0x01000c0c"); a("v_cndmask_b32 v50, v50, v10, s[46:47]")
    a("v_mov_b32 v51, 0x0c0c0302"); a("v_mov_b32 v10, 0x03020c0c"); a("v_cndmask_b32 v51, v51, v10, s[46:47]")
    for r in range(4): a(f"v_mov_b32 v{52+r}, 0x3f803f80")
    a(f"s_lshl_b32 s{T6}, s{sGRP}, 1"); a(f"s_add_u32 s{T6}, s{T6}, s{sCH}"); a(f"s_mul_i32 s{T6}, s{T6}, {AWS_U}")
    a(f"s_lshl_b32 s{T0}, s{sRB}, 3"); a(f"s_lshl_b32 s{T1}, s{sRH}, 2"); a(f"s_add_u32 s{T0}, s{T0}, s{T1}"); a(f"s_lshl_b32 s{T0}, s{T0}, 10")
    a("v_lshlrev_b32 v14, 4, v1"); a(f"v_add_u32 v14, s{T0}, v14")

def ffn_pairs(m, rr, D):
    e = []
    prs = [ACC + 4*(6*rr + 2*m + hh) + 2*q for hh in range(2) for q in range(2)]
    T = [16 + 2*k for k in range(4)]
    for k in range(4): e.append(f"v_pk_mul_f32 {vr(T[k],2)}, {vr(prs[k],2)}, s[4:5] op_sel_hi:[1,0]")
    for k in range(4):
        e.append(f"v_exp_f32 v{T[k]}, v{T[k]}"); e.append(f"v_exp_f32 v{T[k]+1}, v{T[k]+1}")
    U = [24 + 2*k for k in range(4)]
    for k in range(4): e.append(f"v_pk_fma_f32 {vr(U[k],2)}, {vr(T[k],2)}, 0.5, 1.0 op_sel_hi:[1,0,0]")
    for k in range(4): e.append(f"v_pk_fma_f32 {vr(U[k],2)}, {vr(U[k],2)}, {vr(T[k],2)}, 1.0 op_sel_hi:[1,1,0]")
    for k in range(4):
        e.append(f"v_rcp_f32 v{U[k]}, v{U[k]}"); e.append(f"v_rcp_f32 v{U[k]+1}, v{U[k]+1}")
    for k in range(4): e.append(f"v_pk_fma_f32 {vr(prs[k],2)}, {vr(prs[k],2)}, {vr(U[k],2)}, {vr(prs[k],2)} neg_lo:[1,0,0] neg_hi:[1,0,0]")
    for k in range(4): e.append(f"v_cvt_pk_bf16_f32 v{D+k}, v{prs[k]}, v{prs[k]+1}")
    return e

def ffn_epilogue(nunits):
    e = []
    for m in range(nunits):
        for rr in range(4):
            D = 32 + 4*(rr & 1)
            e += ffn_pairs(m, rr, D)
            e.append(f"buffer_store_dwordx4 {vr(D,4)}, v14, s[32:35], s{T6} offen offset:{rr*1024} sc1")
        e.append(f"s_add_u32 s{T6}, s{T6}, {AWS_U}")
    return e

def ffn_consts(a):
    a(f"s_mov_b32 s4, {LOG2E}"); a(f"s_mov_b32 s5, {LOG2E}")
    a(f"s_mul_i32 s{T6}, s{sCH}, 3"); a(f"s_add_u32 s{T6}, s{T6}, s{sU0}"); a(f"s_add_u32 s{T6}, s{T6}, 16"); a(f"s_mul_i32 s{T6}, s{T6}, {AWS_U}")
    a(f"s_lshl_b32 s{T0}, s{sRB}, 3"); a(f"s_lshl_b32 s{T1}, s{sRH}, 2"); a(f"s_add_u32 s{T0}, s{T0}, s{T1}"); a(f"s_lshl_b32 s{T0}, s{T0}, 10")
    a("v_lshlrev_b32 v14, 4, v1"); a(f"v_add_u32 v14, s{T0}, v14")

def gate_store(a):
    a("v_cmp_eq_u32 s[68:69], 0, v1")
    a("s_nop 1")
    a("s_and_saveexec_b64 s[66:67], s[68:69]")
    a(f"buffer_store_dwordx2 {vr(GR,2)}, v{vGST}, s[36:39], 0 offen sc1")
    a("s_mov_b64 exec, s[66:67]")

NB1 = 9
def weave(a, main, inserts):
    ins = {}
    for p, l in inserts: ins.setdefault(min(p, len(main)-1), []).extend(l)
    for i, x in enumerate(main):
        a(x)
        for y in ins.get(i, []): a(y)

def dma_inserts(dmas, lo, hi):
    out = []
    for k, (m, l) in enumerate(dmas):
        p = int(lo + 2 + k * (hi - lo - 2) / len(dmas))
        out.append((p - 2, m)); out.append((p, l))
    return out

def round1_copy():
    tr = [60, 61, 62, 63]; out = []
    for st in range(NB1):
        if st in (0, 4, 6, 7, 8): out += b_addr(st, tr)
        out += b_reads(st, 16*st, tr)
    return out

def count_vmem(lines): return sum(1 for x in lines if x.startswith("buffer_") or x.startswith("global_"))

def epilogue_with_staging(a, R, e, rest, frac):
    n = len(e)
    p_r1, p_cp0, p_cp1, p_bar = frac[0], int(n*frac[1]), int(n*frac[2]), int(n*frac[3])
    assert count_vmem(e[:p_r1+1]) == 0
    ins = dma_inserts(rest, 0, p_r1)
    later = count_vmem(e[:p_cp0+1])
    ins.append((p_cp0, [f"s_waitcnt vmcnt({later})"]))
    cp = round1_copy()
    for k, x in enumerate(cp): ins.append((p_cp0 + int(k * (p_cp1 - p_cp0) / len(cp)), [x]))
    ins.append((p_bar, ["s_waitcnt lgkmcnt(0)", "s_barrier"]))
    r2 = []
    for st in range(NB1, 16): r2 += b_dma(st)
    k2 = OPT.get(R + "r2", 10)
    ins += dma_inserts(r2[:k2], p_bar + 1, n - 1)
    weave(a, e, ins)
    return r2[k2:]

def phase1_role(a, R):
    a(f"s_lshr_b32 s{T0}, s2, 5"); a(f"s_lshr_b32 s{T1}, s2, 2"); a(f"s_and_b32 s{T1}, s{T1}, 6"); a(f"s_add_u32 s{T0}, s{T0}, s{T1}")
    a(f"s_and_b32 s{T0}, s{T0}, {7 if OPT.get('rot1', 1) else 0}")
    a(f"s_lshl_b32 s{sKX}, s{T0}, 7"); a(f"s_mul_i32 s{sKW}, s{T0}, s{sRS64}")
    if R == "ffn":
        for tt in range(6): a(f"buffer_load_dwordx2 {vr(BIAS+2*tt,2)}, v6, s[24:27], 0 offen offset:{tt*32}")
    late = chunks(capture(late_setup, R))
    pieces = []
    for st in range(2):
        pieces.append(([f"s_mov_b32 s{sPRV}, {st*STAGE}"], []))
        pieces += h1(R, sPRV) + h2(R, sPRV, sKW)
        pieces.append((adv_k(), []))
    gl = [f"buffer_load_dwordx4 {vr(GX,4)}, v4, s[16:19], 0 offen", f"buffer_load_dwordx4 {vr(GX+4,4)}, v4, s[16:19], 0 offen offset:1024",
          f"buffer_load_dwordx4 {vr(GW,4)}, v5, s[28:31], 0 offen"]
    nload = sum(1 for m, l in pieces if l); per = -(-len(late) // (nload - 2)); k = 0; seen = 0
    for m, l in pieces:
        for x in m: a(x)
        if l:
            a("s_nop 0")
            for x in l: a(x)
            seen += 1
            if seen == 2:
                for x in gl: a(x)
            if seen >= 2:
                for ch in late[k:k+per]:
                    for x in ch: a(x)
                k += per
    for ch in late[k:]:
        for x in ch: a(x)
    stamp(a, 2)
    a(f"s_mov_b32 s{sCUR}, 0"); a(f"s_mov_b32 s{sNXT}, {STAGE}"); a(f"s_mov_b32 s{sPRV}, {2*STAGE}")
    for x in addr_set(R, 0, sCUR) + addr_set(R, 1, sCUR): a(x)
    nst = 10
    if R == "ffn":
        a(f"s_waitcnt vmcnt({2*nst + 3})")
        for tt in range(6):
            for q in range(2):
                a(f"v_lshlrev_b32 v{bias_reg(tt,2*q)}, 16, v{BIAS+2*tt+q}")
                a(f"v_and_b32 v{bias_reg(tt,2*q+1)}, 0xffff0000, v{BIAS+2*tt+q}")
    a(f"s_waitcnt vmcnt({nst})")
    a("s_barrier")
    stamp(a, 3)
    for x in p1_reads(R, 0, 0): a(x)
    a("s_waitcnt lgkmcnt(0)")
    istamp(a, 1)
    adv0 = [adv_k()]
    body(a, R, h1(R, sPRV) + h2(R, sPRV, sKW), h1(R, sCUR), 10, first=True, tail1=adv0)
    if OPT.get("iter"):
        for it in range(1, 5):
            istamp(a, 1 + it)
            body(a, R, h2(R, sPRV), h1(R, sCUR), 10)
    else:
        a(f"s_mov_b32 s{sLOOP}, 1")
        a.label(f"L{R}_loop")
        body(a, R, h2(R, sPRV), h1(R, sCUR), 10, loop=(f"L{R}_loop", 5))
    istamp(a, 6)
    bd = []
    for st in range(NB1): bd += b_dma(st)
    n = OPT.get("bper", 6)
    assert 4*n <= 24 and 3*n <= 24 and 2*n <= 16
    body(a, R, h2(R, sPRV), [], 10, dx2=bd[:n])
    g = gate_instrs()
    istamp(a, 7)
    body(a, R, [], [], 2*n, x1=g[:22], x2=g[22:], dx1=bd[n:2*n], dx2=bd[2*n:3*n])
    fl = chunks(capture(att_consts if R == "att" else ffn_consts))
    istamp(a, 8)
    n7 = OPT.get("b7", 8)
    body(a, R, [], [], 0, last=True, x1=fl, dx1=bd[3*n:4*n], dx2=bd[4*n:4*n+n7])
    rest = bd[4*n+n7:]
    istamp(a, 9)
    stamp(a, 4)
    a.nop(8)
    early = OPT.get("early", 0)
    if R == "att":
        if early:
            left = epilogue_with_staging(a, R, att_epilogue(), rest, (40, 0.34, 0.56, 0.58))
            emit_pairs(a, left)
        else:
            weave(a, att_epilogue(), dma_inserts(rest, 0, 40))
    else:
        e = ffn_epilogue(3); k = 2*len(e)//3
        if early: left = epilogue_with_staging(a, R, e[:k], rest, (30, 0.36, 0.58, 0.60))
        else:
            weave(a, e[:k], dma_inserts(rest, 0, 30)); left = []
        a(f"s_cmp_ge_u32 s{sGRP}, 3"); a(f"s_cselect_b32 s{T0}, s{sCH}, 0"); a(f"s_cmp_eq_u32 s{T0}, 1"); a("s_cbranch_scc1 Lffn_two")
        weave(a, e[k:], dma_inserts(left, 0, len(e) - k - 1) if left else [])
        a("s_branch Lffn_done")
        a.label("Lffn_two")
        emit_pairs(a, left)
        a.label("Lffn_done")
    gate_store(a)
    p2_pre(a)
    istamp(a, 10)
    stamp(a, 5)
    a("s_waitcnt vmcnt(0)")
    a("s_barrier")
    a(f"s_cmp_eq_u32 s{sW_}, 0"); a(f"s_cbranch_scc0 L{R}_nosig")
    a(f"s_lshl_b32 s{T0}, s{sRB}, 4"); a(f"v_mov_b32 v4, s{T0}"); a("v_mov_b32 v5, 1")
    a("v_cmp_eq_u32 s[68:69], 0, v1"); a("s_nop 1"); a("s_and_saveexec_b64 s[66:67], s[68:69]")
    a("global_atomic_add v4, v5, s[50:51] sc1")
    a("s_mov_b64 exec, s[66:67]")
    a.label(f"L{R}_nosig")
    stamp(a, 6)
    if R == "att": a("s_branch Lphase2")

JR = [2, 3, 14, 15]
def p2_pre(a):
    for x in b_addr(NB1, JR): a(x)
    a(f"v_mov_b32 v0, v{vOUT}")
    a("v_lshlrev_b32 v4, 4, v1"); a(f"s_lshl_b32 s{T1}, s{sRB2}, 12")
    for tau in range(4):
        a(f"s_add_u32 s{T0}, s{sW_}, {tau}"); a(f"s_and_b32 s{T0}, s{T0}, 3"); a(f"s_lshl_b32 s{T0}, s{T0}, 10"); a(f"s_add_u32 s{T0}, s{T0}, s{T1}")
        a(f"v_add_u32 v{8+tau}, s{T0}, v4")
    srd(a, 16, 48, 2048*1024)

def late_setup(a, R):
    a("v_lshrrev_b32 v7, 1, v3")
    a(f"s_lshl_b32 s{T0}, s{sRH}, 13")
    for h in range(2):
        a(f"v_or_b32 v8, {4*h}, v2"); a("v_xor_b32 v8, v8, v7"); a("v_lshlrev_b32 v8, 4, v8")
        a("v_lshl_add_u32 v8, v3, 7, v8"); a(f"v_add_u32 v{XB+h}, s{T0}, v8")
    a("v_bfe_u32 v7, v1, 2, 2"); a("v_and_b32 v8, 3, v1")
    a("v_lshl_add_u32 v9, v2, 3, v7"); a("v_lshlrev_b32 v9, 7, v9")
    a("v_and_b32 v10, 1, v8"); a("v_lshl_add_u32 v9, v10, 3, v9")
    a("v_and_b32 v10, 2, v7"); a("v_and_b32 v11, 1, v2"); a("v_lshl_or_b32 v10, v11, 2, v10")
    a("v_lshrrev_b32 v11, 1, v8"); a("v_xor_b32 v10, v10, v11")
    if R == "att":
        for t in range(2):
            a(f"s_lshl_b32 s{T0}, s{sCH}, 2"); a(f"s_add_u32 s{T0}, s{T0}, {2*t}")
            a(f"v_xor_b32 v11, s{T0}, v10"); a("v_lshl_add_u32 v11, v11, 4, v9"); a(f"v_add_u32 v{WB+t}, {WOFF}, v11")
    else:
        for t in range(6):
            a(f"s_mul_i32 s{T0}, s{sCH}, 6"); a(f"s_add_u32 s{T0}, s{T0}, {t}")
            a(f"s_lshr_b32 s{T1}, s{T0}, 2"); a(f"s_and_b32 s{T0}, s{T0}, 3"); a(f"s_lshl_b32 s{T0}, s{T0}, 1")
            a(f"s_lshl_b32 s{T1}, s{T1}, 13"); a(f"s_add_u32 s{T1}, s{T1}, {WOFF}")
            a(f"v_xor_b32 v11, s{T0}, v10"); a("v_lshl_add_u32 v11, v11, 4, v9"); a(f"v_add_u32 v{WB+t}, s{T1}, v11")
    srd(a, 32, 10, 59*AWS_U)
    a(f"s_add_u32 s36, s10, {G_OFF}"); a("s_addc_u32 s37, s11, 0"); a("s_and_b32 s37, s37, 0xffff")
    a("s_mov_b32 s38, 8192"); a("s_mov_b32 s39, 0x00020000")
    p2_scalar_setup(a)
    a("v_lshrrev_b32 v7, 3, v1"); a("v_and_b32 v8, 7, v1"); a("v_lshlrev_b32 v9, 1, v2"); a("v_xor_b32 v8, v8, v9")
    a("v_lshlrev_b32 v8, 4, v8"); a("v_lshl_add_u32 v7, v7, 10, v8"); a(f"s_lshl_b32 s{T0}, s{sCT2}, 7"); a(f"v_add_u32 v{vBD}, s{T0}, v7")
    a("v_bfe_u32 v7, v1, 2, 2"); a("v_and_b32 v8, 3, v1")
    a("v_lshl_add_u32 v9, v2, 2, v7"); a("v_bfe_u32 v10, v9, 1, 2"); a("v_lshlrev_b32 v10, 1, v10")
    a("v_lshlrev_b32 v9, 7, v9"); a("v_and_b32 v11, 1, v8"); a("v_lshl_add_u32 v9, v11, 3, v9")
    a("v_lshrrev_b32 v11, 1, v8"); a("v_xor_b32 v10, v10, v11")
    for c in range(4):
        a(f"v_xor_b32 v11, {2*c}, v10"); a(f"v_lshl_add_u32 v{vBF+c}, v11, 4, v9")
    a(f"s_lshl_b32 s{T0}, s{sRB2}, 2"); a(f"s_add_u32 s{T0}, s{T0}, s{sW_}"); a(f"s_lshl_b32 s{T0}, s{T0}, 6")
    a("v_lshlrev_b32 v7, 2, v3"); a(f"v_add_u32 v{vGRD}, s{T0}, v7")
    a(f"s_lshl_b32 s{T0}, s{T0}, 8"); a(f"s_lshl_b32 s{T1}, s{sCT2}, 7"); a(f"s_add_u32 s{T0}, s{T0}, s{T1}")
    a("v_and_b32 v7, 1, v2"); a("v_lshlrev_b32 v7, 5, v7"); a("v_lshrrev_b32 v8, 1, v2"); a("v_lshl_add_u32 v7, v8, 4, v7")
    a("v_lshl_add_u32 v7, v3, 10, v7"); a(f"v_add_u32 v{vOUT}, s{T0}, v7")

RED = 114688
def phase2(a):
    ACC2, AR, NR, DEP = 16, 80, 6, 4
    JIT = [144, 160]
    a.label("Lphase2")
    if not OPT.get("early", 0):
        for x in round1_copy(): a(x)
        a("s_waitcnt lgkmcnt(0)")
        a("s_barrier")
        for st in range(NB1, 16): emit_pairs(a, b_dma(st))
    a(f"s_cmp_eq_u32 s{sW_}, 0"); a("s_cbranch_scc0 Lp2_go")
    a(f"s_lshr_b32 s{T0}, s{sRB2}, 1"); a(f"s_lshl_b32 s{T0}, s{T0}, 4"); a(f"v_mov_b32 v5, s{T0}")
    a(f"s_mov_b32 s{T1}, 0")
    a.label("Lp2_poll")
    a("global_load_dword v6, v5, s[50:51] sc1")
    a(f"s_add_u32 s{T1}, s{T1}, 1")
    a("s_waitcnt vmcnt(0)")
    a("v_readfirstlane_b32 s68, v6")
    a(f"s_cmp_gt_u32 s{T1}, 0x200000"); a("s_cbranch_scc1 Lp2_go")
    a("s_cmp_ge_u32 s68, 16"); a("s_cbranch_scc1 Lp2_go")
    a("s_sleep 1"); a("s_branch Lp2_poll")
    a.label("Lp2_go")
    a("s_barrier")
    stamp(a, 7)
    def loadA(step):
        return [f"buffer_load_dwordx4 {vr(AR+16*(step%NR)+4*tau,4)}, v{8+tau}, s[28:31], s{T0 + (step & 1)} offen sc1" for tau in (1, 2, 3, 0)]
    a(f"buffer_load_dword v12, v{vGRD}, s[36:39], 0 offen sc1")
    for st in range(DEP):
        for x in next_step(sUA, T0 + (st & 1), 17, st): a(x)
        for x in loadA(st): a(x)
    NS = 16
    pre = []
    pre.append(["v_lshlrev_b32 v4, 4, v1", f"v_add_u32 v4, {RED}, v4"])
    for tau in range(1, 4):
        pre.append([f"s_add_u32 s{T2}, s{sW_}, {tau}", f"s_and_b32 s{T2}, s{T2}, 3", f"s_mul_i32 s{T2}, s{T2}, 12288", f"v_add_u32 v{175+tau}, s{T2}, v4"])
    pre.append([f"s_mul_i32 s{T2}, s{sW_}, 12288", f"v_add_u32 v179, s{T2}, v4"])
    pre.append(["v_sub_f32 v13, 1.0, v12"])
    for k in range(4):
        pre.append([f"s_sub_u32 s{T2}, s{sW_}, {k}", f"s_and_b32 s{T2}, s{T2}, 3", f"s_cmp_eq_u32 s{T2}, 0", "s_cselect_b64 s[68:69], -1, 0",
                    f"v_cndmask_b32 v{180+k}, v13, v12, s[68:69]"])
    for st in range(NS):
        younger = min(st + DEP - 1, NS - 1) - st
        a(f"s_waitcnt vmcnt({4*younger})" + (" lgkmcnt(0)" if st >= NB1 else ""))
        if st == 0: stamp(a, 8)
        bsrc = 16*st if st < NB1 else JIT[(st - NB1) & 1]
        mf = []
        for tau in (1, 2, 3, 0):
            for c in range(4):
                d = ACC2 + 4*(4*tau + c)
                C = vr(d,4) if st > 0 else "0"
                mf.append(f"v_mfma_f32_16x16x32_bf16 {vr(d,4)}, {ar(bsrc+4*c,4)}, {vr(AR+16*(st%NR)+4*tau,4)}, {C}")
        nxt = st + 1
        rd = b_reads(nxt, JIT[(nxt - NB1) & 1], JR) if NB1 <= nxt < NS else []
        after = [[] for _ in mf]
        for k, x in enumerate(rd): after[k].append(x)
        if st + DEP < NS:
            after[0] += next_step(sUA, T0 + ((st+DEP) & 1), 17, st + DEP)
            for k, x in enumerate(loadA(st + DEP)): after[1 + 4*k].append(x)
        if 1 <= st <= 5:
            for k, ch in enumerate(pre[2*(st-1):2*st]): after[3 + 6*k] += ch
        if st == NS - 1:
            for tau in (1, 2):
                for c in range(4):
                    after[min(4*tau + 4 + c, 15)].append(f"ds_write_b128 v{175+tau}, {vr(ACC2+4*(4*tau+c),4)} offset:{(tau-1)*4096 + c*1024}")
        for m, f in zip(mf, after):
            a(m)
            for x in f: a(x)
    stamp(a, 9)
    a.nop(2)
    for c in range(4):
        a(f"ds_write_b128 v178, {vr(ACC2+4*(12+c),4)} offset:{2*4096 + c*1024}")
    for r in range(0, 16, 2): a(f"v_pk_mul_f32 {vr(ACC2+r,2)}, {vr(ACC2+r,2)}, {vr(180,2)} op_sel_hi:[1,0]")
    a("s_waitcnt lgkmcnt(0)"); a("s_barrier")
    R = 80
    for pos in range(3):
        for c in range(4):
            a(f"ds_read_b128 {vr(R+16*pos+4*c,4)}, v179 offset:{pos*4096 + c*1024}")
    for pos in range(3):
        a(f"s_waitcnt lgkmcnt({8 - 4*pos})")
        f = 181 + pos; pr = vr(f - f % 2, 2); sel = f % 2
        for r in range(0, 16, 2):
            a(f"v_pk_fma_f32 {vr(ACC2+r,2)}, {vr(R+16*pos+r,2)}, {pr}, {vr(ACC2+r,2)} op_sel:[0,{sel},0] op_sel_hi:[1,{sel},1]")
    for c in range(4):
        a(f"v_cvt_pk_bf16_f32 v{32+2*c}, v{ACC2+4*c}, v{ACC2+4*c+1}"); a(f"v_cvt_pk_bf16_f32 v{33+2*c}, v{ACC2+4*c+2}, v{ACC2+4*c+3}")
    a("s_nop 1")
    for p in range(2):
        b = 32 + 4*p
        a(f"v_permlane16_swap_b32 v{b}, v{b+2}"); a(f"v_permlane16_swap_b32 v{b+1}, v{b+3}")
    for p in range(2):
        a(f"buffer_store_dwordx4 {vr(32+4*p,4)}, v0, s[16:19], 0 offen offset:{64*p}")
    stamp(a, 10)

def kernel():
    a = Asm()
    a(f".globl {KNAME}"); a(".p2align 8"); a(f".type {KNAME},@function"); a.label(KNAME)
    a("s_cmp_ge_u32 s2, 256"); a("s_cbranch_scc1 Lend")
    stamp(a, 0)
    a("s_load_dwordx4 s[4:7], s[0:1], 0")
    a("s_load_dwordx4 s[12:15], s[0:1], 32")
    a("s_load_dwordx4 s[44:47], s[0:1], 48")
    a("s_load_dwordx2 s[8:9], s[0:1], 16")
    a("s_load_dwordx4 s[48:51], s[0:1], 64")
    a("s_load_dwordx2 s[10:11], s[0:1], 80")
    a("v_and_b32 v1, 63, v0"); a("v_lshrrev_b32 v4, 6, v0"); a("v_lshrrev_b32 v2, 4, v1"); a("v_and_b32 v3, 15, v1")
    a(f"v_readfirstlane_b32 s{sW_}, v4")
    a(f"s_and_b32 s{T0}, s2, 7"); a(f"s_lshr_b32 s{T1}, s2, 3")
    a(f"s_lshr_b32 s{T2}, s{T0}, 2"); a(f"s_and_b32 s{T3}, s{T0}, 3")
    a(f"s_lshl_b32 s{sRB}, s{T2}, 3"); a(f"s_lshr_b32 s{T4}, s{T1}, 2"); a(f"s_add_u32 s{sRB}, s{sRB}, s{T4}")
    a(f"s_and_b32 s{T4}, s{T1}, 3"); a(f"s_lshr_b32 s{sTYPE}, s{T4}, 1")
    a(f"s_lshl_b32 s{sGRP}, s{T3}, 1"); a(f"s_and_b32 s{T4}, s{T4}, 1"); a(f"s_add_u32 s{sGRP}, s{sGRP}, s{T4}")
    a(f"s_lshr_b32 s{sRH}, s{sW_}, 1"); a(f"s_and_b32 s{sCH}, s{sW_}, 1")
    a(f"s_mul_i32 s{sU0}, s{sGRP}, 6"); a(f"s_mul_i32 s{T0}, s{sGRP}, 5"); a(f"s_add_u32 s{T0}, s{T0}, 3")
    a(f"s_cmp_le_u32 s{sGRP}, 3"); a(f"s_cselect_b32 s{sU0}, s{sU0}, s{T0}")
    a(f"s_lshl_b32 s{T0}, s{sGRP}, 7"); a(f"s_lshl_b32 s{T1}, s{sU0}, 6"); a(f"s_lshl_b32 s{T5}, s{sRB}, 17")
    a(f"s_cmp_eq_u32 s{sTYPE}, 0")
    a(f"s_cselect_b32 s{T4}, s{T0}, s{T1}")
    a(f"s_movk_i32 s{T0}, 2752"); a(f"s_cselect_b32 s{T2}, 3072, s{T0}"); a(f"s_movk_i32 s{T0}, 128"); a(f"s_cselect_b32 s{T3}, 1024, s{T0}")
    a(f"s_cselect_b32 s{T0}, 16384, 0"); a(f"s_sub_u32 s{T5}, s{T5}, s{T0}")
    a(f"s_lshl_b32 s{sRS64}, s{T2}, 6")
    a(f"s_lshl_b32 s{sXD}, s{sW_}, 12"); a(f"s_add_u32 s{sXE}, s{sW_}, 16"); a(f"s_lshl_b32 s{sXE}, s{sXE}, 10")
    a(f"s_mul_i32 s{sWD}, s{sW_}, 6144"); a(f"s_add_u32 s{sWD}, s{sWD}, {WOFF}")
    a("v_lshrrev_b32 v4, 3, v1"); a("v_and_b32 v5, 7, v1"); a("v_xor_b32 v6, v5, v2")
    a("v_lshlrev_b32 v7, 10, v4"); a("v_lshl_add_u32 v8, v6, 4, v7"); a("v_xor_b32 v9, 64, v8")
    a(f"s_lshl_b32 s{T0}, s{sW_}, 15"); a(f"s_add_u32 s{T0}, s{T0}, s{T5}")
    a(f"s_cmp_lt_i32 s{T0}, 0"); a(f"s_cselect_b32 s{T1}, 16384, 0"); a(f"s_add_u32 s{T1}, s{T1}, s{T0}")
    for j in range(4):
        src = T1 if j < 2 else T0
        a(f"s_add_u32 s{T6}, s{src}, {8192*j}"); a(f"v_add_u32 v{XO+j}, s{T6}, v{8 + (j&1)}")
    a(f"s_lshl_b32 s{T0}, s{sW_}, 13"); a(f"s_add_u32 s{T0}, s{T0}, s{T5}"); a(f"s_add_u32 s{T0}, s{T0}, {128*1024}")
    a(f"s_and_b32 s{T1}, s{sW_}, 1"); a(f"s_lshl_b32 s{T1}, s{T1}, 6"); a(f"v_xor_b32 v10, s{T1}, v8"); a(f"v_add_u32 v{XO+4}, s{T0}, v10")
    a(f"v_mul_lo_u32 v7, s{T2}, v4")
    a("v_and_b32 v8, 1, v2"); a("v_lshlrev_b32 v8, 1, v8"); a("v_xor_b32 v8, v8, v5")
    a("v_xor_b32 v9, 4, v8")
    a("v_cmp_le_u32 s[44:45], 4, v8") if False else None
    a("v_lshl_add_u32 v10, v8, 4, v7"); a("v_lshl_add_u32 v11, v9, 4, v7")
    a(f"s_cmp_ge_u32 s{sGRP}, 3"); a(f"s_cselect_b32 s{T0}, s{sTYPE}, 0")
    a(f"s_lshl_b32 s{T0}, s{T0}, 30")
    a("v_lshrrev_b32 v12, 2, v8"); a(f"v_mul_lo_u32 v12, s{T0}, v12"); a(f"v_xor_b32 v13, s{T0}, v12")
    for j in range(6):
        a(f"s_mul_i32 s{T0}, s{sW_}, 6"); a(f"s_add_u32 s{T0}, s{T0}, {j}")
        a(f"s_lshr_b32 s{T1}, s{T0}, 3"); a(f"s_and_b32 s{T0}, s{T0}, 7")
        a(f"s_mul_i32 s{T5}, s{T1}, s{T3}"); a(f"s_add_u32 s{T5}, s{T5}, s{T4}")
        a(f"s_mul_i32 s{T6}, s{T0}, s{T2}"); a(f"s_lshl_b32 s{T6}, s{T6}, 3"); a(f"s_add_u32 s{T5}, s{T5}, s{T6}")
        a(f"v_add_u32 v{WO+j}, s{T5}, v{10 + (j&1)}")
        if j >= 4 or True:
            a(f"s_cmp_eq_u32 s{T1}, 2"); a(f"s_cselect_b64 s[16:17], -1, 0")
            a(f"v_cndmask_b32 v14, 0, v{12 + (j&1)}, s[16:17]"); a(f"v_add_u32 v{WO+j}, v{WO+j}, v14")
    a(f"s_lshl_b32 s{T0}, s{sTYPE}, 3"); a(f"s_add_u32 s{T0}, s{T0}, s{sGRP}"); a(f"s_lshl_b32 s{T0}, s{T0}, 3")
    a(f"s_lshl_b32 s{T1}, s{sRB}, 7"); a(f"s_add_u32 s{T0}, s{T0}, s{T1}"); a(f"s_lshl_b32 s{T1}, s{sW_}, 1"); a(f"s_add_u32 s{T0}, s{T0}, s{T1}")
    a(f"s_lshl_b32 s{T1}, s{T0}, 10"); a(f"s_lshl_b32 s{T0}, s{T0}, 2")
    a("v_lshlrev_b32 v5, 4, v1"); a(f"v_add_u32 v4, s{T1}, v5"); a(f"v_mov_b32 v{vGST}, s{T0}")
    a(f"s_lshl_b32 s{T0}, s{sU0}, 6"); a(f"s_mul_i32 s{T1}, s{sCH}, 192"); a(f"s_add_u32 s{T0}, s{T0}, s{T1}")
    a("v_lshlrev_b32 v6, 3, v2"); a(f"v_add_u32 v6, s{T0}, v6")
    a("s_waitcnt lgkmcnt(0)")
    stamp(a, 1)
    srd(a, 16, 4, 2048*1024)
    a(f"s_cmp_eq_u32 s{sTYPE}, 0")
    a("s_cselect_b32 s20, s6, s12"); a("s_cselect_b32 s21, s7, s13"); a(f"s_mov_b32 s22, {512*2752}"); a(f"s_cselect_b32 s22, {512*3072}, s22")
    a("s_and_b32 s21, s21, 0xffff"); a("s_mov_b32 s23, 0x00020000")
    srd(a, 24, 14, 2752); srd(a, 28, 46, 1024)
    a(f"s_cmp_eq_u32 s{sTYPE}, 0"); a("s_cbranch_scc0 Lffn")
    phase1_role(a, "att")
    a.label("Lffn")
    phase1_role(a, "ffn")
    phase2(a)
    stamp_flush(a)
    a.label("Lend")
    a("s_endpgm")
    return a.text()

def main(out):
    t = kernel()
    src = "; Single launch: phase 1 (QKV projection + windowed attention | FFN1 + mish, gate), per-row-block counters in d_debug,\n"
    src += "; phase 2 (output projection of both branches, blended by the gate).\n"
    src += f"; @launch grid=(256,1,1) block=(256,1,1) lds={LDS_BYTES}\n"
    src += '.amdgcn_target "amdgcn-amd-amdhsa--gfx950"\n.text\n' + t + kd(KNAME, 512, 256)
    open(out, "w").write(src)

if __name__ == "__main__":
    if "--instr" in sys.argv: INSTR = True; sys.argv.remove("--instr")
    for x in list(sys.argv):
        if x.startswith("--"):
            sys.argv.remove(x); k, _, v = x[2:].partition("="); OPT[k] = int(v) if v else 1
    main(sys.argv[1] if len(sys.argv) > 1 else "cdna_kernels/" + NAME + ".s")
```

```python
import sys
from asmlib import *

NAME = "gated_mix__sliding_local_dilated__dense_activation_mish__prompt"
KNAME = NAME + "_kernel"
LOG2E = 0x3fb8aa3b
STAGE = 43008
WOFF = 18432
AWS_U = 131072
G_OFF = 8 << 20
LDS_BYTES = 163840
GA, GB, GC, GC2, R2 = 86016, 0, 43008, 86016 + 16*4096, 28672
INSTR = False
OPT = {}
STAMP_OFF = 16 << 20
NST = 12

sW_, sRB, sTYPE, sGRP = 40, 41, 42, 43
sRH, sCH, sBUF, sFREE, sXD, sXE, sWD, sKX, sKW, sKW2, sRS64, sIT, sU0 = range(52, 65)
T0, T1, T2, T3, T4, T5, T6 = range(65, 72)
XO, WO, XB, WB, XA, WA = 16, 21, 27, 29, 35, 37
WA1 = 208
GX, GW, GR, BIAS = 44, 52, 56, 58
vFLG, vCLR = 94, 95
FLAG_OFF = 16384
vGST, vBD, vBF, vAO, vGRD, vOUT = 86, 87, 88, 208, 92, 93
ACC = 96
BF32 = 70
SET = [0, 44]

def srd(a, s, ptr, size):
    a(f"s_mov_b32 s{s}, s{ptr}")
    a(f"s_and_b32 s{s+1}, s{ptr+1}, 0xffff")
    a(f"s_mov_b32 s{s+2}, {size}")
    a(f"s_mov_b32 s{s+3}, 0x00020000")

def istamp(a, k):
    if INSTR and OPT.get("iter"): a(f"{'s_memtime' if OPT.get('cyc') else 's_memrealtime'} s[{72+2*k}:{73+2*k}]")
def stamp(a, k):
    if OPT.get("iter") and k not in (0, NST-1): return
    if INSTR: a(f"{'s_memtime' if OPT.get('cyc') else 's_memrealtime'} s[{72+2*k}:{73+2*k}]")
def stamp_flush_dbg(a):
    a("s_waitcnt vmcnt(0) lgkmcnt(0)")
    stamp(a, NST-1)
    a("s_waitcnt lgkmcnt(0)")
    a(f"s_cmp_eq_u32 s{sW_}, 0"); a("s_cbranch_scc0 Ldbg_done")
    a("v_cmp_eq_u32 vcc, 0, v1"); a("s_and_saveexec_b64 s[28:29], vcc")
    slots = [1,2,3,5,6,7,9,10,11,13,14,15]
    order = [0, 0, 1, 3, 4, 5, 6, 7, 8, 9, 10, 11]
    for k, (sl, stp) in enumerate(zip(slots, order)):
        a(f"v_mov_b32 v2, s{72+2*stp}")
        if k == 0: a("v_not_b32 v2, v2")
        a(f"v_mov_b32 v3, {4*sl}")
        a("global_atomic_umax v3, v2, s[50:51]")
    a("s_mov_b64 exec, s[28:29]")
    a.label("Ldbg_done")
def stamp_flush(a):
    if not INSTR: return
    if OPT.get("dbg"): return stamp_flush_dbg(a)
    a("s_waitcnt vmcnt(0) lgkmcnt(0)")
    stamp(a, NST-1)
    a("s_waitcnt lgkmcnt(0)")
    a(f"s_add_u32 s24, s10, {STAMP_OFF}"); a("s_addc_u32 s25, s11, 0"); a("s_and_b32 s25, s25, 0xffff")
    a("s_mov_b32 s26, 65536"); a("s_mov_b32 s27, 0x00020000")
    a(f"s_lshl_b32 s{T0}, s2, 8"); a(f"s_lshl_b32 s{T1}, s{sW_}, 6"); a(f"s_add_u32 s{T0}, s{T0}, s{T1}")
    a(f"v_mov_b32 v0, s{T0}")
    a("v_cmp_eq_u32 vcc, 0, v1"); a("s_and_saveexec_b64 s[28:29], vcc")
    for k in range(NST):
        a(f"v_mov_b32 v2, s{72+2*k}"); a(f"buffer_store_dword v2, v0, s[24:27], 0 offen offset:{4*k}")
    a("s_mov_b64 exec, s[28:29]")

def bias_reg(ct, r):
    k = 4*ct + r
    return (BF32 + k) if k < 16 else (8 + k - 16)

def p1_reads(role, st, h):
    base = SET[st]
    nx = 5 if role == "att" else 4
    w = []
    for tt in range(6):
        off = h * 4096 + ((tt >> 1) * 8192 if role == "att" else 0)
        r = base + 20 + 4 * tt; ad = (WA if h == 0 else WA1) + (tt & 1 if role == "att" else tt)
        w.append(f"ds_read_b64_tr_b16 {ar(r,2)}, v{ad} offset:{off}")
        w.append(f"ds_read_b64_tr_b16 {ar(r+2,2)}, v{ad} offset:{off+512}")
    x = [f"ds_read_b128 {ar(base+4*t,4)}, v{XA+h} offset:{t*2048}" for t in range(nx)]
    if role == "att":
        return [w[4], w[5], x[0], x[1], x[2], w[6], w[7], x[3], x[4], w[0], w[1], w[2], w[3]] + w[8:]
    return [w[0], w[1], x[0], x[1], x[2], x[3]] + w[2:]

def p1_mfmas(role, st, first=False):
    base = SET[st]; X = lambda t: ar(base + 4*t, 4); W = lambda t: ar(base + 20 + 4*t, 4)
    out = []
    def m(c, A, B, cin=None):
        C = vr(c,4) if not first else cin
        out.append(f"v_mfma_f32_16x16x32_bf16 {vr(c,4)}, {A}, {B}, {C}")
    if role == "att":
        for a_ in range(2):
            for t in range(5): m(ACC + 4*(8 + 2*t + a_), W(2+a_), X(t), "0")
        for a_ in range(2):
            for t in range(1, 5): m(ACC + 4*(2*(t-1) + a_), W(a_), X(t), "0")
        for a_ in range(2):
            for t in range(5): m(ACC + 4*(18 + 2*t + a_), X(t), W(4+a_), "0")
    else:
        for ct in range(6):
            for rt in range(4): m(ACC + 4*(6*rt + ct), W(ct), X(rt), vr(bias_reg(ct,0), 4))
    return out

def dma_x(role, bufreg):
    g = []
    if role == "att":
        g.append(([f"s_add_u32 m0, s{bufreg}, s{sXE}"],
                  [f"s_cmp_lt_u32 s{sW_}, 2", "s_cbranch_scc0 1f", f"buffer_load_dwordx4 v{XO+4}, s[16:19], s{sKX} offen lds", "1:"]))
    for j in range(4):
        m = f"s_add_u32 m0, s{bufreg}, s{sXD}" if j == 0 else "s_add_u32 m0, m0, 1024"
        g.append(([m], [f"buffer_load_dwordx4 v{XO+j}, s[16:19], s{sKX} offen lds"]))
    return g
def dma_w(bufreg, js, sw):
    g = []
    for k, j in enumerate(js):
        if k == 0: m = [f"s_add_u32 m0, s{bufreg}, s{sWD}"] + ([f"s_add_u32 m0, m0, {1024*j}"] if j else [])
        else: m = ["s_add_u32 m0, m0, 1024"]
        g.append((m, [f"buffer_load_dwordx4 v{WO+j}, s[20:23], s{sw} offen lds"]))
    return g
def h1(role, buf): return dma_x(role, buf) + dma_w(buf, [0], sKW)
def h2(role, buf, sw=None): return dma_w(buf, [1,2,3,4,5], sKW2 if sw is None else sw)

SCC_READ = ("s_cselect", "s_cbranch_scc", "s_addc", "s_subb")
SCC_WRITE = ("s_cmp", "s_add_u32", "s_sub_u32", "s_addc", "s_subb", "s_and_b", "s_or_b", "s_xor_b", "s_lshl_b", "s_lshr_b", "s_bitcmp", "s_add_i32")
def chunks(lines):
    n = len(lines); live = [False]*(n+1)
    for i in range(n-1, -1, -1):
        x = lines[i]
        if x.startswith(SCC_READ): live[i] = True
        elif x.startswith(SCC_WRITE): live[i] = False
        else: live[i] = live[i+1]
    out = []
    for i, x in enumerate(lines):
        if out and live[i]: out[-1].append(x)
        else: out.append([x])
    return out
def capture(fn, *args):
    t = Asm(); fn(t, *args); return [x.strip() for x in t.L]

def emit_pairs(a, pairs):
    for m, l in pairs:
        for x in m: a(x)
        a("s_nop 0")
        for x in l: a(x)

def schedule(mf, reads, dmas, extra=(), dma_first=2, read_span=20, xspan=None, tail=()):
    n = len(mf); after = [[] for _ in range(n)]
    if dmas:
        step = (n - dma_first) / len(dmas)
        for k, (m, l) in enumerate(dmas):
            p = int(dma_first + k * step)
            after[max(p-1, 0)] += m
            after[p] += l
    for k, r in enumerate(reads):
        after[min(int(k * read_span / len(reads)), n-1)].insert(0, r)
    for k, x in enumerate(extra):
        lo, hi = xspan or (0, n)
        after[min(int(lo + k * (hi - lo) / len(extra)), n-1)] += (x if isinstance(x, list) else [x])
    for k, x in enumerate(tail):
        after[n - len(tail) - 1 + k] += (x if isinstance(x, list) else [x])
    out = []
    for i in range(n):
        out.append(mf[i]); out += after[i]
    return out

sPRV, sCUR, sNXT = sFREE, sBUF, sIT + 0
sNXT = 63
def addr_set(role, h, sreg):
    n = 2 if role == "att" else 6
    w = WA if h == 0 else WA1
    return [f"v_add_u32 v{XA+h}, s{sreg}, v{XB+h}"] + [f"v_add_u32 v{w+t}, s{sreg}, v{WB+t}" for t in range(n)]
def rot_instrs():
    return [[f"s_mov_b32 s{T0}, s{sPRV}", f"s_mov_b32 s{sPRV}, s{sCUR}"], [f"s_mov_b32 s{sCUR}, s{sNXT}", f"s_mov_b32 s{sNXT}, s{T0}"]]
def adv_k():
    return [f"s_add_u32 s{sKX}, s{sKX}, 128", f"s_and_b32 s{sKX}, s{sKX}, 1023",
            f"s_add_u32 s{sKW}, s{sKW}, s{sRS64}", f"s_cmp_eq_u32 s{sKW}, s22", f"s_cselect_b32 s{sKW}, 0, s{sKW}"]
def adv_x(): return [f"s_add_u32 s{sKX}, s{sKX}, 128", f"s_and_b32 s{sKX}, s{sKX}, 1023"]
def adv_w(): return [f"s_add_u32 s{sKW}, s{sKW}, s{sRS64}", f"s_cmp_eq_u32 s{sKW}, s22", f"s_cselect_b32 s{sKW}, 0, s{sKW}"]
def with_adv(pieces, adv):
    m, l = pieces[-1]
    return pieces[:-1] + [(m, l + adv)]
def all_x(role, buf): return with_adv(dma_x(role, buf), adv_x())
def all_w(buf): return with_adv(dma_w(buf, [0,1,2,3,4,5], sKW), adv_w())
def adv_instrs():
    return [[f"s_mov_b32 s{sKW2}, s{sKW}"] + adv_k()]

def gate_instrs():
    g = []
    for q in range(4):
        for row in range(2):
            g.append(f"v_dot2_f32_bf16 v{GR+row}, v{GX+4*row+q}, v{GW+q}, {'0' if q == 0 else 'v%d' % (GR+row)}")
    g += ["s_nop 0", "s_nop 0"]
    for sh in (8, 4, 2, 1):
        for row in range(2):
            g.append(f"v_add_f32_dpp v{GR+row}, v{GR+row}, v{GR+row} row_ror:{sh} row_mask:0xf bank_mask:0xf")
    for op in ("v_permlane16_swap_b32", "v_permlane32_swap_b32"):
        for row in range(2): g.append(f"v_mov_b32 v{4+row}, v{GR+row}")
        for row in range(2): g.append(f"{op} v{GR+row}, v{4+row}")
        for row in range(2): g.append(f"v_add_f32 v{GR+row}, v{GR+row}, v{4+row}")
    for row in range(2): g.append(f"v_mul_f32 v{GR+row}, 0xbfb8aa3b, v{GR+row}")
    for row in range(2): g.append(f"v_exp_f32 v{GR+row}, v{GR+row}")
    for row in range(2): g.append(f"v_add_f32 v{GR+row}, 1.0, v{GR+row}")
    for row in range(2): g.append(f"v_rcp_f32 v{GR+row}, v{GR+row}")
    return g

def body(a, role, d1, d2, wait, first=False, last=False, x1=(), x2=(), dx1=(), dx2=(), loop=None, tail1=(), noadv=False):
    up0 = addr_set(role, 0, sNXT) if not last else []
    for x in schedule(p1_mfmas(role, 0, first), p1_reads(role, 1, 1), list(d1) + list(dx1), list(x1) + up0,
                      dma_first=1 if first else 2, tail=tail1, xspan=(0, 18)): a(x)
    if last:
        a("s_waitcnt lgkmcnt(0)")
        a("s_barrier")
        for x in schedule(p1_mfmas(role, 1), [], list(d2) + list(dx2), x2): a(x)
        return
    a(f"s_waitcnt vmcnt({wait}) lgkmcnt(0)")
    a("s_barrier")
    tail = (adv_instrs() if d2 and not noadv else []) + rot_instrs()
    if loop: tail.append([f"s_add_u32 s{sLOOP}, s{sLOOP}, 1", f"s_cmp_lt_u32 s{sLOOP}, {loop[1]}"])
    for x in schedule(p1_mfmas(role, 1), p1_reads(role, 0, 0), list(d2) + list(dx2), list(x2) + addr_set(role, 1, sNXT),
                      tail=tail, xspan=(0, 20)): a(x)
    a("s_waitcnt lgkmcnt(0)")
    if loop: a(f"s_cbranch_scc1 {loop[0]}")

sLOOP = 66
sBA, sBB, sBC, sBR = 96, 97, 98, 101
def b_base(step):
    if step < 4: return sBA, step*4096
    if step < 6: return sBB, (step-4)*4096
    if step < 9: return sBC + step - 6, 0
    return sBR, (step-9)*4096
sUB, sBO, sUA = 44, 45, 8
def next_step(u, dst, shift, pos):
    if pos >= 14:
        l = [f"s_cmp_gt_u32 s{sN2}, {pos}", f"s_cselect_b32 s{dst}, s{u}, 31", f"s_lshl_b32 s{dst}, s{dst}, {shift}"]
    else:
        l = [f"s_lshl_b32 s{dst}, s{u}, {shift}"]
    return l + [f"s_add_u32 s{u}, s{u}, 1", f"s_cmp_eq_u32 s{u}, s{sN2}", f"s_cselect_b32 s{u}, 0, s{u}"]
def b_dma(step):
    g = []; sb, im = b_base(step)
    for dd in range(4):
        m = next_step(sUB, sBO, 15, step) if dd == 0 else []
        g.append((m + [f"s_add_u32 m0, s{sb}, {im + dd*1024}", f"s_add_u32 s57, s{sBO}, {dd*8192}"],
                  [f"buffer_load_dwordx4 v{vBD}, s[24:27], s57 offen lds"]))
    return g
def b_addr(step, regs):
    sb, im = b_base(step)
    return [f"v_add_u32 v{regs[c]}, s{sb}, v{vBF+c}" for c in range(4)]
def b_reads(step, dst, regs):
    out = []; sb, im = b_base(step)
    for c in range(4):
        out.append(f"ds_read_b64_tr_b16 {ar(dst+4*c,2)}, v{regs[c]} offset:{im}")
        out.append(f"ds_read_b64_tr_b16 {ar(dst+4*c+2,2)}, v{regs[c]} offset:{im+2048}")
    return out

sRB2, sCT2, sU2, sN2 = 12, 13, 14, 15
def p2_scalar_setup(a):
    a(f"s_and_b32 s{T0}, s2, 7"); a(f"s_lshr_b32 s{T1}, s2, 3")
    if OPT.get("p2b", 1) == 1:
        a(f"s_lshl_b32 s{sRB2}, s{T0}, 2"); a(f"s_lshr_b32 s{T2}, s{T1}, 3"); a(f"s_add_u32 s{sRB2}, s{sRB2}, s{T2}")
        a(f"s_and_b32 s{sCT2}, s{T1}, 7")
    else:
        a(f"s_lshr_b32 s{sRB2}, s{T0}, 1"); a(f"s_lshl_b32 s{sRB2}, s{sRB2}, 3"); a(f"s_lshr_b32 s{T2}, s{T1}, 2"); a(f"s_add_u32 s{sRB2}, s{sRB2}, s{T2}")
        a(f"s_and_b32 s{sCT2}, s{T0}, 1"); a(f"s_lshl_b32 s{sCT2}, s{sCT2}, 2"); a(f"s_and_b32 s{T2}, s{T1}, 3"); a(f"s_add_u32 s{sCT2}, s{sCT2}, s{T2}")
    a(f"s_mov_b32 s{sU2}, 0"); a(f"s_mov_b32 s{sN2}, 16")
    for w, u0, n in ((1,16,15), (2,31,14), (3,45,14)):
        a(f"s_cmp_eq_u32 s{sW_}, {w}"); a(f"s_cselect_b32 s{sU2}, {u0}, s{sU2}"); a(f"s_cselect_b32 s{sN2}, {n}, s{sN2}")
    a(f"s_lshl_b32 s{sBA}, s{sW_}, 14"); a(f"s_add_u32 s{sBA}, s{sBA}, {GA}")
    a(f"s_lshl_b32 s{sBB}, s{sW_}, 13")
    a(f"s_mul_i32 s{T0}, s{sW_}, 12288"); a(f"s_add_u32 s{T0}, s{T0}, {GC}")
    for k in range(3):
        a(f"s_add_u32 s{sBC+k}, s{T0}, {4096*k}")
    a(f"s_cmp_eq_u32 s{sW_}, 3")
    a(f"s_cselect_b32 s{sBC+1}, {GC2}, s{sBC+1}"); a(f"s_cselect_b32 s{sBC+2}, {GC2+4096}, s{sBC+2}")
    a(f"s_mul_i32 s{sBR}, s{sW_}, {R2}")
    a(f"s_sub_u32 s{T0}, s{sU2}, 16"); a(f"s_lshl_b32 s{T0}, s{T0}, 15"); a(f"s_add_u32 s{T2}, s44, s{T0}"); a(f"s_addc_u32 s{T3}, s45, 0")
    a(f"s_cmp_eq_u32 s{sW_}, 0"); a(f"s_cselect_b32 s24, s8, s{T2}"); a(f"s_cselect_b32 s25, s9, s{T3}"); a("s_and_b32 s25, s25, 0xffff")
    a(f"s_lshl_b32 s26, s{sN2}, 15"); a("s_mov_b32 s27, 0x00020000")
    a(f"s_mul_i32 s{T0}, s{sU2}, {AWS_U}"); a(f"s_add_u32 s28, s10, s{T0}"); a("s_addc_u32 s29, s11, 0"); a("s_and_b32 s29, s29, 0xffff")
    a(f"s_mul_i32 s30, s{sN2}, {AWS_U}"); a("s_mov_b32 s31, 0x00020000")
    a(f"s_and_b32 s{T0}, s{sRB2}, 3"); a(f"s_lshl_b32 s{T0}, s{T0}, 2"); a(f"s_lshl_b32 s{T1}, s{sCT2}, 1"); a(f"s_add_u32 s{T0}, s{T0}, s{T1}")
    if not OPT.get("rot2", 1): a(f"s_mov_b32 s{T0}, 0")
    a(f"s_sub_u32 s{T1}, s{T0}, s{sN2}"); a(f"s_cmp_ge_u32 s{T0}, s{sN2}"); a(f"s_cselect_b32 s{sUB}, s{T1}, s{T0}")
    a(f"s_mov_b32 s{sUA}, s{sUB}")

def mix(a, valu, dmas, every):
    d = list(dmas); cnt = 0
    for k, x in enumerate(valu):
        a(x)
        if x.endswith(":") or x.startswith("s_cbranch"): continue
        cnt += 1
        if d and cnt % every == every - 2:
            for y in d[0][0]: a(y)
        if d and cnt % every == 0:
            for y in d[0][1]: a(y)
            d.pop(0)
    return d

def att_epilogue():
    e = []
    Q = lambda t, h: ACC + 4*(2*(t-1) + h)
    Kc = lambda t, h: ACC + 4*(8 + 2*t + h)
    V = lambda t, h: ACC + 4*(18 + 2*t + h)
    KF, VF, QF = 208, 228, 16
    kf = lambda t, h: KF + 10*h + 2*t
    vf = lambda t, h: VF + 10*h + 2*t
    qf = lambda t, h: QF + 2*(2*(t-1) + h)
    cv = lambda d, s: [f"v_cvt_pk_bf16_f32 v{d}, v{s}, v{s+1}", f"v_cvt_pk_bf16_f32 v{d+1}, v{s+2}, v{s+3}"]
    combos = [(t,h) for t in range(1,5) for h in range(2)]
    MC, MP, MF, SEL0, SEL1, ONES = 44, 46, 48, 50, 51, 52
    for t in range(5):
        for h in range(2): e += cv(kf(t,h), Kc(t,h))
    for (t,h) in combos: e += cv(qf(t,h), Q(t,h))
    S = lambda ci, blk: ACC + 8*ci + 4*blk
    vcv = []
    for t in range(5):
        for h in range(2): vcv += cv(vf(t,h), V(t,h))
    sm = []
    for ci,(t,h) in enumerate(combos):
        sm.append(f"v_mfma_f32_16x16x16_bf16 {vr(S(ci,0),4)}, {vr(kf(t-1,h),2)}, {vr(qf(t,h),2)}, 0")
        sm.append(f"v_mfma_f32_16x16x16_bf16 {vr(S(ci,1),4)}, {vr(kf(t,h),2)}, {vr(qf(t,h),2)}, 0")
    e.append("s_nop 1")
    for k, m in enumerate(sm):
        e.append(m)
        e += vcv[k*20//16:(k+1)*20//16]
    e += ["s_nop 7"]
    A = lambda ci: 160 + 4*ci
    for ci in range(8):
        for blk in range(2):
            s = S(ci, blk)
            e.append(f"v_cndmask_b32 v{A(ci)+2*blk}, v{s}, v{s+1}, s[46:47]")
            e.append(f"v_cndmask_b32 v{A(ci)+2*blk+1}, v{s+2}, v{s+3}, s[46:47]")
    for ci,(t,h) in enumerate(combos):
        mp = MF if t == 1 else MP
        e.append(f"v_pk_fma_f32 {vr(A(ci),2)}, {vr(A(ci),2)}, s[4:5], {vr(mp,2)} op_sel_hi:[1,0,1]")
        e.append(f"v_pk_fma_f32 {vr(A(ci)+2,2)}, {vr(A(ci)+2,2)}, s[4:5], {vr(MC,2)} op_sel_hi:[1,0,1]")
    MX = 4
    for ci in range(8):
        e.append(f"v_max3_f32 v{MX+ci}, v{A(ci)}, v{A(ci)+1}, v{A(ci)+2}")
    for ci in range(8):
        e.append(f"v_max_f32 v{MX+ci}, v{MX+ci}, v{A(ci)+3}")
    for q in range(2):
        b = MX + 4*q
        e += ["s_nop 0"] if q == 0 else []
        e.append(f"v_permlane32_swap_b32 v{b}, v{b+1}"); e.append(f"v_permlane32_swap_b32 v{b+2}, v{b+3}")
    for q in range(2):
        b = MX + 4*q
        e.append(f"v_max_f32 v{b}, v{b}, v{b+1}"); e.append(f"v_max_f32 v{b+2}, v{b+2}, v{b+3}")
    e.append("s_nop 0")
    for q in range(2):
        b = MX + 4*q
        e.append(f"v_permlane16_swap_b32 v{b}, v{b+2}")
    e.append("s_nop 0")
    for q in range(2):
        b = MX + 4*q
        e.append(f"v_max_f32 v{b}, v{b}, v{b+2}")
    for q in range(2):
        b = MX + 4*q
        e.append(f"v_mov_b32 v{b+1}, v{b}")
    e.append("s_nop 0")
    for q in range(2):
        b = MX + 4*q
        e.append(f"v_permlane32_swap_b32 v{b}, v{b+1}")
    e.append("s_nop 0")
    for q in range(2):
        b = MX + 4*q
        e.append(f"v_mov_b32 v{b+2}, v{b}"); e.append(f"v_mov_b32 v{b+3}, v{b+1}")
    e.append("s_nop 0")
    for q in range(2):
        b = MX + 4*q
        e.append(f"v_permlane16_swap_b32 v{b}, v{b+2}")
        e.append(f"v_permlane16_swap_b32 v{b+1}, v{b+3}")
    e.append("s_nop 0")
    for ci in range(8):
        e.append(f"v_pk_add_f32 {vr(A(ci),2)}, {vr(A(ci),2)}, {vr(MX+ci - (MX+ci)%2,2)} op_sel:[0,{(MX+ci)%2}] op_sel_hi:[1,{(MX+ci)%2}] neg_lo:[0,1] neg_hi:[0,1]")
        e.append(f"v_pk_add_f32 {vr(A(ci)+2,2)}, {vr(A(ci)+2,2)}, {vr(MX+ci - (MX+ci)%2,2)} op_sel:[0,{(MX+ci)%2}] op_sel_hi:[1,{(MX+ci)%2}] neg_lo:[0,1] neg_hi:[0,1]")
    P = lambda ci: ACC + 4*ci
    for ci in range(8):
        for r in range(4): e.append(f"v_exp_f32 v{A(ci)+r}, v{A(ci)+r}")
        if ci > 0:
            c1 = ci - 1
            e += [f"v_cvt_pk_bf16_f32 v12, v{A(c1)}, v{A(c1)+1}", f"v_cvt_pk_bf16_f32 v13, v{A(c1)+2}, v{A(c1)+3}",
                  f"v_perm_b32 v{P(c1)}, v12, v12, v{SEL0}", f"v_perm_b32 v{P(c1)+1}, v12, v12, v{SEL1}",
                  f"v_perm_b32 v{P(c1)+2}, v13, v13, v{SEL0}", f"v_perm_b32 v{P(c1)+3}, v13, v13, v{SEL1}"]
    e.append("s_nop 0")
    e += [f"v_cvt_pk_bf16_f32 v12, v{A(7)}, v{A(7)+1}", f"v_cvt_pk_bf16_f32 v13, v{A(7)+2}, v{A(7)+3}",
          f"v_perm_b32 v{P(7)}, v12, v12, v{SEL0}", f"v_perm_b32 v{P(7)+1}, v12, v12, v{SEL1}",
          f"v_perm_b32 v{P(7)+2}, v13, v13, v{SEL0}", f"v_perm_b32 v{P(7)+3}, v13, v13, v{SEL1}"]
    e.append("s_nop 1")
    O = lambda ci: 128 + 4*ci
    L = lambda ci: 160 + 4*ci
    for ci,(t,h) in enumerate(combos):
        e.append(f"v_mfma_f32_16x16x32_bf16 {vr(O(ci),4)}, {vr(vf(t-1,h),4)}, {vr(P(ci),4)}, 0")
        e.append(f"v_mfma_f32_16x16x32_bf16 {vr(L(ci),4)}, {vr(ONES,4)}, {vr(P(ci),4)}, 0")
    e.append("s_nop 6")
    for ci in range(8): e.append(f"v_rcp_f32 v{MX+ci}, v{L(ci)}")
    e.append("s_nop 0")
    for ci in range(8):
        sel = (MX+ci) % 2; pr = vr(MX+ci - sel, 2)
        e.append(f"v_pk_mul_f32 {vr(O(ci),2)}, {vr(O(ci),2)}, {pr} op_sel:[0,{sel}] op_sel_hi:[1,{sel}]")
        e.append(f"v_pk_mul_f32 {vr(O(ci)+2,2)}, {vr(O(ci)+2,2)}, {pr} op_sel:[0,{sel}] op_sel_hi:[1,{sel}]")
    for t in range(1,5):
        d = 16 + 4*(t-1)
        for h in range(2): e += cv(d + 2*h, O(2*(t-1)+h))
        e.append(f"buffer_store_dwordx4 {vr(d,4)}, v14, s[32:35], s{T6} offen offset:{(t-1)*1024} sc1")
    return e

def att_consts(a):
    a("s_mov_b32 s46, 0xaaaaaaaa"); a("s_mov_b32 s47, 0xaaaaaaaa")
    a("s_mov_b32 s4, 0x3eb8aa3b"); a("s_mov_b32 s5, 0x3eb8aa3b")
    a("v_and_b32 v8, 14, v3"); a("v_lshlrev_b32 v9, 2, v2"); a("v_sub_u32 v8, v8, v9")
    a("v_mov_b32 v9, 0xf149f2ca")
    for dst, blk in ((44, 0), (46, 16)):
        for k in range(2):
            a(f"v_add_u32 v10, {blk - 2*k}, v8")
            a("v_cmp_gt_u32 s[6:7], 15, v10")
            a("s_nop 1")
            a(f"v_cndmask_b32 v{dst+k}, v9, 0, s[6:7]")
    a(f"s_or_b32 s{T0}, s{sRB}, s{sRH}"); a(f"s_cmp_eq_u32 s{T0}, 0"); a("s_cselect_b64 s[6:7], -1, 0")
    for k in range(2): a(f"v_cndmask_b32 v{48+k}, v{46+k}, v9, s[6:7]")
    a("v_mov_b32 v50, 0x0c0c0100"); a("v_mov_b32 v10, 0x01000c0c"); a("v_cndmask_b32 v50, v50, v10, s[46:47]")
    a("v_mov_b32 v51, 0x0c0c0302"); a("v_mov_b32 v10, 0x03020c0c"); a("v_cndmask_b32 v51, v51, v10, s[46:47]")
    for r in range(4): a(f"v_mov_b32 v{52+r}, 0x3f803f80")
    a(f"s_lshl_b32 s{T6}, s{sGRP}, 1"); a(f"s_add_u32 s{T6}, s{T6}, s{sCH}"); a(f"s_mul_i32 s{T6}, s{T6}, {AWS_U}")
    a(f"s_lshl_b32 s{T0}, s{sRB}, 3"); a(f"s_lshl_b32 s{T1}, s{sRH}, 2"); a(f"s_add_u32 s{T0}, s{T0}, s{T1}"); a(f"s_lshl_b32 s{T0}, s{T0}, 10")
    a("v_lshlrev_b32 v14, 4, v1"); a(f"v_add_u32 v14, s{T0}, v14")

def ffn_pairs(m, rr, D):
    e = []
    prs = [ACC + 4*(6*rr + 2*m + hh) + 2*q for hh in range(2) for q in range(2)]
    T = [16 + 2*k for k in range(4)]
    for k in range(4): e.append(f"v_pk_mul_f32 {vr(T[k],2)}, {vr(prs[k],2)}, s[4:5] op_sel_hi:[1,0]")
    for k in range(4):
        e.append(f"v_exp_f32 v{T[k]}, v{T[k]}"); e.append(f"v_exp_f32 v{T[k]+1}, v{T[k]+1}")
    U = [24 + 2*k for k in range(4)]
    for k in range(4): e.append(f"v_pk_fma_f32 {vr(U[k],2)}, {vr(T[k],2)}, 0.5, 1.0 op_sel_hi:[1,0,0]")
    for k in range(4): e.append(f"v_pk_fma_f32 {vr(U[k],2)}, {vr(U[k],2)}, {vr(T[k],2)}, 1.0 op_sel_hi:[1,1,0]")
    for k in range(4):
        e.append(f"v_rcp_f32 v{U[k]}, v{U[k]}"); e.append(f"v_rcp_f32 v{U[k]+1}, v{U[k]+1}")
    for k in range(4): e.append(f"v_pk_fma_f32 {vr(prs[k],2)}, {vr(prs[k],2)}, {vr(U[k],2)}, {vr(prs[k],2)} neg_lo:[1,0,0] neg_hi:[1,0,0]")
    for k in range(4): e.append(f"v_cvt_pk_bf16_f32 v{D+k}, v{prs[k]}, v{prs[k]+1}")
    return e

def ffn_epilogue(nunits):
    e = []
    for m in range(nunits):
        for rr in range(4):
            D = 32 + 4*(rr & 1)
            e += ffn_pairs(m, rr, D)
            e.append(f"buffer_store_dwordx4 {vr(D,4)}, v14, s[32:35], s{T6} offen offset:{rr*1024} sc1")
        e.append(f"s_add_u32 s{T6}, s{T6}, {AWS_U}")
    return e

def ffn_consts(a):
    a(f"s_mov_b32 s4, {LOG2E}"); a(f"s_mov_b32 s5, {LOG2E}")
    a(f"s_mul_i32 s{T6}, s{sCH}, 3"); a(f"s_add_u32 s{T6}, s{T6}, s{sU0}"); a(f"s_add_u32 s{T6}, s{T6}, 16"); a(f"s_mul_i32 s{T6}, s{T6}, {AWS_U}")
    a(f"s_lshl_b32 s{T0}, s{sRB}, 3"); a(f"s_lshl_b32 s{T1}, s{sRH}, 2"); a(f"s_add_u32 s{T0}, s{T0}, s{T1}"); a(f"s_lshl_b32 s{T0}, s{T0}, 10")
    a("v_lshlrev_b32 v14, 4, v1"); a(f"v_add_u32 v14, s{T0}, v14")

def gate_store(a):
    a("v_cmp_eq_u32 s[68:69], 0, v1")
    a("s_nop 1")
    a("s_and_saveexec_b64 s[66:67], s[68:69]")
    a(f"buffer_store_dwordx2 {vr(GR,2)}, v{vGST}, s[36:39], 0 offen sc1")
    a("s_mov_b64 exec, s[66:67]")

NB1 = 9
def weave(a, main, inserts):
    ins = {}
    for p, l in inserts: ins.setdefault(min(p, len(main)-1), []).extend(l)
    for i, x in enumerate(main):
        a(x)
        for y in ins.get(i, []): a(y)

def dma_inserts(dmas, lo, hi):
    out = []
    for k, (m, l) in enumerate(dmas):
        p = int(lo + 2 + k * (hi - lo - 2) / len(dmas))
        out.append((p - 2, m)); out.append((p, l))
    return out

def round1_copy():
    tr = [60, 61, 62, 63]; out = []
    for st in range(NB1):
        if st in (0, 4, 6, 7, 8): out += b_addr(st, tr)
        out += b_reads(st, 16*st, tr)
    return out

def count_vmem(lines): return sum(1 for x in lines if x.startswith("buffer_") or x.startswith("global_"))

def epilogue_with_staging(a, R, e, rest, frac):
    n = len(e)
    p_r1, p_cp0, p_cp1, p_bar = frac[0], int(n*frac[1]), int(n*frac[2]), int(n*frac[3])
    assert count_vmem(e[:p_r1+1]) == 0
    ins = dma_inserts(rest, 0, p_r1)
    later = count_vmem(e[:p_cp0+1])
    ins.append((p_cp0, [f"s_waitcnt vmcnt({later})"]))
    cp = round1_copy()
    for k, x in enumerate(cp): ins.append((p_cp0 + int(k * (p_cp1 - p_cp0) / len(cp)), [x]))
    ins.append((p_bar, ["s_waitcnt lgkmcnt(0)", "s_barrier"]))
    r2 = []
    for st in range(NB1, 16): r2 += b_dma(st)
    k2 = OPT.get(R + "r2", 10)
    ins += dma_inserts(r2[:k2], p_bar + 1, n - 1)
    weave(a, e, ins)
    return r2[k2:]

def phase1_role(a, R):
    a(f"s_lshr_b32 s{T0}, s2, 5"); a(f"s_mul_i32 s{T0}, s{T0}, {OPT.get('rA', 1)}")
    a(f"s_lshr_b32 s{T1}, s2, 3"); a(f"s_and_b32 s{T1}, s{T1}, 3"); a(f"s_mul_i32 s{T1}, s{T1}, {OPT.get('rB', 2)}"); a(f"s_add_u32 s{T0}, s{T0}, s{T1}")
    a(f"s_and_b32 s{T1}, s2, 1"); a(f"s_mul_i32 s{T1}, s{T1}, {OPT.get('rC', 0)}"); a(f"s_add_u32 s{T0}, s{T0}, s{T1}")
    a(f"s_lshl_b32 s{T0}, s{T0}, {OPT.get('rS', 0)}"); a(f"s_and_b32 s{T0}, s{T0}, {OPT.get('rM', 7)}")
    a(f"s_lshl_b32 s{sKX}, s{T0}, 7"); a(f"s_mul_i32 s{sKW}, s{T0}, s{sRS64}")
    if R == "ffn":
        for tt in range(6): a(f"buffer_load_dwordx2 {vr(BIAS+2*tt,2)}, v6, s[24:27], 0 offen offset:{tt*32}")
    late = chunks(capture(late_setup, R))
    a(f"s_mov_b32 s{sCUR}, 0"); a(f"s_mov_b32 s{sNXT}, {STAGE}"); a(f"s_mov_b32 s{sPRV}, {2*STAGE}")
    gl = [f"buffer_load_dwordx4 {vr(GX,4)}, v4, s[16:19], 0 offen", f"buffer_load_dwordx4 {vr(GX+4,4)}, v4, s[16:19], 0 offen offset:1024",
          f"buffer_load_dwordx4 {vr(GW,4)}, v5, s[28:31], 0 offen"]
    emit_pairs(a, all_x(R, sCUR)); emit_pairs(a, all_w(sCUR))
    for x in gl: a(x)
    pieces = all_x(R, sNXT)
    per = -(-len(late) // (len(pieces) + 1)); k = 0
    for m, l in pieces:
        for ch in late[k:k+per]:
            for x in ch: a(x)
        k += per
        for x in m: a(x)
        a("s_nop 0")
        for x in l: a(x)
    for ch in late[k:]:
        for x in ch: a(x)
    stamp(a, 2)
    for x in addr_set(R, 0, sCUR) + addr_set(R, 1, sCUR): a(x)
    if R == "ffn":
        a("s_waitcnt vmcnt(17)")
        for tt in range(6):
            for q in range(2):
                a(f"v_lshlrev_b32 v{bias_reg(tt,2*q)}, 16, v{BIAS+2*tt+q}")
                a(f"v_and_b32 v{bias_reg(tt,2*q+1)}, 0xffff0000, v{BIAS+2*tt+q}")
    a("s_waitcnt vmcnt(4)")
    a("s_barrier")
    stamp(a, 3)
    for x in p1_reads(R, 0, 0): a(x)
    a("s_waitcnt lgkmcnt(0)")
    istamp(a, 1)
    body(a, R, all_w(sNXT) + all_x(R, sPRV), all_w(sPRV) + all_x(R, sCUR), 4, first=True, noadv=True)
    istamp(a, 2)
    body(a, R, all_w(sPRV), h1(R, sCUR), 10, x2=[["v_mov_b32 v7, 1", "s_and_saveexec_b64 s[6:7], s[4:5]", "s_cbranch_execz 2f", f"global_atomic_add v{vCLR}, v7, s[50:51] sc1", "2:", "s_mov_b64 exec, s[6:7]"]])
    if OPT.get("iter"):
        for it in range(2, 5):
            istamp(a, 1 + it)
            body(a, R, h2(R, sPRV), h1(R, sCUR), 10)
    else:
        a(f"s_mov_b32 s{sLOOP}, 2")
        a.label(f"L{R}_loop")
        body(a, R, h2(R, sPRV), h1(R, sCUR), 10, loop=(f"L{R}_loop", 5))
    istamp(a, 6)
    bd = []
    for st in range(NB1): bd += b_dma(st)
    n = OPT.get("bper", 6)
    assert 4*n <= 24 and 3*n <= 24 and 2*n <= 16
    body(a, R, h2(R, sPRV), [], 10, dx2=bd[:n])
    g = gate_instrs()
    istamp(a, 7)
    body(a, R, [], [], 2*n, x1=g[:22], x2=g[22:], dx1=bd[n:2*n], dx2=bd[2*n:3*n])
    fl = chunks(capture(att_consts if R == "att" else ffn_consts))
    istamp(a, 8)
    n7 = OPT.get("b7", 8)
    body(a, R, [], [], 0, last=True, x1=fl, dx1=bd[3*n:4*n], dx2=bd[4*n:4*n+n7])
    rest = bd[4*n+n7:]
    istamp(a, 9)
    stamp(a, 4)
    a("global_load_dword v64, v43, s[50:51] sc1")
    a.nop(8)
    early = OPT.get("early", 0)
    if R == "att":
        if early:
            left = epilogue_with_staging(a, R, att_epilogue(), rest, (40, 0.34, 0.56, 0.58))
            emit_pairs(a, left)
        else:
            weave(a, att_epilogue(), dma_inserts(rest, 0, 40))
    else:
        e = ffn_epilogue(3); k = 2*len(e)//3
        if early: left = epilogue_with_staging(a, R, e[:k], rest, (30, 0.36, 0.58, 0.60))
        else:
            weave(a, e[:k], dma_inserts(rest, 0, 30)); left = []
        a(f"s_cmp_ge_u32 s{sGRP}, 3"); a(f"s_cselect_b32 s{T0}, s{sCH}, 0"); a(f"s_cmp_eq_u32 s{T0}, 1"); a("s_cbranch_scc1 Lffn_two")
        weave(a, e[k:], dma_inserts(left, 0, len(e) - k - 1) if left else [])
        a("s_branch Lffn_done")
        a.label("Lffn_two")
        emit_pairs(a, left)
        a.label("Lffn_done")
    gate_store(a)
    p2_pre(a)
    istamp(a, 10)
    stamp(a, 5)
    a(f"s_waitcnt vmcnt({5 if R == 'att' else 9})")
    for x in round1_copy(): a(x)
    a("s_waitcnt lgkmcnt(0)")
    a("s_barrier")
    r2 = []
    for st in range(NB1, 16): r2 += b_dma(st)
    npre = OPT.get("r2pre", 6)
    emit_pairs(a, r2[:npre])
    a(f"s_waitcnt vmcnt({npre})")
    a("s_barrier")
    a("v_mov_b32 v5, 1")
    a(f"buffer_store_dword v5, v{vFLG}, s[36:39], 0 offen sc1")
    stamp(a, 6)
    if R == "att": a("s_branch Lphase2")

JR = [2, 3, 14, 15]
def p2_pre(a):
    for x in b_addr(NB1, JR): a(x)
    a(f"v_mov_b32 v0, v{vOUT}")
    a("v_lshlrev_b32 v4, 4, v1"); a(f"s_lshl_b32 s{T1}, s{sRB2}, 12")
    for tau in range(4):
        a(f"s_add_u32 s{T0}, s{sW_}, {tau}"); a(f"s_and_b32 s{T0}, s{T0}, 3"); a(f"s_lshl_b32 s{T0}, s{T0}, 10"); a(f"s_add_u32 s{T0}, s{T0}, s{T1}")
        a(f"v_add_u32 v{8+tau}, s{T0}, v4")
    srd(a, 16, 48, 2048*1024)

def late_setup(a, R):
    a("v_lshrrev_b32 v7, 1, v3")
    a(f"s_lshl_b32 s{T0}, s{sRH}, 13")
    for h in range(2):
        a(f"v_or_b32 v8, {4*h}, v2"); a("v_xor_b32 v8, v8, v7"); a("v_lshlrev_b32 v8, 4, v8")
        a("v_lshl_add_u32 v8, v3, 7, v8"); a(f"v_add_u32 v{XB+h}, s{T0}, v8")
    a("v_bfe_u32 v7, v1, 2, 2"); a("v_and_b32 v8, 3, v1")
    a("v_lshl_add_u32 v9, v2, 3, v7"); a("v_lshlrev_b32 v9, 7, v9")
    a("v_and_b32 v10, 1, v8"); a("v_lshl_add_u32 v9, v10, 3, v9")
    a("v_and_b32 v10, 2, v7"); a("v_and_b32 v11, 1, v2"); a("v_lshl_or_b32 v10, v11, 2, v10")
    a("v_lshrrev_b32 v11, 1, v8"); a("v_xor_b32 v10, v10, v11")
    if R == "att":
        for t in range(2):
            a(f"s_lshl_b32 s{T0}, s{sCH}, 2"); a(f"s_add_u32 s{T0}, s{T0}, {2*t}")
            a(f"v_xor_b32 v11, s{T0}, v10"); a("v_lshl_add_u32 v11, v11, 4, v9"); a(f"v_add_u32 v{WB+t}, {WOFF}, v11")
    else:
        for t in range(6):
            a(f"s_mul_i32 s{T0}, s{sCH}, 6"); a(f"s_add_u32 s{T0}, s{T0}, {t}")
            a(f"s_lshr_b32 s{T1}, s{T0}, 2"); a(f"s_and_b32 s{T0}, s{T0}, 3"); a(f"s_lshl_b32 s{T0}, s{T0}, 1")
            a(f"s_lshl_b32 s{T1}, s{T1}, 13"); a(f"s_add_u32 s{T1}, s{T1}, {WOFF}")
            a(f"v_xor_b32 v11, s{T0}, v10"); a("v_lshl_add_u32 v11, v11, 4, v9"); a(f"v_add_u32 v{WB+t}, s{T1}, v11")
    srd(a, 32, 10, 59*AWS_U)
    p2_scalar_setup(a)
    a("v_lshrrev_b32 v7, 3, v1"); a("v_and_b32 v8, 7, v1"); a("v_lshlrev_b32 v9, 1, v2"); a("v_xor_b32 v8, v8, v9")
    a("v_lshlrev_b32 v8, 4, v8"); a("v_lshl_add_u32 v7, v7, 10, v8"); a(f"s_lshl_b32 s{T0}, s{sCT2}, 7"); a(f"v_add_u32 v{vBD}, s{T0}, v7")
    a("v_bfe_u32 v7, v1, 2, 2"); a("v_and_b32 v8, 3, v1")
    a("v_lshl_add_u32 v9, v2, 2, v7"); a("v_bfe_u32 v10, v9, 1, 2"); a("v_lshlrev_b32 v10, 1, v10")
    a("v_lshlrev_b32 v9, 7, v9"); a("v_and_b32 v11, 1, v8"); a("v_lshl_add_u32 v9, v11, 3, v9")
    a("v_lshrrev_b32 v11, 1, v8"); a("v_xor_b32 v10, v10, v11")
    for c in range(4):
        a(f"v_xor_b32 v11, {2*c}, v10"); a(f"v_lshl_add_u32 v{vBF+c}, v11, 4, v9")
    a(f"s_lshr_b32 s{T0}, s{sRB2}, 1"); a(f"s_lshl_b32 s{T0}, s{T0}, 4"); a(f"v_mov_b32 v43, s{T0}")
    a(f"s_lshl_b32 s{T0}, s{sRB2}, 2"); a(f"s_add_u32 s{T0}, s{T0}, s{sW_}"); a(f"s_lshl_b32 s{T0}, s{T0}, 6")
    a("v_lshlrev_b32 v7, 2, v3"); a(f"v_add_u32 v{vGRD}, s{T0}, v7")
    a(f"s_lshl_b32 s{T0}, s{T0}, 8"); a(f"s_lshl_b32 s{T1}, s{sCT2}, 7"); a(f"s_add_u32 s{T0}, s{T0}, s{T1}")
    a("v_and_b32 v7, 1, v2"); a("v_lshlrev_b32 v7, 5, v7"); a("v_lshrrev_b32 v8, 1, v2"); a("v_lshl_add_u32 v7, v8, 4, v7")
    a("v_lshl_add_u32 v7, v3, 10, v7"); a(f"v_add_u32 v{vOUT}, s{T0}, v7")

RED = 114688
def phase2(a):
    ACC2, AR, NR, DEP = 16, 80, 6, 4
    JIT = [144, 160]
    a.label("Lphase2")
    r2 = []
    for st in range(NB1, 16): r2 += b_dma(st)
    r2 = r2[OPT.get("r2pre", 6):]; npost = OPT.get("r2post", 8)
    a(f"s_lshr_b32 s{T2}, s{sRB2}, 1"); a(f"s_lshl_b32 s{T2}, s{T2}, 7"); a(f"s_add_u32 s{T2}, s{T2}, {FLAG_OFF}")
    a("v_and_b32 v5, 15, v1"); a(f"v_lshl_add_u32 v5, v5, 3, s{T2}")
    a("v_readfirstlane_b32 s68, v64")
    emit_pairs(a, r2[:len(r2)-npost])
    a(f"s_cmp_eq_u32 s{sW_}, 0"); a("s_cbranch_scc0 Lp2_rest")
    a(f"s_mov_b32 s{T1}, 0")
    a.label("Lp2_clr")
    a("s_cmp_ge_u32 s68, 16"); a("s_cbranch_scc1 Lp2_cleared")
    a("s_sleep 8")
    a("global_load_dword v64, v43, s[50:51] sc1")
    a(f"s_add_u32 s{T1}, s{T1}, 1")
    a("s_waitcnt vmcnt(0)")
    a("v_readfirstlane_b32 s68, v64")
    a(f"s_cmp_gt_u32 s{T1}, 0x100000"); a("s_cbranch_scc0 Lp2_clr")
    a.label("Lp2_cleared")
    a("buffer_load_dword v6, v5, s[36:39], 0 offen sc1")
    emit_pairs(a, r2[len(r2)-npost:])
    a(f"s_waitcnt vmcnt({npost})")
    a("s_branch Lp2_check")
    a.label("Lp2_poll")
    a(f"s_sleep {OPT.get('sleep', 1)}")
    a("buffer_load_dword v6, v5, s[36:39], 0 offen sc1")
    a(f"s_add_u32 s{T1}, s{T1}, 1")
    a("s_waitcnt vmcnt(0)")
    a(f"s_cmp_gt_u32 s{T1}, 0x200000"); a("s_cbranch_scc1 Lp2_go")
    a.label("Lp2_check")
    a("v_cmp_ne_u32 vcc, 1, v6")
    a("s_nop 4")
    a("s_cbranch_vccnz Lp2_poll")
    a("s_branch Lp2_go")
    a.label("Lp2_rest")
    emit_pairs(a, r2[len(r2)-npost:])
    a.label("Lp2_go")
    a("s_barrier")
    stamp(a, 7)
    def loadA(step):
        return [f"buffer_load_dwordx4 {vr(AR+16*(step%NR)+4*tau,4)}, v{8+tau}, s[28:31], s{T0 + (step & 1)} offen sc1" for tau in (1, 2, 3, 0)]
    a(f"buffer_load_dword v12, v{vGRD}, s[36:39], 0 offen sc1")
    for st in range(DEP):
        for x in next_step(sUA, T0 + (st & 1), 17, st): a(x)
        for x in loadA(st): a(x)
    NS = 16
    pre = []
    pre.append(["v_lshlrev_b32 v4, 4, v1", f"v_add_u32 v4, {RED}, v4"])
    for tau in range(1, 4):
        pre.append([f"s_add_u32 s{T2}, s{sW_}, {tau}", f"s_and_b32 s{T2}, s{T2}, 3", f"s_mul_i32 s{T2}, s{T2}, 12288", f"v_add_u32 v{175+tau}, s{T2}, v4"])
    pre.append([f"s_mul_i32 s{T2}, s{sW_}, 12288", f"v_add_u32 v179, s{T2}, v4"])
    pre.append(["v_sub_f32 v13, 1.0, v12"])
    for k in range(4):
        pre.append([f"s_sub_u32 s{T2}, s{sW_}, {k}", f"s_and_b32 s{T2}, s{T2}, 3", f"s_cmp_eq_u32 s{T2}, 0", "s_cselect_b64 s[68:69], -1, 0",
                    f"v_cndmask_b32 v{180+k}, v13, v12, s[68:69]"])
    for st in range(NS):
        younger = min(st + DEP - 1, NS - 1) - st
        a(f"s_waitcnt vmcnt({4*younger})" + (" lgkmcnt(0)" if st >= NB1 else ""))
        if st == 0: stamp(a, 8)
        bsrc = 16*st if st < NB1 else JIT[(st - NB1) & 1]
        mf = []
        for tau in (1, 2, 3, 0):
            for c in range(4):
                d = ACC2 + 4*(4*tau + c)
                C = vr(d,4) if st > 0 else "0"
                mf.append(f"v_mfma_f32_16x16x32_bf16 {vr(d,4)}, {ar(bsrc+4*c,4)}, {vr(AR+16*(st%NR)+4*tau,4)}, {C}")
        nxt = st + 1
        rd = b_reads(nxt, JIT[(nxt - NB1) & 1], JR) if NB1 <= nxt < NS else []
        after = [[] for _ in mf]
        for k, x in enumerate(rd): after[k].append(x)
        if st + DEP < NS:
            after[0] += next_step(sUA, T0 + ((st+DEP) & 1), 17, st + DEP)
            for k, x in enumerate(loadA(st + DEP)): after[1 + 4*k].append(x)
        if 1 <= st <= 5:
            for k, ch in enumerate(pre[2*(st-1):2*st]): after[3 + 6*k] += ch
        if st == NS - 1:
            for tau in (1, 2):
                for c in range(4):
                    after[min(4*tau + 4 + c, 15)].append(f"ds_write_b128 v{175+tau}, {vr(ACC2+4*(4*tau+c),4)} offset:{(tau-1)*4096 + c*1024}")
        for m, f in zip(mf, after):
            a(m)
            for x in f: a(x)
    stamp(a, 9)
    a.nop(2)
    for c in range(4):
        a(f"ds_write_b128 v178, {vr(ACC2+4*(12+c),4)} offset:{2*4096 + c*1024}")
    for r in range(0, 16, 2): a(f"v_pk_mul_f32 {vr(ACC2+r,2)}, {vr(ACC2+r,2)}, {vr(180,2)} op_sel_hi:[1,0]")
    a("s_waitcnt lgkmcnt(0)"); a("s_barrier")
    R = 80
    for pos in range(3):
        for c in range(4):
            a(f"ds_read_b128 {vr(R+16*pos+4*c,4)}, v179 offset:{pos*4096 + c*1024}")
    for pos in range(3):
        a(f"s_waitcnt lgkmcnt({8 - 4*pos})")
        f = 181 + pos; pr = vr(f - f % 2, 2); sel = f % 2
        for r in range(0, 16, 2):
            a(f"v_pk_fma_f32 {vr(ACC2+r,2)}, {vr(R+16*pos+r,2)}, {pr}, {vr(ACC2+r,2)} op_sel:[0,{sel},0] op_sel_hi:[1,{sel},1]")
    for c in range(4):
        a(f"v_cvt_pk_bf16_f32 v{32+2*c}, v{ACC2+4*c}, v{ACC2+4*c+1}"); a(f"v_cvt_pk_bf16_f32 v{33+2*c}, v{ACC2+4*c+2}, v{ACC2+4*c+3}")
    a("s_nop 1")
    for p in range(2):
        b = 32 + 4*p
        a(f"v_permlane16_swap_b32 v{b}, v{b+2}"); a(f"v_permlane16_swap_b32 v{b+1}, v{b+3}")
    for p in range(2):
        a(f"buffer_store_dwordx4 {vr(32+4*p,4)}, v0, s[16:19], 0 offen offset:{64*p}")
    stamp(a, 10)

def kernel():
    a = Asm()
    a(f".globl {KNAME}"); a(".p2align 8"); a(f".type {KNAME},@function"); a.label(KNAME)
    a("s_cmp_ge_u32 s2, 256"); a("s_cbranch_scc1 Lend")
    stamp(a, 0)
    a("s_load_dwordx4 s[4:7], s[0:1], 0")
    a("s_load_dwordx4 s[12:15], s[0:1], 32")
    a("s_load_dwordx4 s[44:47], s[0:1], 48")
    a("s_load_dwordx2 s[8:9], s[0:1], 16")
    a("s_load_dwordx4 s[48:51], s[0:1], 64")
    a("s_load_dwordx2 s[10:11], s[0:1], 80")
    a("v_and_b32 v1, 63, v0"); a("v_lshrrev_b32 v4, 6, v0"); a("v_lshrrev_b32 v2, 4, v1"); a("v_and_b32 v3, 15, v1")
    a(f"v_readfirstlane_b32 s{sW_}, v4")
    a(f"s_and_b32 s{T0}, s2, 7"); a(f"s_lshr_b32 s{T1}, s2, 3")
    a(f"s_lshr_b32 s{T2}, s{T0}, 2"); a(f"s_and_b32 s{T3}, s{T0}, 3")
    a(f"s_lshl_b32 s{sRB}, s{T2}, 3"); a(f"s_lshr_b32 s{T4}, s{T1}, 2"); a(f"s_add_u32 s{sRB}, s{sRB}, s{T4}")
    a(f"s_and_b32 s{T4}, s{T1}, 3"); a(f"s_lshr_b32 s{sTYPE}, s{T4}, 1")
    a(f"s_lshl_b32 s{sGRP}, s{T3}, 1"); a(f"s_and_b32 s{T4}, s{T4}, 1"); a(f"s_add_u32 s{sGRP}, s{sGRP}, s{T4}")
    a(f"s_lshr_b32 s{sRH}, s{sW_}, 1"); a(f"s_and_b32 s{sCH}, s{sW_}, 1")
    a(f"s_mul_i32 s{sU0}, s{sGRP}, 6"); a(f"s_mul_i32 s{T0}, s{sGRP}, 5"); a(f"s_add_u32 s{T0}, s{T0}, 3")
    a(f"s_cmp_le_u32 s{sGRP}, 3"); a(f"s_cselect_b32 s{sU0}, s{sU0}, s{T0}")
    a(f"s_lshl_b32 s{T0}, s{sGRP}, 7"); a(f"s_lshl_b32 s{T1}, s{sU0}, 6"); a(f"s_lshl_b32 s{T5}, s{sRB}, 17")
    a(f"s_cmp_eq_u32 s{sTYPE}, 0")
    a(f"s_cselect_b32 s{T4}, s{T0}, s{T1}")
    a(f"s_movk_i32 s{T0}, 2752"); a(f"s_cselect_b32 s{T2}, 3072, s{T0}"); a(f"s_movk_i32 s{T0}, 128"); a(f"s_cselect_b32 s{T3}, 1024, s{T0}")
    a(f"s_cselect_b32 s{T0}, 16384, 0"); a(f"s_sub_u32 s{T5}, s{T5}, s{T0}")
    a(f"s_lshl_b32 s{sRS64}, s{T2}, 6")
    a(f"s_lshl_b32 s{sXD}, s{sW_}, 12"); a(f"s_add_u32 s{sXE}, s{sW_}, 16"); a(f"s_lshl_b32 s{sXE}, s{sXE}, 10")
    a(f"s_mul_i32 s{sWD}, s{sW_}, 6144"); a(f"s_add_u32 s{sWD}, s{sWD}, {WOFF}")
    a("v_lshrrev_b32 v4, 3, v1"); a("v_and_b32 v5, 7, v1"); a("v_xor_b32 v6, v5, v2")
    a("v_lshlrev_b32 v7, 10, v4"); a("v_lshl_add_u32 v8, v6, 4, v7"); a("v_xor_b32 v9, 64, v8")
    a(f"s_lshl_b32 s{T0}, s{sW_}, 15"); a(f"s_add_u32 s{T0}, s{T0}, s{T5}")
    a(f"s_cmp_lt_i32 s{T0}, 0"); a(f"s_cselect_b32 s{T1}, 16384, 0"); a(f"s_add_u32 s{T1}, s{T1}, s{T0}")
    for j in range(4):
        src = T1 if j < 2 else T0
        a(f"s_add_u32 s{T6}, s{src}, {8192*j}"); a(f"v_add_u32 v{XO+j}, s{T6}, v{8 + (j&1)}")
    a(f"s_lshl_b32 s{T0}, s{sW_}, 13"); a(f"s_add_u32 s{T0}, s{T0}, s{T5}"); a(f"s_add_u32 s{T0}, s{T0}, {128*1024}")
    a(f"s_and_b32 s{T1}, s{sW_}, 1"); a(f"s_lshl_b32 s{T1}, s{T1}, 6"); a(f"v_xor_b32 v10, s{T1}, v8"); a(f"v_add_u32 v{XO+4}, s{T0}, v10")
    a(f"v_mul_lo_u32 v7, s{T2}, v4")
    a("v_and_b32 v8, 1, v2"); a("v_lshlrev_b32 v8, 1, v8"); a("v_xor_b32 v8, v8, v5")
    a("v_xor_b32 v9, 4, v8")
    a("v_cmp_le_u32 s[44:45], 4, v8") if False else None
    a("v_lshl_add_u32 v10, v8, 4, v7"); a("v_lshl_add_u32 v11, v9, 4, v7")
    a(f"s_cmp_ge_u32 s{sGRP}, 3"); a(f"s_cselect_b32 s{T0}, s{sTYPE}, 0")
    a(f"s_lshl_b32 s{T0}, s{T0}, 30")
    a("v_lshrrev_b32 v12, 2, v8"); a(f"v_mul_lo_u32 v12, s{T0}, v12"); a(f"v_xor_b32 v13, s{T0}, v12")
    for j in range(6):
        a(f"s_mul_i32 s{T0}, s{sW_}, 6"); a(f"s_add_u32 s{T0}, s{T0}, {j}")
        a(f"s_lshr_b32 s{T1}, s{T0}, 3"); a(f"s_and_b32 s{T0}, s{T0}, 7")
        a(f"s_mul_i32 s{T5}, s{T1}, s{T3}"); a(f"s_add_u32 s{T5}, s{T5}, s{T4}")
        a(f"s_mul_i32 s{T6}, s{T0}, s{T2}"); a(f"s_lshl_b32 s{T6}, s{T6}, 3"); a(f"s_add_u32 s{T5}, s{T5}, s{T6}")
        a(f"v_add_u32 v{WO+j}, s{T5}, v{10 + (j&1)}")
        if j >= 4 or True:
            a(f"s_cmp_eq_u32 s{T1}, 2"); a(f"s_cselect_b64 s[16:17], -1, 0")
            a(f"v_cndmask_b32 v14, 0, v{12 + (j&1)}, s[16:17]"); a(f"v_add_u32 v{WO+j}, v{WO+j}, v14")
    a(f"s_lshl_b32 s{T0}, s{sTYPE}, 3"); a(f"s_add_u32 s{T0}, s{T0}, s{sGRP}"); a(f"s_lshl_b32 s{T0}, s{T0}, 3")
    a(f"s_lshl_b32 s{T1}, s{sRB}, 7"); a(f"s_add_u32 s{T0}, s{T0}, s{T1}"); a(f"s_lshl_b32 s{T1}, s{sW_}, 1"); a(f"s_add_u32 s{T0}, s{T0}, s{T1}")
    a(f"s_lshl_b32 s{T1}, s{T0}, 10"); a(f"s_lshl_b32 s{T0}, s{T0}, 2")
    a("v_lshlrev_b32 v5, 4, v1"); a(f"v_add_u32 v4, s{T1}, v5"); a(f"v_mov_b32 v{vGST}, s{T0}")
    a(f"s_lshl_b32 s{T0}, s{sTYPE}, 3"); a(f"s_add_u32 s{T0}, s{T0}, s{sGRP}"); a(f"s_lshl_b32 s{T0}, s{T0}, 3")
    a(f"s_lshl_b32 s{T1}, s{sRB}, 7"); a(f"s_add_u32 s{T0}, s{T0}, s{T1}"); a(f"s_add_u32 s{T0}, s{T0}, {FLAG_OFF}")
    a(f"s_lshl_b32 s{T1}, s{sRB}, 4")
    a("v_cmp_eq_u32 s[16:17], 0, v0"); a("v_mov_b32 v7, 0x40000000")
    a(f"v_mov_b32 v8, s{T0}"); a(f"v_mov_b32 v9, s{T1}")
    a(f"v_cndmask_b32 v{vFLG}, v7, v8, s[16:17]"); a(f"v_mov_b32 v{vCLR}, v9")
    a(f"s_lshl_b32 s{T0}, s{sU0}, 6"); a(f"s_mul_i32 s{T1}, s{sCH}, 192"); a(f"s_add_u32 s{T0}, s{T0}, s{T1}")
    a("v_lshlrev_b32 v6, 3, v2"); a(f"v_add_u32 v6, s{T0}, v6")
    a("s_waitcnt lgkmcnt(0)")
    stamp(a, 1)
    srd(a, 16, 4, 2048*1024)
    a(f"s_cmp_eq_u32 s{sTYPE}, 0")
    a("s_cselect_b32 s20, s6, s12"); a("s_cselect_b32 s21, s7, s13"); a(f"s_mov_b32 s22, {512*2752}"); a(f"s_cselect_b32 s22, {512*3072}, s22")
    a("s_and_b32 s21, s21, 0xffff"); a("s_mov_b32 s23, 0x00020000")
    srd(a, 24, 14, 2752); srd(a, 28, 46, 1024)
    a(f"s_add_u32 s36, s10, {G_OFF}"); a("s_addc_u32 s37, s11, 0"); a("s_and_b32 s37, s37, 0xffff")
    a("s_mov_b32 s38, 32768"); a("s_mov_b32 s39, 0x00020000")
    a("v_mov_b32 v7, 0")
    a(f"buffer_store_dword v7, v{vFLG}, s[36:39], 0 offen sc1")
    a(f"s_cmp_eq_u32 s{sW_}, 0"); a("s_cselect_b64 s[4:5], 1, 0")
    a(f"s_cmp_eq_u32 s{sTYPE}, 0"); a("s_cbranch_scc0 Lffn")
    phase1_role(a, "att")
    a.label("Lffn")
    phase1_role(a, "ffn")
    phase2(a)
    stamp_flush(a)
    a.label("Lend")
    a("s_endpgm")
    return a.text()

def main(out):
    t = kernel()
    src = "; Single launch: phase 1 (QKV projection + windowed attention | FFN1 + mish, gate), per-row-block counters in d_debug,\n"
    src += "; phase 2 (output projection of both branches, blended by the gate).\n"
    src += f"; @launch grid=(256,1,1) block=(256,1,1) lds={LDS_BYTES}\n"
    src += '.amdgcn_target "amdgcn-amd-amdhsa--gfx950"\n.text\n' + t + kd(KNAME, 512, 256)
    open(out, "w").write(src)

if __name__ == "__main__":
    if "--instr" in sys.argv: INSTR = True; sys.argv.remove("--instr")
    for x in list(sys.argv):
        if x.startswith("--"):
            sys.argv.remove(x); k, _, v = x[2:].partition("="); OPT[k] = int(v) if v else 1
    main(sys.argv[1] if len(sys.argv) > 1 else "cdna_kernels/" + NAME + ".s")
```

```python
import sys
from asmlib import *

NAME = "gated_mix__sliding_local_dilated__dense_activation_mish__prompt"
KNAME = NAME + "_kernel"
LOG2E = 0x3fb8aa3b
STAGE = 43008
WOFF = 18432
AWS_U = 131072
G_OFF = 8 << 20
LDS_BYTES = 163840
GA, GB, GC, GC2, R2 = 86016, 0, 43008, 86016 + 16*4096, 28672
INSTR = False
OPT = {}
STAMP_OFF = 16 << 20
NST = 12

sW_, sRB, sTYPE, sGRP = 40, 41, 42, 43
sRH, sCH, sBUF, sFREE, sXD, sXE, sWD, sKX, sKW, sKW2, sRS64, sIT, sU0 = range(52, 65)
T0, T1, T2, T3, T4, T5, T6 = range(65, 72)
XO, WO, XB, WB, XA, WA = 16, 21, 27, 29, 35, 37
WA1 = 208
GX, GW, GR, BIAS = 44, 52, 56, 58
vFLG, vCLR = 94, 95
FLAG_OFF = 16384
vGST, vBD, vBF, vAO, vGRD, vOUT = 86, 87, 88, 208, 92, 93
ACC = 96
BF32 = 70
SET = [0, 44]

def srd(a, s, ptr, size):
    a(f"s_mov_b32 s{s}, s{ptr}")
    a(f"s_and_b32 s{s+1}, s{ptr+1}, 0xffff")
    a(f"s_mov_b32 s{s+2}, {size}")
    a(f"s_mov_b32 s{s+3}, 0x00020000")

def istamp(a, k):
    if INSTR and OPT.get("iter"): a(f"{'s_memtime' if OPT.get('cyc') else 's_memrealtime'} s[{72+2*k}:{73+2*k}]")
def stamp(a, k):
    if OPT.get("iter") and k not in (0, NST-1): return
    if INSTR: a(f"{'s_memtime' if OPT.get('cyc') else 's_memrealtime'} s[{72+2*k}:{73+2*k}]")
def stamp_flush_dbg(a):
    a("s_waitcnt vmcnt(0) lgkmcnt(0)")
    stamp(a, NST-1)
    a("s_waitcnt lgkmcnt(0)")
    a(f"s_cmp_eq_u32 s{sW_}, 0"); a("s_cbranch_scc0 Ldbg_done")
    a("v_cmp_eq_u32 vcc, 0, v1"); a("s_and_saveexec_b64 s[28:29], vcc")
    slots = [1,2,3,5,6,7,9,10,11,13,14,15]
    order = [0, 0, 1, 3, 4, 5, 6, 7, 8, 9, 10, 11]
    for k, (sl, stp) in enumerate(zip(slots, order)):
        a(f"v_mov_b32 v2, s{72+2*stp}")
        if k == 0: a("v_not_b32 v2, v2")
        a(f"v_mov_b32 v3, {4*sl}")
        a("global_atomic_umax v3, v2, s[50:51]")
    a("s_mov_b64 exec, s[28:29]")
    a.label("Ldbg_done")
def stamp_flush(a):
    if not INSTR: return
    if OPT.get("dbg"): return stamp_flush_dbg(a)
    a("s_waitcnt vmcnt(0) lgkmcnt(0)")
    stamp(a, NST-1)
    a("s_waitcnt lgkmcnt(0)")
    a(f"s_add_u32 s24, s10, {STAMP_OFF}"); a("s_addc_u32 s25, s11, 0"); a("s_and_b32 s25, s25, 0xffff")
    a("s_mov_b32 s26, 65536"); a("s_mov_b32 s27, 0x00020000")
    a(f"s_lshl_b32 s{T0}, s2, 8"); a(f"s_lshl_b32 s{T1}, s{sW_}, 6"); a(f"s_add_u32 s{T0}, s{T0}, s{T1}")
    a(f"v_mov_b32 v0, s{T0}")
    a("v_cmp_eq_u32 vcc, 0, v1"); a("s_and_saveexec_b64 s[28:29], vcc")
    for k in range(NST):
        a(f"v_mov_b32 v2, s{72+2*k}"); a(f"buffer_store_dword v2, v0, s[24:27], 0 offen offset:{4*k}")
    a("s_mov_b64 exec, s[28:29]")

def bias_reg(ct, r):
    k = 4*ct + r
    return (BF32 + k) if k < 16 else (8 + k - 16)

def p1_reads(role, st, h):
    base = SET[st]
    nx = 5 if role == "att" else 4
    w = []
    for tt in range(6):
        off = h * 4096 + ((tt >> 1) * 8192 if role == "att" else 0)
        r = base + 20 + 4 * tt; ad = (WA if h == 0 else WA1) + (tt & 1 if role == "att" else tt)
        w.append(f"ds_read_b64_tr_b16 {ar(r,2)}, v{ad} offset:{off}")
        w.append(f"ds_read_b64_tr_b16 {ar(r+2,2)}, v{ad} offset:{off+512}")
    x = [f"ds_read_b128 {ar(base+4*t,4)}, v{XA+h} offset:{t*2048}" for t in range(nx)]
    if role == "att":
        return [w[4], w[5], x[0], x[1], x[2], w[6], w[7], x[3], x[4], w[0], w[1], w[2], w[3]] + w[8:]
    return [w[0], w[1], x[0], x[1], x[2], x[3]] + w[2:]

def p1_mfmas(role, st, first=False):
    base = SET[st]; X = lambda t: ar(base + 4*t, 4); W = lambda t: ar(base + 20 + 4*t, 4)
    out = []
    def m(c, A, B, cin=None):
        C = vr(c,4) if not first else cin
        out.append(f"v_mfma_f32_16x16x32_bf16 {vr(c,4)}, {A}, {B}, {C}")
    if role == "att":
        for a_ in range(2):
            for t in range(5): m(ACC + 4*(8 + 2*t + a_), W(2+a_), X(t), "0")
        for a_ in range(2):
            for t in range(1, 5): m(ACC + 4*(2*(t-1) + a_), W(a_), X(t), "0")
        for a_ in range(2):
            for t in range(5): m(ACC + 4*(18 + 2*t + a_), X(t), W(4+a_), "0")
    else:
        for ct in range(6):
            for rt in range(4): m(ACC + 4*(6*rt + ct), W(ct), X(rt), vr(bias_reg(ct,0), 4))
    return out

def dma_x(role, bufreg):
    g = []
    if role == "att":
        g.append(([f"s_add_u32 m0, s{bufreg}, s{sXE}"],
                  [f"s_cmp_lt_u32 s{sW_}, 2", "s_cbranch_scc0 1f", f"buffer_load_dwordx4 v{XO+4}, s[16:19], s{sKX} offen lds", "1:"]))
    for j in range(4):
        m = f"s_add_u32 m0, s{bufreg}, s{sXD}" if j == 0 else "s_add_u32 m0, m0, 1024"
        g.append(([m], [f"buffer_load_dwordx4 v{XO+j}, s[16:19], s{sKX} offen lds"]))
    return g
def dma_w(bufreg, js, sw):
    g = []
    for k, j in enumerate(js):
        if k == 0: m = [f"s_add_u32 m0, s{bufreg}, s{sWD}"] + ([f"s_add_u32 m0, m0, {1024*j}"] if j else [])
        else: m = ["s_add_u32 m0, m0, 1024"]
        g.append((m, [f"buffer_load_dwordx4 v{WO+j}, s[20:23], s{sw} offen lds"]))
    return g
def h1(role, buf): return dma_x(role, buf) + dma_w(buf, [0], sKW)
def h2(role, buf, sw=None): return dma_w(buf, [1,2,3,4,5], sKW2 if sw is None else sw)

SCC_READ = ("s_cselect", "s_cbranch_scc", "s_addc", "s_subb")
SCC_WRITE = ("s_cmp", "s_add_u32", "s_sub_u32", "s_addc", "s_subb", "s_and_b", "s_or_b", "s_xor_b", "s_lshl_b", "s_lshr_b", "s_bitcmp", "s_add_i32")
def chunks(lines):
    n = len(lines); live = [False]*(n+1)
    for i in range(n-1, -1, -1):
        x = lines[i]
        if x.startswith(SCC_READ): live[i] = True
        elif x.startswith(SCC_WRITE): live[i] = False
        else: live[i] = live[i+1]
    out = []
    for i, x in enumerate(lines):
        if out and live[i]: out[-1].append(x)
        else: out.append([x])
    return out
def capture(fn, *args):
    t = Asm(); fn(t, *args); return [x.strip() for x in t.L]

def emit_pairs(a, pairs):
    for m, l in pairs:
        for x in m: a(x)
        a("s_nop 0")
        for x in l: a(x)

def schedule(mf, reads, dmas, extra=(), dma_first=2, read_span=20, xspan=None, tail=()):
    n = len(mf); after = [[] for _ in range(n)]
    if dmas:
        step = (n - dma_first) / len(dmas)
        for k, (m, l) in enumerate(dmas):
            p = int(dma_first + k * step)
            after[max(p-1, 0)] += m
            after[p] += l
    for k, r in enumerate(reads):
        after[min(int(k * read_span / len(reads)), n-1)].insert(0, r)
    for k, x in enumerate(extra):
        lo, hi = xspan or (0, n)
        after[min(int(lo + k * (hi - lo) / len(extra)), n-1)] += (x if isinstance(x, list) else [x])
    for k, x in enumerate(tail):
        after[n - len(tail) - 1 + k] += (x if isinstance(x, list) else [x])
    out = []
    for i in range(n):
        out.append(mf[i]); out += after[i]
    return out

sPRV, sCUR, sNXT = sFREE, sBUF, sIT + 0
sNXT = 63
def addr_set(role, h, sreg):
    n = 2 if role == "att" else 6
    w = WA if h == 0 else WA1
    return [f"v_add_u32 v{XA+h}, s{sreg}, v{XB+h}"] + [f"v_add_u32 v{w+t}, s{sreg}, v{WB+t}" for t in range(n)]
def rot_instrs():
    return [[f"s_mov_b32 s{T0}, s{sPRV}", f"s_mov_b32 s{sPRV}, s{sCUR}"], [f"s_mov_b32 s{sCUR}, s{sNXT}", f"s_mov_b32 s{sNXT}, s{T0}"]]
def adv_k():
    return [f"s_add_u32 s{sKX}, s{sKX}, 128", f"s_and_b32 s{sKX}, s{sKX}, 1023",
            f"s_add_u32 s{sKW}, s{sKW}, s{sRS64}", f"s_cmp_eq_u32 s{sKW}, s22", f"s_cselect_b32 s{sKW}, 0, s{sKW}"]
def adv_x(): return [f"s_add_u32 s{sKX}, s{sKX}, 128", f"s_and_b32 s{sKX}, s{sKX}, 1023"]
def adv_w(): return [f"s_add_u32 s{sKW}, s{sKW}, s{sRS64}", f"s_cmp_eq_u32 s{sKW}, s22", f"s_cselect_b32 s{sKW}, 0, s{sKW}"]
def with_adv(pieces, adv):
    m, l = pieces[-1]
    return pieces[:-1] + [(m, l + adv)]
def all_x(role, buf): return with_adv(dma_x(role, buf), adv_x())
def all_w(buf): return with_adv(dma_w(buf, [0,1,2,3,4,5], sKW), adv_w())
def adv_instrs():
    return [[f"s_mov_b32 s{sKW2}, s{sKW}"] + adv_k()]

def gate_instrs():
    g = []
    for q in range(4):
        for row in range(2):
            g.append(f"v_dot2_f32_bf16 v{GR+row}, v{GX+4*row+q}, v{GW+q}, {'0' if q == 0 else 'v%d' % (GR+row)}")
    g += ["s_nop 0", "s_nop 0"]
    for sh in (8, 4, 2, 1):
        for row in range(2):
            g.append(f"v_add_f32_dpp v{GR+row}, v{GR+row}, v{GR+row} row_ror:{sh} row_mask:0xf bank_mask:0xf")
    for op in ("v_permlane16_swap_b32", "v_permlane32_swap_b32"):
        for row in range(2): g.append(f"v_mov_b32 v{4+row}, v{GR+row}")
        for row in range(2): g.append(f"{op} v{GR+row}, v{4+row}")
        for row in range(2): g.append(f"v_add_f32 v{GR+row}, v{GR+row}, v{4+row}")
    for row in range(2): g.append(f"v_mul_f32 v{GR+row}, 0xbfb8aa3b, v{GR+row}")
    for row in range(2): g.append(f"v_exp_f32 v{GR+row}, v{GR+row}")
    for row in range(2): g.append(f"v_add_f32 v{GR+row}, 1.0, v{GR+row}")
    for row in range(2): g.append(f"v_rcp_f32 v{GR+row}, v{GR+row}")
    return g

def body(a, role, d1, d2, wait, first=False, last=False, x1=(), x2=(), dx1=(), dx2=(), loop=None, tail1=(), noadv=False):
    up0 = addr_set(role, 0, sNXT) if not last else []
    for x in schedule(p1_mfmas(role, 0, first), p1_reads(role, 1, 1), list(d1) + list(dx1), list(x1) + up0,
                      dma_first=1 if first else 2, tail=tail1, xspan=(0, 18)): a(x)
    if last:
        a("s_waitcnt lgkmcnt(0)")
        a("s_barrier")
        for x in schedule(p1_mfmas(role, 1), [], list(d2) + list(dx2), x2): a(x)
        return
    a(f"s_waitcnt vmcnt({wait}) lgkmcnt(0)")
    a("s_barrier")
    tail = (adv_instrs() if d2 and not noadv else []) + rot_instrs()
    if loop: tail.append([f"s_add_u32 s{sLOOP}, s{sLOOP}, 1", f"s_cmp_lt_u32 s{sLOOP}, {loop[1]}"])
    for x in schedule(p1_mfmas(role, 1), p1_reads(role, 0, 0), list(d2) + list(dx2), list(x2) + addr_set(role, 1, sNXT),
                      tail=tail, xspan=(0, 20)): a(x)
    a("s_waitcnt lgkmcnt(0)")
    if loop: a(f"s_cbranch_scc1 {loop[0]}")

sLOOP = 66
sBA, sBB, sBC, sBR = 96, 97, 98, 101
def b_base(step):
    if step < 4: return sBA, step*4096
    if step < 6: return sBB, (step-4)*4096
    if step < 9: return sBC + step - 6, 0
    if step < 13: return sBA, (step-9)*4096
    if step < 15: return sBB, (step-13)*4096
    return sBC, 0
sUB, sBO, sUA = 44, 45, 8
def next_step(u, dst, shift, pos):
    if pos >= 14:
        l = [f"s_cmp_gt_u32 s{sN2}, {pos}", f"s_cselect_b32 s{dst}, s{u}, 31", f"s_lshl_b32 s{dst}, s{dst}, {shift}"]
    else:
        l = [f"s_lshl_b32 s{dst}, s{u}, {shift}"]
    return l + [f"s_add_u32 s{u}, s{u}, 1", f"s_cmp_eq_u32 s{u}, s{sN2}", f"s_cselect_b32 s{u}, 0, s{u}"]
def b_dma(step):
    g = []; sb, im = b_base(step)
    for dd in range(4):
        m = next_step(sUB, sBO, 15, step) if dd == 0 else []
        g.append((m + [f"s_add_u32 m0, s{sb}, {im + dd*1024}", f"s_add_u32 s57, s{sBO}, {dd*8192}"],
                  [f"buffer_load_dwordx4 v{vBD}, s[24:27], s57 offen lds"]))
    return g
def b_addr(step, regs):
    sb, im = b_base(step)
    return [f"v_add_u32 v{regs[c]}, s{sb}, v{vBF+c}" for c in range(4)]
def b_reads(step, dst, regs):
    out = []; sb, im = b_base(step)
    for c in range(4):
        out.append(f"ds_read_b64_tr_b16 {ar(dst+4*c,2)}, v{regs[c]} offset:{im}")
        out.append(f"ds_read_b64_tr_b16 {ar(dst+4*c+2,2)}, v{regs[c]} offset:{im+2048}")
    return out

sRB2, sCT2, sU2, sN2 = 12, 13, 14, 15
def p2_scalar_setup(a):
    a(f"s_and_b32 s{T0}, s2, 7"); a(f"s_lshr_b32 s{T1}, s2, 3")
    if OPT.get("p2b", 1) == 1:
        a(f"s_lshl_b32 s{sRB2}, s{T0}, 2"); a(f"s_lshr_b32 s{T2}, s{T1}, 3"); a(f"s_add_u32 s{sRB2}, s{sRB2}, s{T2}")
        a(f"s_and_b32 s{sCT2}, s{T1}, 7")
    else:
        a(f"s_lshr_b32 s{sRB2}, s{T0}, 1"); a(f"s_lshl_b32 s{sRB2}, s{sRB2}, 3"); a(f"s_lshr_b32 s{T2}, s{T1}, 2"); a(f"s_add_u32 s{sRB2}, s{sRB2}, s{T2}")
        a(f"s_and_b32 s{sCT2}, s{T0}, 1"); a(f"s_lshl_b32 s{sCT2}, s{sCT2}, 2"); a(f"s_and_b32 s{T2}, s{T1}, 3"); a(f"s_add_u32 s{sCT2}, s{sCT2}, s{T2}")
    a(f"s_mov_b32 s{sU2}, 0"); a(f"s_mov_b32 s{sN2}, 16")
    for w, u0, n in ((1,16,15), (2,31,14), (3,45,14)):
        a(f"s_cmp_eq_u32 s{sW_}, {w}"); a(f"s_cselect_b32 s{sU2}, {u0}, s{sU2}"); a(f"s_cselect_b32 s{sN2}, {n}, s{sN2}")
    a(f"s_lshl_b32 s{sBA}, s{sW_}, 14"); a(f"s_add_u32 s{sBA}, s{sBA}, {GA}")
    a(f"s_lshl_b32 s{sBB}, s{sW_}, 13")
    a(f"s_mul_i32 s{T0}, s{sW_}, 12288"); a(f"s_add_u32 s{T0}, s{T0}, {GC}")
    for k in range(3):
        a(f"s_add_u32 s{sBC+k}, s{T0}, {4096*k}")
    a(f"s_cmp_eq_u32 s{sW_}, 3")
    a(f"s_cselect_b32 s{sBC+1}, {GC2}, s{sBC+1}"); a(f"s_cselect_b32 s{sBC+2}, {GC2+4096}, s{sBC+2}")
    a(f"s_mul_i32 s{sBR}, s{sW_}, {R2}")
    a(f"s_sub_u32 s{T0}, s{sU2}, 16"); a(f"s_lshl_b32 s{T0}, s{T0}, 15"); a(f"s_add_u32 s{T2}, s44, s{T0}"); a(f"s_addc_u32 s{T3}, s45, 0")
    a(f"s_cmp_eq_u32 s{sW_}, 0"); a(f"s_cselect_b32 s24, s8, s{T2}"); a(f"s_cselect_b32 s25, s9, s{T3}"); a("s_and_b32 s25, s25, 0xffff")
    a(f"s_lshl_b32 s26, s{sN2}, 15"); a("s_mov_b32 s27, 0x00020000")
    a(f"s_mul_i32 s{T0}, s{sU2}, {AWS_U}"); a(f"s_add_u32 s28, s10, s{T0}"); a("s_addc_u32 s29, s11, 0"); a("s_and_b32 s29, s29, 0xffff")
    a(f"s_mul_i32 s30, s{sN2}, {AWS_U}"); a("s_mov_b32 s31, 0x00020000")
    a(f"s_and_b32 s{T0}, s{sRB2}, 3"); a(f"s_lshl_b32 s{T0}, s{T0}, 2"); a(f"s_lshl_b32 s{T1}, s{sCT2}, 1"); a(f"s_add_u32 s{T0}, s{T0}, s{T1}")
    if not OPT.get("rot2", 1): a(f"s_mov_b32 s{T0}, 0")
    a(f"s_sub_u32 s{T1}, s{T0}, s{sN2}"); a(f"s_cmp_ge_u32 s{T0}, s{sN2}"); a(f"s_cselect_b32 s{sUB}, s{T1}, s{T0}")
    a(f"s_mov_b32 s{sUA}, s{sUB}")

def mix(a, valu, dmas, every):
    d = list(dmas); cnt = 0
    for k, x in enumerate(valu):
        a(x)
        if x.endswith(":") or x.startswith("s_cbranch"): continue
        cnt += 1
        if d and cnt % every == every - 2:
            for y in d[0][0]: a(y)
        if d and cnt % every == 0:
            for y in d[0][1]: a(y)
            d.pop(0)
    return d

def att_epilogue():
    e = []
    Q = lambda t, h: ACC + 4*(2*(t-1) + h)
    Kc = lambda t, h: ACC + 4*(8 + 2*t + h)
    V = lambda t, h: ACC + 4*(18 + 2*t + h)
    KF, VF, QF = 208, 228, 16
    kf = lambda t, h: KF + 10*h + 2*t
    vf = lambda t, h: VF + 10*h + 2*t
    qf = lambda t, h: QF + 2*(2*(t-1) + h)
    cv = lambda d, s: [f"v_cvt_pk_bf16_f32 v{d}, v{s}, v{s+1}", f"v_cvt_pk_bf16_f32 v{d+1}, v{s+2}, v{s+3}"]
    combos = [(t,h) for t in range(1,5) for h in range(2)]
    MC, MP, MF, SEL0, SEL1, ONES = 44, 46, 48, 50, 51, 52
    for t in range(5):
        for h in range(2): e += cv(kf(t,h), Kc(t,h))
    for (t,h) in combos: e += cv(qf(t,h), Q(t,h))
    S = lambda ci, blk: ACC + 8*ci + 4*blk
    vcv = []
    for t in range(5):
        for h in range(2): vcv += cv(vf(t,h), V(t,h))
    sm = []
    for ci,(t,h) in enumerate(combos):
        sm.append(f"v_mfma_f32_16x16x16_bf16 {vr(S(ci,0),4)}, {vr(kf(t-1,h),2)}, {vr(qf(t,h),2)}, 0")
        sm.append(f"v_mfma_f32_16x16x16_bf16 {vr(S(ci,1),4)}, {vr(kf(t,h),2)}, {vr(qf(t,h),2)}, 0")
    e.append("s_nop 1")
    for k, m in enumerate(sm):
        e.append(m)
        e += vcv[k*20//16:(k+1)*20//16]
    e += ["s_nop 7"]
    A = lambda ci: 160 + 4*ci
    for ci in range(8):
        for blk in range(2):
            s = S(ci, blk)
            e.append(f"v_cndmask_b32 v{A(ci)+2*blk}, v{s}, v{s+1}, s[46:47]")
            e.append(f"v_cndmask_b32 v{A(ci)+2*blk+1}, v{s+2}, v{s+3}, s[46:47]")
    for ci,(t,h) in enumerate(combos):
        mp = MF if t == 1 else MP
        e.append(f"v_pk_fma_f32 {vr(A(ci),2)}, {vr(A(ci),2)}, s[4:5], {vr(mp,2)} op_sel_hi:[1,0,1]")
        e.append(f"v_pk_fma_f32 {vr(A(ci)+2,2)}, {vr(A(ci)+2,2)}, s[4:5], {vr(MC,2)} op_sel_hi:[1,0,1]")
    MX = 4
    for ci in range(8):
        e.append(f"v_max3_f32 v{MX+ci}, v{A(ci)}, v{A(ci)+1}, v{A(ci)+2}")
    for ci in range(8):
        e.append(f"v_max_f32 v{MX+ci}, v{MX+ci}, v{A(ci)+3}")
    for q in range(2):
        b = MX + 4*q
        e += ["s_nop 0"] if q == 0 else []
        e.append(f"v_permlane32_swap_b32 v{b}, v{b+1}"); e.append(f"v_permlane32_swap_b32 v{b+2}, v{b+3}")
    for q in range(2):
        b = MX + 4*q
        e.append(f"v_max_f32 v{b}, v{b}, v{b+1}"); e.append(f"v_max_f32 v{b+2}, v{b+2}, v{b+3}")
    e.append("s_nop 0")
    for q in range(2):
        b = MX + 4*q
        e.append(f"v_permlane16_swap_b32 v{b}, v{b+2}")
    e.append("s_nop 0")
    for q in range(2):
        b = MX + 4*q
        e.append(f"v_max_f32 v{b}, v{b}, v{b+2}")
    for q in range(2):
        b = MX + 4*q
        e.append(f"v_mov_b32 v{b+1}, v{b}")
    e.append("s_nop 0")
    for q in range(2):
        b = MX + 4*q
        e.append(f"v_permlane32_swap_b32 v{b}, v{b+1}")
    e.append("s_nop 0")
    for q in range(2):
        b = MX + 4*q
        e.append(f"v_mov_b32 v{b+2}, v{b}"); e.append(f"v_mov_b32 v{b+3}, v{b+1}")
    e.append("s_nop 0")
    for q in range(2):
        b = MX + 4*q
        e.append(f"v_permlane16_swap_b32 v{b}, v{b+2}")
        e.append(f"v_permlane16_swap_b32 v{b+1}, v{b+3}")
    e.append("s_nop 0")
    for ci in range(8):
        e.append(f"v_pk_add_f32 {vr(A(ci),2)}, {vr(A(ci),2)}, {vr(MX+ci - (MX+ci)%2,2)} op_sel:[0,{(MX+ci)%2}] op_sel_hi:[1,{(MX+ci)%2}] neg_lo:[0,1] neg_hi:[0,1]")
        e.append(f"v_pk_add_f32 {vr(A(ci)+2,2)}, {vr(A(ci)+2,2)}, {vr(MX+ci - (MX+ci)%2,2)} op_sel:[0,{(MX+ci)%2}] op_sel_hi:[1,{(MX+ci)%2}] neg_lo:[0,1] neg_hi:[0,1]")
    P = lambda ci: ACC + 4*ci
    for ci in range(8):
        for r in range(4): e.append(f"v_exp_f32 v{A(ci)+r}, v{A(ci)+r}")
        if ci > 0:
            c1 = ci - 1
            e += [f"v_cvt_pk_bf16_f32 v12, v{A(c1)}, v{A(c1)+1}", f"v_cvt_pk_bf16_f32 v13, v{A(c1)+2}, v{A(c1)+3}",
                  f"v_perm_b32 v{P(c1)}, v12, v12, v{SEL0}", f"v_perm_b32 v{P(c1)+1}, v12, v12, v{SEL1}",
                  f"v_perm_b32 v{P(c1)+2}, v13, v13, v{SEL0}", f"v_perm_b32 v{P(c1)+3}, v13, v13, v{SEL1}"]
    e.append("s_nop 0")
    e += [f"v_cvt_pk_bf16_f32 v12, v{A(7)}, v{A(7)+1}", f"v_cvt_pk_bf16_f32 v13, v{A(7)+2}, v{A(7)+3}",
          f"v_perm_b32 v{P(7)}, v12, v12, v{SEL0}", f"v_perm_b32 v{P(7)+1}, v12, v12, v{SEL1}",
          f"v_perm_b32 v{P(7)+2}, v13, v13, v{SEL0}", f"v_perm_b32 v{P(7)+3}, v13, v13, v{SEL1}"]
    e.append("s_nop 1")
    O = lambda ci: 128 + 4*ci
    L = lambda ci: 160 + 4*ci
    for ci,(t,h) in enumerate(combos):
        e.append(f"v_mfma_f32_16x16x32_bf16 {vr(O(ci),4)}, {vr(vf(t-1,h),4)}, {vr(P(ci),4)}, 0")
        e.append(f"v_mfma_f32_16x16x32_bf16 {vr(L(ci),4)}, {vr(ONES,4)}, {vr(P(ci),4)}, 0")
    e.append("s_nop 6")
    for ci in range(8): e.append(f"v_rcp_f32 v{MX+ci}, v{L(ci)}")
    e.append("s_nop 0")
    for ci in range(8):
        sel = (MX+ci) % 2; pr = vr(MX+ci - sel, 2)
        e.append(f"v_pk_mul_f32 {vr(O(ci),2)}, {vr(O(ci),2)}, {pr} op_sel:[0,{sel}] op_sel_hi:[1,{sel}]")
        e.append(f"v_pk_mul_f32 {vr(O(ci)+2,2)}, {vr(O(ci)+2,2)}, {pr} op_sel:[0,{sel}] op_sel_hi:[1,{sel}]")
    for t in range(1,5):
        d = 16 + 4*(t-1)
        for h in range(2): e += cv(d + 2*h, O(2*(t-1)+h))
        e.append(f"buffer_store_dwordx4 {vr(d,4)}, v14, s[32:35], s{T6} offen offset:{(t-1)*1024} sc1")
    return e

def att_consts(a):
    a("s_mov_b32 s46, 0xaaaaaaaa"); a("s_mov_b32 s47, 0xaaaaaaaa")
    a("s_mov_b32 s4, 0x3eb8aa3b"); a("s_mov_b32 s5, 0x3eb8aa3b")
    a("v_and_b32 v8, 14, v3"); a("v_lshlrev_b32 v9, 2, v2"); a("v_sub_u32 v8, v8, v9")
    a("v_mov_b32 v9, 0xf149f2ca")
    for dst, blk in ((44, 0), (46, 16)):
        for k in range(2):
            a(f"v_add_u32 v10, {blk - 2*k}, v8")
            a("v_cmp_gt_u32 s[6:7], 15, v10")
            a("s_nop 1")
            a(f"v_cndmask_b32 v{dst+k}, v9, 0, s[6:7]")
    a(f"s_or_b32 s{T0}, s{sRB}, s{sRH}"); a(f"s_cmp_eq_u32 s{T0}, 0"); a("s_cselect_b64 s[6:7], -1, 0")
    for k in range(2): a(f"v_cndmask_b32 v{48+k}, v{46+k}, v9, s[6:7]")
    a("v_mov_b32 v50, 0x0c0c0100"); a("v_mov_b32 v10, 0x01000c0c"); a("v_cndmask_b32 v50, v50, v10, s[46:47]")
    a("v_mov_b32 v51, 0x0c0c0302"); a("v_mov_b32 v10, 0x03020c0c"); a("v_cndmask_b32 v51, v51, v10, s[46:47]")
    for r in range(4): a(f"v_mov_b32 v{52+r}, 0x3f803f80")
    a(f"s_lshl_b32 s{T6}, s{sGRP}, 1"); a(f"s_add_u32 s{T6}, s{T6}, s{sCH}"); a(f"s_mul_i32 s{T6}, s{T6}, {AWS_U}")
    a(f"s_lshl_b32 s{T0}, s{sRB}, 3"); a(f"s_lshl_b32 s{T1}, s{sRH}, 2"); a(f"s_add_u32 s{T0}, s{T0}, s{T1}"); a(f"s_lshl_b32 s{T0}, s{T0}, 10")
    a("v_lshlrev_b32 v14, 4, v1"); a(f"v_add_u32 v14, s{T0}, v14")

def ffn_pairs(m, rr, D):
    e = []
    prs = [ACC + 4*(6*rr + 2*m + hh) + 2*q for hh in range(2) for q in range(2)]
    T = [16 + 2*k for k in range(4)]
    for k in range(4): e.append(f"v_pk_mul_f32 {vr(T[k],2)}, {vr(prs[k],2)}, s[4:5] op_sel_hi:[1,0]")
    for k in range(4):
        e.append(f"v_exp_f32 v{T[k]}, v{T[k]}"); e.append(f"v_exp_f32 v{T[k]+1}, v{T[k]+1}")
    U = [24 + 2*k for k in range(4)]
    for k in range(4): e.append(f"v_pk_fma_f32 {vr(U[k],2)}, {vr(T[k],2)}, 0.5, 1.0 op_sel_hi:[1,0,0]")
    for k in range(4): e.append(f"v_pk_fma_f32 {vr(U[k],2)}, {vr(U[k],2)}, {vr(T[k],2)}, 1.0 op_sel_hi:[1,1,0]")
    for k in range(4):
        e.append(f"v_rcp_f32 v{U[k]}, v{U[k]}"); e.append(f"v_rcp_f32 v{U[k]+1}, v{U[k]+1}")
    for k in range(4): e.append(f"v_pk_fma_f32 {vr(prs[k],2)}, {vr(prs[k],2)}, {vr(U[k],2)}, {vr(prs[k],2)} neg_lo:[1,0,0] neg_hi:[1,0,0]")
    for k in range(4): e.append(f"v_cvt_pk_bf16_f32 v{D+k}, v{prs[k]}, v{prs[k]+1}")
    return e

def ffn_epilogue(nunits):
    e = []
    for m in range(nunits):
        for rr in range(4):
            D = 32 + 4*(rr & 1)
            e += ffn_pairs(m, rr, D)
            e.append(f"buffer_store_dwordx4 {vr(D,4)}, v14, s[32:35], s{T6} offen offset:{rr*1024} sc1")
        e.append(f"s_add_u32 s{T6}, s{T6}, {AWS_U}")
    return e

def ffn_consts(a):
    a(f"s_mov_b32 s4, {LOG2E}"); a(f"s_mov_b32 s5, {LOG2E}")
    a(f"s_mul_i32 s{T6}, s{sCH}, 3"); a(f"s_add_u32 s{T6}, s{T6}, s{sU0}"); a(f"s_add_u32 s{T6}, s{T6}, 16"); a(f"s_mul_i32 s{T6}, s{T6}, {AWS_U}")
    a(f"s_lshl_b32 s{T0}, s{sRB}, 3"); a(f"s_lshl_b32 s{T1}, s{sRH}, 2"); a(f"s_add_u32 s{T0}, s{T0}, s{T1}"); a(f"s_lshl_b32 s{T0}, s{T0}, 10")
    a("v_lshlrev_b32 v14, 4, v1"); a(f"v_add_u32 v14, s{T0}, v14")

def gate_store(a):
    a("v_cmp_eq_u32 s[68:69], 0, v1")
    a("s_nop 1")
    a("s_and_saveexec_b64 s[66:67], s[68:69]")
    a(f"buffer_store_dwordx2 {vr(GR,2)}, v{vGST}, s[36:39], 0 offen sc1")
    a("s_mov_b64 exec, s[66:67]")

NB1 = 9
def weave(a, main, inserts):
    ins = {}
    for p, l in inserts: ins.setdefault(min(p, len(main)-1), []).extend(l)
    for i, x in enumerate(main):
        a(x)
        for y in ins.get(i, []): a(y)

def dma_inserts(dmas, lo, hi):
    out = []
    for k, (m, l) in enumerate(dmas):
        p = int(lo + 2 + k * (hi - lo - 2) / len(dmas))
        out.append((p - 2, m)); out.append((p, l))
    return out

def b_copy(steps):
    tr = [60, 61, 62, 63]; out = []; last = None
    for st in steps:
        sb = b_base(st)[0]
        if sb != last: out += b_addr(st, tr)
        last = sb
        out += b_reads(st, 16*st, tr)
    return out

def is_vmem(x): return x.startswith("buffer_") or x.startswith("global_")
def resolve_waits(flat, init):
    out = []
    for i, x in enumerate(flat):
        if x.startswith("@wait"):
            tag = x.split()[1]
            pos = [j for j in range(i) if flat[j].endswith("; " + tag)]
            n = sum(1 for y in flat[pos[-1]+1:i] if is_vmem(y)) if pos else init[tag] + sum(1 for y in flat[:i] if is_vmem(y))
            out.append(f"s_waitcnt vmcnt({n})")
        else: out.append(x)
    return out
def weave_list(main, inserts):
    ins = {}
    for p, l in inserts: ins.setdefault(min(p, len(main)-1), []).extend(l)
    out = []
    for i, x in enumerate(main):
        out.append(x); out += ins.get(i, [])
    return out
def tag_last(dmas, tag):
    m, l = dmas[-1]
    return dmas[:-1] + [(m, [l[0] + " ; " + tag] + l[1:])]

def staged_epilogue(a, e, rest, P):
    n = len(e)
    r2 = []
    for st in range(NB1, 16): r2 += b_dma(st)
    ins = dma_inserts(tag_last(rest, "R1"), 0, P["r1"])
    ins.append((P["w1"], ["@wait S5"]))
    cp = b_copy(range(0, 6))
    for k, x in enumerate(cp): ins.append((P["w1"] + 1 + int(k * (P["c1"] - P["w1"] - 1) / len(cp)), [x]))
    ins.append((P["c1"] + 2, ["s_waitcnt lgkmcnt(0)"]))
    k2 = P["n2"]; assert k2 <= 24
    ins += dma_inserts(r2[:k2], P["c1"] + 3, P["d2"])
    ins.append((P["w2"], ["@wait R1"]))
    cp = b_copy(range(6, 9))
    for k, x in enumerate(cp): ins.append((P["w2"] + 1 + int(k * (P["c2"] - P["w2"] - 1) / len(cp)), [x]))
    assert P["c2"] < n
    flat = resolve_waits(weave_list(e, ins), {"S5": OPT.get("b7", 8) + 1})
    for x in flat: a(x)
    return r2[k2:]

def count_vmem(lines): return sum(1 for x in lines if x.startswith("buffer_") or x.startswith("global_"))

def epilogue_with_staging(a, R, e, rest, frac):
    n = len(e)
    p_r1, p_cp0, p_cp1, p_bar = frac[0], int(n*frac[1]), int(n*frac[2]), int(n*frac[3])
    assert count_vmem(e[:p_r1+1]) == 0
    ins = dma_inserts(rest, 0, p_r1)
    later = count_vmem(e[:p_cp0+1])
    ins.append((p_cp0, [f"s_waitcnt vmcnt({later})"]))
    cp = round1_copy()
    for k, x in enumerate(cp): ins.append((p_cp0 + int(k * (p_cp1 - p_cp0) / len(cp)), [x]))
    ins.append((p_bar, ["s_waitcnt lgkmcnt(0)", "s_barrier"]))
    r2 = []
    for st in range(NB1, 16): r2 += b_dma(st)
    k2 = OPT.get(R + "r2", 10)
    ins += dma_inserts(r2[:k2], p_bar + 1, n - 1)
    weave(a, e, ins)
    return r2[k2:]

def phase1_role(a, R):
    a(f"s_lshr_b32 s{T0}, s2, 5"); a(f"s_mul_i32 s{T0}, s{T0}, {OPT.get('rA', 1)}")
    a(f"s_lshr_b32 s{T1}, s2, 3"); a(f"s_and_b32 s{T1}, s{T1}, 3"); a(f"s_mul_i32 s{T1}, s{T1}, {OPT.get('rB', 2)}"); a(f"s_add_u32 s{T0}, s{T0}, s{T1}")
    a(f"s_and_b32 s{T1}, s2, 1"); a(f"s_mul_i32 s{T1}, s{T1}, {OPT.get('rC', 0)}"); a(f"s_add_u32 s{T0}, s{T0}, s{T1}")
    a(f"s_lshl_b32 s{T0}, s{T0}, {OPT.get('rS', 0)}"); a(f"s_and_b32 s{T0}, s{T0}, {OPT.get('rM', 7)}")
    a(f"s_lshl_b32 s{sKX}, s{T0}, 7"); a(f"s_mul_i32 s{sKW}, s{T0}, s{sRS64}")
    if R == "ffn":
        for tt in range(6): a(f"buffer_load_dwordx2 {vr(BIAS+2*tt,2)}, v6, s[24:27], 0 offen offset:{tt*32}")
    late = chunks(capture(late_setup, R))
    a(f"s_mov_b32 s{sCUR}, 0"); a(f"s_mov_b32 s{sNXT}, {STAGE}"); a(f"s_mov_b32 s{sPRV}, {2*STAGE}")
    gl = [f"buffer_load_dwordx4 {vr(GX,4)}, v4, s[16:19], 0 offen", f"buffer_load_dwordx4 {vr(GX+4,4)}, v4, s[16:19], 0 offen offset:1024",
          f"buffer_load_dwordx4 {vr(GW,4)}, v5, s[28:31], 0 offen"]
    emit_pairs(a, all_x(R, sCUR)); emit_pairs(a, all_w(sCUR))
    for x in gl: a(x)
    pieces = all_x(R, sNXT)
    per = -(-len(late) // (len(pieces) + 1)); k = 0
    for m, l in pieces:
        for ch in late[k:k+per]:
            for x in ch: a(x)
        k += per
        for x in m: a(x)
        a("s_nop 0")
        for x in l: a(x)
    for ch in late[k:]:
        for x in ch: a(x)
    stamp(a, 2)
    for x in addr_set(R, 0, sCUR) + addr_set(R, 1, sCUR): a(x)
    if R == "ffn":
        a("s_waitcnt vmcnt(17)")
        for tt in range(6):
            for q in range(2):
                a(f"v_lshlrev_b32 v{bias_reg(tt,2*q)}, 16, v{BIAS+2*tt+q}")
                a(f"v_and_b32 v{bias_reg(tt,2*q+1)}, 0xffff0000, v{BIAS+2*tt+q}")
    a("s_waitcnt vmcnt(4)")
    a("s_barrier")
    stamp(a, 3)
    for x in p1_reads(R, 0, 0): a(x)
    a("s_waitcnt lgkmcnt(0)")
    istamp(a, 1)
    body(a, R, all_w(sNXT) + all_x(R, sPRV), all_w(sPRV) + all_x(R, sCUR), 4, first=True, noadv=True)
    istamp(a, 2)
    body(a, R, all_w(sPRV), h1(R, sCUR), 10, x2=[["v_mov_b32 v7, 1", "s_and_saveexec_b64 s[6:7], s[4:5]", "s_cbranch_execz 2f", f"global_atomic_add v{vCLR}, v7, s[50:51] sc1", "2:", "s_mov_b64 exec, s[6:7]"]])
    if OPT.get("iter"):
        for it in range(2, 5):
            istamp(a, 1 + it)
            body(a, R, h2(R, sPRV), h1(R, sCUR), 10)
    else:
        a(f"s_mov_b32 s{sLOOP}, 2")
        a.label(f"L{R}_loop")
        body(a, R, h2(R, sPRV), h1(R, sCUR), 10, loop=(f"L{R}_loop", 5))
    istamp(a, 6)
    bd = []
    for st in range(NB1): bd += b_dma(st)
    n = OPT.get("bper", 6)
    assert 4*n <= 24 and 3*n <= 24 and 2*n <= 16
    body(a, R, h2(R, sPRV), [], 10, dx2=bd[:n])
    g = gate_instrs()
    istamp(a, 7)
    body(a, R, [], [], 2*n, x1=g[:22], x2=g[22:], dx1=bd[n:2*n], dx2=bd[2*n:3*n])
    fl = chunks(capture(att_consts if R == "att" else ffn_consts))
    istamp(a, 8)
    n7 = OPT.get("b7", 8)
    body(a, R, [], [], 0, last=True, x1=fl, dx1=bd[3*n:4*n], dx2=bd[4*n:4*n+n7])
    rest = bd[4*n+n7:]
    istamp(a, 9)
    stamp(a, 4)
    a("global_load_dword v64, v43, s[50:51] sc1")
    a.nop(8)
    if R == "att":
        weave(a, att_epilogue(), dma_inserts(rest, 0, 40))
    else:
        e = ffn_epilogue(3); k = 2*len(e)//3
        weave(a, e[:k], dma_inserts(rest, 0, 30))
        a(f"s_cmp_ge_u32 s{sGRP}, 3"); a(f"s_cselect_b32 s{T0}, s{sCH}, 0"); a(f"s_cmp_eq_u32 s{T0}, 1"); a("s_cbranch_scc1 Lffn_done")
        for x in e[k:]: a(x)
        a.label("Lffn_done")
    gate_store(a)
    p2_pre(a)
    istamp(a, 10)
    stamp(a, 5)
    a(f"s_waitcnt vmcnt({5 if R == 'att' else 9})")
    for x in b_copy(range(0, NB1)): a(x)
    a("s_waitcnt lgkmcnt(0)")
    r2 = []
    for st in range(NB1, 16): r2 += b_dma(st)
    npre = OPT.get("r2pre", 4)
    emit_pairs(a, r2[:npre])
    a(f"s_waitcnt vmcnt({npre})")
    a("s_barrier")
    a("v_mov_b32 v5, 1")
    a(f"buffer_store_dword v5, v{vFLG}, s[36:39], 0 offen sc1")
    stamp(a, 6)
    if R == "att": a("s_branch Lphase2")

JR = [2, 3, 14, 15]
def p2_pre(a):
    a(f"v_mov_b32 v0, v{vOUT}")
    a("v_lshlrev_b32 v4, 4, v1"); a(f"s_lshl_b32 s{T1}, s{sRB2}, 12")
    for tau in range(4):
        a(f"s_add_u32 s{T0}, s{sW_}, {tau}"); a(f"s_and_b32 s{T0}, s{T0}, 3"); a(f"s_lshl_b32 s{T0}, s{T0}, 10"); a(f"s_add_u32 s{T0}, s{T0}, s{T1}")
        a(f"v_add_u32 v{8+tau}, s{T0}, v4")
    srd(a, 16, 48, 2048*1024)

def late_setup(a, R):
    a("v_lshrrev_b32 v7, 1, v3")
    a(f"s_lshl_b32 s{T0}, s{sRH}, 13")
    for h in range(2):
        a(f"v_or_b32 v8, {4*h}, v2"); a("v_xor_b32 v8, v8, v7"); a("v_lshlrev_b32 v8, 4, v8")
        a("v_lshl_add_u32 v8, v3, 7, v8"); a(f"v_add_u32 v{XB+h}, s{T0}, v8")
    a("v_bfe_u32 v7, v1, 2, 2"); a("v_and_b32 v8, 3, v1")
    a("v_lshl_add_u32 v9, v2, 3, v7"); a("v_lshlrev_b32 v9, 7, v9")
    a("v_and_b32 v10, 1, v8"); a("v_lshl_add_u32 v9, v10, 3, v9")
    a("v_and_b32 v10, 2, v7"); a("v_and_b32 v11, 1, v2"); a("v_lshl_or_b32 v10, v11, 2, v10")
    a("v_lshrrev_b32 v11, 1, v8"); a("v_xor_b32 v10, v10, v11")
    if R == "att":
        for t in range(2):
            a(f"s_lshl_b32 s{T0}, s{sCH}, 2"); a(f"s_add_u32 s{T0}, s{T0}, {2*t}")
            a(f"v_xor_b32 v11, s{T0}, v10"); a("v_lshl_add_u32 v11, v11, 4, v9"); a(f"v_add_u32 v{WB+t}, {WOFF}, v11")
    else:
        for t in range(6):
            a(f"s_mul_i32 s{T0}, s{sCH}, 6"); a(f"s_add_u32 s{T0}, s{T0}, {t}")
            a(f"s_lshr_b32 s{T1}, s{T0}, 2"); a(f"s_and_b32 s{T0}, s{T0}, 3"); a(f"s_lshl_b32 s{T0}, s{T0}, 1")
            a(f"s_lshl_b32 s{T1}, s{T1}, 13"); a(f"s_add_u32 s{T1}, s{T1}, {WOFF}")
            a(f"v_xor_b32 v11, s{T0}, v10"); a("v_lshl_add_u32 v11, v11, 4, v9"); a(f"v_add_u32 v{WB+t}, s{T1}, v11")
    srd(a, 32, 10, 59*AWS_U)
    p2_scalar_setup(a)
    a("v_lshrrev_b32 v7, 3, v1"); a("v_and_b32 v8, 7, v1"); a("v_lshlrev_b32 v9, 1, v2"); a("v_xor_b32 v8, v8, v9")
    a("v_lshlrev_b32 v8, 4, v8"); a("v_lshl_add_u32 v7, v7, 10, v8"); a(f"s_lshl_b32 s{T0}, s{sCT2}, 7"); a(f"v_add_u32 v{vBD}, s{T0}, v7")
    a("v_bfe_u32 v7, v1, 2, 2"); a("v_and_b32 v8, 3, v1")
    a("v_lshl_add_u32 v9, v2, 2, v7"); a("v_bfe_u32 v10, v9, 1, 2"); a("v_lshlrev_b32 v10, 1, v10")
    a("v_lshlrev_b32 v9, 7, v9"); a("v_and_b32 v11, 1, v8"); a("v_lshl_add_u32 v9, v11, 3, v9")
    a("v_lshrrev_b32 v11, 1, v8"); a("v_xor_b32 v10, v10, v11")
    for c in range(4):
        a(f"v_xor_b32 v11, {2*c}, v10"); a(f"v_lshl_add_u32 v{vBF+c}, v11, 4, v9")
    a(f"s_lshr_b32 s{T0}, s{sRB2}, 1"); a(f"s_lshl_b32 s{T0}, s{T0}, 4"); a(f"v_mov_b32 v43, s{T0}")
    a(f"s_lshl_b32 s{T0}, s{sRB2}, 2"); a(f"s_add_u32 s{T0}, s{T0}, s{sW_}"); a(f"s_lshl_b32 s{T0}, s{T0}, 6")
    a("v_lshlrev_b32 v7, 2, v3"); a(f"v_add_u32 v{vGRD}, s{T0}, v7")
    a(f"s_lshl_b32 s{T0}, s{T0}, 8"); a(f"s_lshl_b32 s{T1}, s{sCT2}, 7"); a(f"s_add_u32 s{T0}, s{T0}, s{T1}")
    a("v_and_b32 v7, 1, v2"); a("v_lshlrev_b32 v7, 5, v7"); a("v_lshrrev_b32 v8, 1, v2"); a("v_lshl_add_u32 v7, v8, 4, v7")
    a("v_lshl_add_u32 v7, v3, 10, v7"); a(f"v_add_u32 v{vOUT}, s{T0}, v7")

RED = 114688
def phase2(a):
    ACC2, AR, NR, DEP = 16, 80, 6, 4
    JIT = [144, 160]
    a.label("Lphase2")
    r2 = []
    for st in range(NB1, 16): r2 += b_dma(st)
    emit_pairs(a, r2[OPT.get("r2pre", 4):])
    a(f"s_lshr_b32 s{T2}, s{sRB2}, 1"); a(f"s_lshl_b32 s{T2}, s{T2}, 7"); a(f"s_add_u32 s{T2}, s{T2}, {FLAG_OFF}")
    a("v_and_b32 v5, 15, v1"); a(f"v_lshl_add_u32 v5, v5, 3, s{T2}")
    a("v_readfirstlane_b32 s68, v64")
    a(f"s_cmp_eq_u32 s{sW_}, 0"); a("s_cbranch_scc0 Lp2_other")
    a(f"s_mov_b32 s{T1}, 0")
    a.label("Lp2_clr")
    a("s_cmp_ge_u32 s68, 16"); a("s_cbranch_scc1 Lp2_cleared")
    a("s_sleep 8")
    a("global_load_dword v64, v43, s[50:51] sc1")
    a(f"s_add_u32 s{T1}, s{T1}, 1")
    a("s_waitcnt vmcnt(0)")
    a("v_readfirstlane_b32 s68, v64")
    a(f"s_cmp_gt_u32 s{T1}, 0x100000"); a("s_cbranch_scc0 Lp2_clr")
    a.label("Lp2_cleared")
    a("buffer_load_dword v6, v5, s[36:39], 0 offen sc1")
    a("s_waitcnt vmcnt(1)")
    for x in b_copy(range(NB1, 16)): a(x)
    a("s_waitcnt vmcnt(0)")
    a("s_branch Lp2_check")
    a.label("Lp2_poll")
    a(f"s_sleep {OPT.get('sleep', 1)}")
    a("buffer_load_dword v6, v5, s[36:39], 0 offen sc1")
    a(f"s_add_u32 s{T1}, s{T1}, 1")
    a("s_waitcnt vmcnt(0)")
    a(f"s_cmp_gt_u32 s{T1}, 0x200000"); a("s_cbranch_scc1 Lp2_go")
    a.label("Lp2_check")
    a("v_cmp_ne_u32 vcc, 1, v6")
    a("s_nop 4")
    a("s_cbranch_vccnz Lp2_poll")
    a("s_branch Lp2_go")
    a.label("Lp2_other")
    a("s_waitcnt vmcnt(0)")
    for x in b_copy(range(NB1, 16)): a(x)
    a.label("Lp2_go")
    a("s_waitcnt lgkmcnt(0)")
    a("s_barrier")
    stamp(a, 7)
    def loadA(step):
        return [f"buffer_load_dwordx4 {vr(AR+16*(step%NR)+4*tau,4)}, v{8+tau}, s[28:31], s{T0 + (step & 1)} offen sc1" for tau in (1, 2, 3, 0)]
    a(f"buffer_load_dword v12, v{vGRD}, s[36:39], 0 offen sc1")
    for st in range(DEP):
        for x in next_step(sUA, T0 + (st & 1), 17, st): a(x)
        for x in loadA(st): a(x)
    NS = 16
    pre = []
    pre.append(["v_lshlrev_b32 v4, 4, v1", f"v_add_u32 v4, {RED}, v4"])
    for tau in range(1, 4):
        pre.append([f"s_add_u32 s{T2}, s{sW_}, {tau}", f"s_and_b32 s{T2}, s{T2}, 3", f"s_mul_i32 s{T2}, s{T2}, 12288", f"v_add_u32 v{175+tau}, s{T2}, v4"])
    pre.append([f"s_mul_i32 s{T2}, s{sW_}, 12288", f"v_add_u32 v179, s{T2}, v4"])
    pre.append(["v_sub_f32 v13, 1.0, v12"])
    for k in range(4):
        pre.append([f"s_sub_u32 s{T2}, s{sW_}, {k}", f"s_and_b32 s{T2}, s{T2}, 3", f"s_cmp_eq_u32 s{T2}, 0", "s_cselect_b64 s[68:69], -1, 0",
                    f"v_cndmask_b32 v{180+k}, v13, v12, s[68:69]"])
    for st in range(NS):
        younger = min(st + DEP - 1, NS - 1) - st
        a(f"s_waitcnt vmcnt({4*younger})")
        if st == 0: stamp(a, 8)
        bsrc = 16*st
        mf = []
        for tau in (1, 2, 3, 0):
            for c in range(4):
                d = ACC2 + 4*(4*tau + c)
                C = vr(d,4) if st > 0 else "0"
                mf.append(f"v_mfma_f32_16x16x32_bf16 {vr(d,4)}, {ar(bsrc+4*c,4)}, {vr(AR+16*(st%NR)+4*tau,4)}, {C}")
        nxt = st + 1
        rd = []
        after = [[] for _ in mf]
        for k, x in enumerate(rd): after[k].append(x)
        if st + DEP < NS:
            after[0] += next_step(sUA, T0 + ((st+DEP) & 1), 17, st + DEP)
            for k, x in enumerate(loadA(st + DEP)): after[1 + 4*k].append(x)
        if 1 <= st <= 5:
            for k, ch in enumerate(pre[2*(st-1):2*st]): after[3 + 6*k] += ch
        if st == NS - 1:
            for tau in (1, 2):
                for c in range(4):
                    after[min(4*tau + 4 + c, 15)].append(f"ds_write_b128 v{175+tau}, {vr(ACC2+4*(4*tau+c),4)} offset:{(tau-1)*4096 + c*1024}")
        for m, f in zip(mf, after):
            a(m)
            for x in f: a(x)
    stamp(a, 9)
    a.nop(2)
    for c in range(4):
        a(f"ds_write_b128 v178, {vr(ACC2+4*(12+c),4)} offset:{2*4096 + c*1024}")
    for r in range(0, 16, 2): a(f"v_pk_mul_f32 {vr(ACC2+r,2)}, {vr(ACC2+r,2)}, {vr(180,2)} op_sel_hi:[1,0]")
    a("s_waitcnt lgkmcnt(0)"); a("s_barrier")
    R = 80
    for pos in range(3):
        for c in range(4):
            a(f"ds_read_b128 {vr(R+16*pos+4*c,4)}, v179 offset:{pos*4096 + c*1024}")
    for pos in range(3):
        a(f"s_waitcnt lgkmcnt({8 - 4*pos})")
        f = 181 + pos; pr = vr(f - f % 2, 2); sel = f % 2
        for r in range(0, 16, 2):
            a(f"v_pk_fma_f32 {vr(ACC2+r,2)}, {vr(R+16*pos+r,2)}, {pr}, {vr(ACC2+r,2)} op_sel:[0,{sel},0] op_sel_hi:[1,{sel},1]")
    for c in range(4):
        a(f"v_cvt_pk_bf16_f32 v{32+2*c}, v{ACC2+4*c}, v{ACC2+4*c+1}"); a(f"v_cvt_pk_bf16_f32 v{33+2*c}, v{ACC2+4*c+2}, v{ACC2+4*c+3}")
    a("s_nop 1")
    for p in range(2):
        b = 32 + 4*p
        a(f"v_permlane16_swap_b32 v{b}, v{b+2}"); a(f"v_permlane16_swap_b32 v{b+1}, v{b+3}")
    for p in range(2):
        a(f"buffer_store_dwordx4 {vr(32+4*p,4)}, v0, s[16:19], 0 offen offset:{64*p} {['', 'sc1', 'nt', 'sc0 sc1'][OPT.get('outfl', 0)]}")
    stamp(a, 10)

def kernel():
    a = Asm()
    a(f".globl {KNAME}"); a(".p2align 8"); a(f".type {KNAME},@function"); a.label(KNAME)
    a("s_cmp_ge_u32 s2, 256"); a("s_cbranch_scc1 Lend")
    stamp(a, 0)
    a("s_load_dwordx4 s[4:7], s[0:1], 0")
    a("s_load_dwordx4 s[12:15], s[0:1], 32")
    a("s_load_dwordx4 s[44:47], s[0:1], 48")
    a("s_load_dwordx2 s[8:9], s[0:1], 16")
    a("s_load_dwordx4 s[48:51], s[0:1], 64")
    a("s_load_dwordx2 s[10:11], s[0:1], 80")
    a("v_and_b32 v1, 63, v0"); a("v_lshrrev_b32 v4, 6, v0"); a("v_lshrrev_b32 v2, 4, v1"); a("v_and_b32 v3, 15, v1")
    a(f"v_readfirstlane_b32 s{sW_}, v4")
    a(f"s_and_b32 s{T0}, s2, 7"); a(f"s_lshr_b32 s{T1}, s2, 3")
    a(f"s_lshr_b32 s{T2}, s{T0}, 2"); a(f"s_and_b32 s{T3}, s{T0}, 3")
    a(f"s_lshl_b32 s{sRB}, s{T2}, 3"); a(f"s_lshr_b32 s{T4}, s{T1}, 2"); a(f"s_add_u32 s{sRB}, s{sRB}, s{T4}")
    a(f"s_and_b32 s{T4}, s{T1}, 3"); a(f"s_lshr_b32 s{sTYPE}, s{T4}, 1")
    a(f"s_lshl_b32 s{sGRP}, s{T3}, 1"); a(f"s_and_b32 s{T4}, s{T4}, 1"); a(f"s_add_u32 s{sGRP}, s{sGRP}, s{T4}")
    a(f"s_lshr_b32 s{sRH}, s{sW_}, 1"); a(f"s_and_b32 s{sCH}, s{sW_}, 1")
    a(f"s_mul_i32 s{sU0}, s{sGRP}, 6"); a(f"s_mul_i32 s{T0}, s{sGRP}, 5"); a(f"s_add_u32 s{T0}, s{T0}, 3")
    a(f"s_cmp_le_u32 s{sGRP}, 3"); a(f"s_cselect_b32 s{sU0}, s{sU0}, s{T0}")
    a(f"s_lshl_b32 s{T0}, s{sGRP}, 7"); a(f"s_lshl_b32 s{T1}, s{sU0}, 6"); a(f"s_lshl_b32 s{T5}, s{sRB}, 17")
    a(f"s_cmp_eq_u32 s{sTYPE}, 0")
    a(f"s_cselect_b32 s{T4}, s{T0}, s{T1}")
    a(f"s_movk_i32 s{T0}, 2752"); a(f"s_cselect_b32 s{T2}, 3072, s{T0}"); a(f"s_movk_i32 s{T0}, 128"); a(f"s_cselect_b32 s{T3}, 1024, s{T0}")
    a(f"s_cselect_b32 s{T0}, 16384, 0"); a(f"s_sub_u32 s{T5}, s{T5}, s{T0}")
    a(f"s_lshl_b32 s{sRS64}, s{T2}, 6")
    a(f"s_lshl_b32 s{sXD}, s{sW_}, 12"); a(f"s_add_u32 s{sXE}, s{sW_}, 16"); a(f"s_lshl_b32 s{sXE}, s{sXE}, 10")
    a(f"s_mul_i32 s{sWD}, s{sW_}, 6144"); a(f"s_add_u32 s{sWD}, s{sWD}, {WOFF}")
    a("v_lshrrev_b32 v4, 3, v1"); a("v_and_b32 v5, 7, v1"); a("v_xor_b32 v6, v5, v2")
    a("v_lshlrev_b32 v7, 10, v4"); a("v_lshl_add_u32 v8, v6, 4, v7"); a("v_xor_b32 v9, 64, v8")
    a(f"s_lshl_b32 s{T0}, s{sW_}, 15"); a(f"s_add_u32 s{T0}, s{T0}, s{T5}")
    a(f"s_cmp_lt_i32 s{T0}, 0"); a(f"s_cselect_b32 s{T1}, 16384, 0"); a(f"s_add_u32 s{T1}, s{T1}, s{T0}")
    for j in range(4):
        src = T1 if j < 2 else T0
        a(f"s_add_u32 s{T6}, s{src}, {8192*j}"); a(f"v_add_u32 v{XO+j}, s{T6}, v{8 + (j&1)}")
    a(f"s_lshl_b32 s{T0}, s{sW_}, 13"); a(f"s_add_u32 s{T0}, s{T0}, s{T5}"); a(f"s_add_u32 s{T0}, s{T0}, {128*1024}")
    a(f"s_and_b32 s{T1}, s{sW_}, 1"); a(f"s_lshl_b32 s{T1}, s{T1}, 6"); a(f"v_xor_b32 v10, s{T1}, v8"); a(f"v_add_u32 v{XO+4}, s{T0}, v10")
    a(f"v_mul_lo_u32 v7, s{T2}, v4")
    a("v_and_b32 v8, 1, v2"); a("v_lshlrev_b32 v8, 1, v8"); a("v_xor_b32 v8, v8, v5")
    a("v_xor_b32 v9, 4, v8")
    a("v_cmp_le_u32 s[44:45], 4, v8") if False else None
    a("v_lshl_add_u32 v10, v8, 4, v7"); a("v_lshl_add_u32 v11, v9, 4, v7")
    a(f"s_cmp_ge_u32 s{sGRP}, 3"); a(f"s_cselect_b32 s{T0}, s{sTYPE}, 0")
    a(f"s_lshl_b32 s{T0}, s{T0}, 30")
    a("v_lshrrev_b32 v12, 2, v8"); a(f"v_mul_lo_u32 v12, s{T0}, v12"); a(f"v_xor_b32 v13, s{T0}, v12")
    for j in range(6):
        a(f"s_mul_i32 s{T0}, s{sW_}, 6"); a(f"s_add_u32 s{T0}, s{T0}, {j}")
        a(f"s_lshr_b32 s{T1}, s{T0}, 3"); a(f"s_and_b32 s{T0}, s{T0}, 7")
        a(f"s_mul_i32 s{T5}, s{T1}, s{T3}"); a(f"s_add_u32 s{T5}, s{T5}, s{T4}")
        a(f"s_mul_i32 s{T6}, s{T0}, s{T2}"); a(f"s_lshl_b32 s{T6}, s{T6}, 3"); a(f"s_add_u32 s{T5}, s{T5}, s{T6}")
        a(f"v_add_u32 v{WO+j}, s{T5}, v{10 + (j&1)}")
        if j >= 4 or True:
            a(f"s_cmp_eq_u32 s{T1}, 2"); a(f"s_cselect_b64 s[16:17], -1, 0")
            a(f"v_cndmask_b32 v14, 0, v{12 + (j&1)}, s[16:17]"); a(f"v_add_u32 v{WO+j}, v{WO+j}, v14")
    a(f"s_lshl_b32 s{T0}, s{sTYPE}, 3"); a(f"s_add_u32 s{T0}, s{T0}, s{sGRP}"); a(f"s_lshl_b32 s{T0}, s{T0}, 3")
    a(f"s_lshl_b32 s{T1}, s{sRB}, 7"); a(f"s_add_u32 s{T0}, s{T0}, s{T1}"); a(f"s_lshl_b32 s{T1}, s{sW_}, 1"); a(f"s_add_u32 s{T0}, s{T0}, s{T1}")
    a(f"s_lshl_b32 s{T1}, s{T0}, 10"); a(f"s_lshl_b32 s{T0}, s{T0}, 2")
    a("v_lshlrev_b32 v5, 4, v1"); a(f"v_add_u32 v4, s{T1}, v5"); a(f"v_mov_b32 v{vGST}, s{T0}")
    a(f"s_lshl_b32 s{T0}, s{sTYPE}, 3"); a(f"s_add_u32 s{T0}, s{T0}, s{sGRP}"); a(f"s_lshl_b32 s{T0}, s{T0}, 3")
    a(f"s_lshl_b32 s{T1}, s{sRB}, 7"); a(f"s_add_u32 s{T0}, s{T0}, s{T1}"); a(f"s_add_u32 s{T0}, s{T0}, {FLAG_OFF}")
    a(f"s_lshl_b32 s{T1}, s{sRB}, 4")
    a("v_cmp_eq_u32 s[16:17], 0, v0"); a("v_mov_b32 v7, 0x40000000")
    a(f"v_mov_b32 v8, s{T0}"); a(f"v_mov_b32 v9, s{T1}")
    a(f"v_cndmask_b32 v{vFLG}, v7, v8, s[16:17]"); a(f"v_mov_b32 v{vCLR}, v9")
    a(f"s_lshl_b32 s{T0}, s{sU0}, 6"); a(f"s_mul_i32 s{T1}, s{sCH}, 192"); a(f"s_add_u32 s{T0}, s{T0}, s{T1}")
    a("v_lshlrev_b32 v6, 3, v2"); a(f"v_add_u32 v6, s{T0}, v6")
    a("s_waitcnt lgkmcnt(0)")
    stamp(a, 1)
    srd(a, 16, 4, 2048*1024)
    a(f"s_cmp_eq_u32 s{sTYPE}, 0")
    a("s_cselect_b32 s20, s6, s12"); a("s_cselect_b32 s21, s7, s13"); a(f"s_mov_b32 s22, {512*2752}"); a(f"s_cselect_b32 s22, {512*3072}, s22")
    a("s_and_b32 s21, s21, 0xffff"); a("s_mov_b32 s23, 0x00020000")
    srd(a, 24, 14, 2752); srd(a, 28, 46, 1024)
    a(f"s_add_u32 s36, s10, {G_OFF}"); a("s_addc_u32 s37, s11, 0"); a("s_and_b32 s37, s37, 0xffff")
    a("s_mov_b32 s38, 32768"); a("s_mov_b32 s39, 0x00020000")
    a("v_mov_b32 v7, 0")
    a(f"buffer_store_dword v7, v{vFLG}, s[36:39], 0 offen sc1")
    a(f"s_cmp_eq_u32 s{sW_}, 0"); a("s_cselect_b64 s[4:5], 1, 0")
    a(f"s_cmp_eq_u32 s{sTYPE}, 0"); a("s_cbranch_scc0 Lffn")
    phase1_role(a, "att")
    a.label("Lffn")
    phase1_role(a, "ffn")
    phase2(a)
    stamp_flush(a)
    a.label("Lend")
    a("s_endpgm")
    return a.text()

def main(out):
    t = kernel()
    src = "; Single launch: phase 1 (QKV projection + windowed attention | FFN1 + mish, gate), per-row-block counters in d_debug,\n"
    src += "; phase 2 (output projection of both branches, blended by the gate).\n"
    src += f"; @launch grid=(256,1,1) block=(256,1,1) lds={LDS_BYTES}\n"
    src += '.amdgcn_target "amdgcn-amd-amdhsa--gfx950"\n.text\n' + t + kd(KNAME, 512, 256)
    open(out, "w").write(src)

if __name__ == "__main__":
    if "--instr" in sys.argv: INSTR = True; sys.argv.remove("--instr")
    for x in list(sys.argv):
        if x.startswith("--"):
            sys.argv.remove(x); k, _, v = x[2:].partition("="); OPT[k] = int(v) if v else 1
    main(sys.argv[1] if len(sys.argv) > 1 else "cdna_kernels/" + NAME + ".s")
```

```python
import sys
from asmlib import *

NAME = "gated_mix__sliding_local_dilated__dense_activation_mish__prompt"
KNAME = NAME + "_kernel"
LOG2E = 0x3fb8aa3b
STAGE = 43008
WOFF = 18432
AWS_U = 131072
G_OFF = 8 << 20
LDS_BYTES = 163840
GA, GB, GC, GC2, R2 = 86016, 0, 43008, 86016 + 16*4096, 28672
INSTR = False
OPT = {}
STAMP_OFF = 16 << 20
NST = 12

sW_, sRB, sTYPE, sGRP = 40, 41, 42, 43
sRH, sCH, sBUF, sFREE, sXD, sXE, sWD, sKX, sKW, sKW2, sRS64, sIT, sU0 = range(52, 65)
T0, T1, T2, T3, T4, T5, T6 = range(65, 72)
XO, WO, XB, WB, XA, WA = 16, 21, 27, 29, 35, 37
WA1 = 208
GX, GW, GR, BIAS = 44, 52, 56, 58
vFLG, vCLR = 94, 95
FLAG_OFF = 16384
vGST, vBD, vBF, vAO, vGRD, vOUT = 86, 87, 88, 208, 92, 93
ACC = 96
BF32 = 70
SET = [0, 44]

def srd(a, s, ptr, size):
    a(f"s_mov_b32 s{s}, s{ptr}")
    a(f"s_and_b32 s{s+1}, s{ptr+1}, 0xffff")
    a(f"s_mov_b32 s{s+2}, {size}")
    a(f"s_mov_b32 s{s+3}, 0x00020000")

def istamp(a, k):
    if INSTR and OPT.get("iter"): a(f"{'s_memtime' if OPT.get('cyc') else 's_memrealtime'} s[{72+2*k}:{73+2*k}]")
def stamp(a, k):
    if OPT.get("iter") and k not in (0, NST-1): return
    if INSTR: a(f"{'s_memtime' if OPT.get('cyc') else 's_memrealtime'} s[{72+2*k}:{73+2*k}]")
def stamp_flush_dbg(a):
    a("s_waitcnt vmcnt(0) lgkmcnt(0)")
    stamp(a, NST-1)
    a("s_waitcnt lgkmcnt(0)")
    a(f"s_cmp_eq_u32 s{sW_}, 0"); a("s_cbranch_scc0 Ldbg_done")
    a("v_cmp_eq_u32 vcc, 0, v1"); a("s_and_saveexec_b64 s[28:29], vcc")
    slots = [1,2,3,5,6,7,9,10,11,13,14,15]
    order = [0, 0, 1, 3, 4, 5, 6, 7, 8, 9, 10, 11]
    for k, (sl, stp) in enumerate(zip(slots, order)):
        a(f"v_mov_b32 v2, s{72+2*stp}")
        if k == 0: a("v_not_b32 v2, v2")
        a(f"v_mov_b32 v3, {4*sl}")
        a("global_atomic_umax v3, v2, s[50:51]")
    a("s_mov_b64 exec, s[28:29]")
    a.label("Ldbg_done")
def stamp_flush(a):
    if not INSTR: return
    if OPT.get("dbg"): return stamp_flush_dbg(a)
    a("s_waitcnt vmcnt(0) lgkmcnt(0)")
    stamp(a, NST-1)
    a("s_waitcnt lgkmcnt(0)")
    a(f"s_add_u32 s24, s10, {STAMP_OFF}"); a("s_addc_u32 s25, s11, 0"); a("s_and_b32 s25, s25, 0xffff")
    a("s_mov_b32 s26, 65536"); a("s_mov_b32 s27, 0x00020000")
    a(f"s_lshl_b32 s{T0}, s2, 8"); a(f"s_lshl_b32 s{T1}, s{sW_}, 6"); a(f"s_add_u32 s{T0}, s{T0}, s{T1}")
    a(f"v_mov_b32 v0, s{T0}")
    a("v_cmp_eq_u32 vcc, 0, v1"); a("s_and_saveexec_b64 s[28:29], vcc")
    for k in range(NST):
        a(f"v_mov_b32 v2, s{72+2*k}"); a(f"buffer_store_dword v2, v0, s[24:27], 0 offen offset:{4*k}")
    a("s_mov_b64 exec, s[28:29]")

def bias_reg(ct, r):
    k = 4*ct + r
    return (BF32 + k) if k < 16 else (8 + k - 16)

def p1_reads(role, st, h):
    base = SET[st]
    nx = 5 if role == "att" else 4
    w = []
    for tt in range(6):
        off = h * 4096 + ((tt >> 1) * 8192 if role == "att" else 0)
        r = base + 20 + 4 * tt; ad = (WA if h == 0 else WA1) + (tt & 1 if role == "att" else tt)
        w.append(f"ds_read_b64_tr_b16 {ar(r,2)}, v{ad} offset:{off}")
        w.append(f"ds_read_b64_tr_b16 {ar(r+2,2)}, v{ad} offset:{off+512}")
    x = [f"ds_read_b128 {ar(base+4*t,4)}, v{XA+h} offset:{t*2048}" for t in range(nx)]
    if role == "att":
        return [w[4], w[5], x[0], x[1], x[2], w[6], w[7], x[3], x[4], w[0], w[1], w[2], w[3]] + w[8:]
    return [w[0], w[1], x[0], x[1], x[2], x[3]] + w[2:]

def p1_mfmas(role, st, first=False):
    base = SET[st]; X = lambda t: ar(base + 4*t, 4); W = lambda t: ar(base + 20 + 4*t, 4)
    out = []
    def m(c, A, B, cin=None):
        C = vr(c,4) if not first else cin
        out.append(f"v_mfma_f32_16x16x32_bf16 {vr(c,4)}, {A}, {B}, {C}")
    if role == "att":
        for a_ in range(2):
            for t in range(5): m(ACC + 4*(8 + 2*t + a_), W(2+a_), X(t), "0")
        for a_ in range(2):
            for t in range(1, 5): m(ACC + 4*(2*(t-1) + a_), W(a_), X(t), "0")
        for a_ in range(2):
            for t in range(5): m(ACC + 4*(18 + 2*t + a_), X(t), W(4+a_), "0")
    else:
        for ct in range(6):
            for rt in range(4): m(ACC + 4*(6*rt + ct), W(ct), X(rt), vr(bias_reg(ct,0), 4))
    return out

def dma_x(role, bufreg):
    g = []
    if role == "att":
        g.append(([f"s_add_u32 m0, s{bufreg}, s{sXE}"],
                  [f"s_cmp_lt_u32 s{sW_}, 2", "s_cbranch_scc0 1f", f"buffer_load_dwordx4 v{XO+4}, s[16:19], s{sKX} offen lds", "1:"]))
    for j in range(4):
        m = f"s_add_u32 m0, s{bufreg}, s{sXD}" if j == 0 else "s_add_u32 m0, m0, 1024"
        g.append(([m], [f"buffer_load_dwordx4 v{XO+j}, s[16:19], s{sKX} offen lds"]))
    return g
def dma_w(bufreg, js, sw):
    g = []
    for k, j in enumerate(js):
        if k == 0: m = [f"s_add_u32 m0, s{bufreg}, s{sWD}"] + ([f"s_add_u32 m0, m0, {1024*j}"] if j else [])
        else: m = ["s_add_u32 m0, m0, 1024"]
        g.append((m, [f"buffer_load_dwordx4 v{WO+j}, s[20:23], s{sw} offen lds"]))
    return g
def h1(role, buf): return dma_x(role, buf) + dma_w(buf, [0], sKW)
def h2(role, buf, sw=None): return dma_w(buf, [1,2,3,4,5], sKW2 if sw is None else sw)

SCC_READ = ("s_cselect", "s_cbranch_scc", "s_addc", "s_subb")
SCC_WRITE = ("s_cmp", "s_add_u32", "s_sub_u32", "s_addc", "s_subb", "s_and_b", "s_or_b", "s_xor_b", "s_lshl_b", "s_lshr_b", "s_bitcmp", "s_add_i32")
def chunks(lines):
    n = len(lines); live = [False]*(n+1)
    for i in range(n-1, -1, -1):
        x = lines[i]
        if x.startswith(SCC_READ): live[i] = True
        elif x.startswith(SCC_WRITE): live[i] = False
        else: live[i] = live[i+1]
    out = []
    for i, x in enumerate(lines):
        if out and live[i]: out[-1].append(x)
        else: out.append([x])
    return out
def capture(fn, *args):
    t = Asm(); fn(t, *args); return [x.strip() for x in t.L]

def emit_pairs(a, pairs):
    for m, l in pairs:
        for x in m: a(x)
        a("s_nop 0")
        for x in l: a(x)

def schedule(mf, reads, dmas, extra=(), dma_first=2, read_span=20, xspan=None, tail=()):
    n = len(mf); after = [[] for _ in range(n)]
    if dmas:
        step = (n - dma_first) / len(dmas)
        for k, (m, l) in enumerate(dmas):
            p = int(dma_first + k * step)
            after[max(p-1, 0)] += m
            after[p] += l
    for k, r in enumerate(reads):
        after[min(int(k * read_span / len(reads)), n-1)].insert(0, r)
    for k, x in enumerate(extra):
        lo, hi = xspan or (0, n)
        after[min(int(lo + k * (hi - lo) / len(extra)), n-1)] += (x if isinstance(x, list) else [x])
    for k, x in enumerate(tail):
        after[n - len(tail) - 1 + k] += (x if isinstance(x, list) else [x])
    out = []
    for i in range(n):
        out.append(mf[i]); out += after[i]
    return out

sPRV, sCUR, sNXT = sFREE, sBUF, sIT + 0
sNXT = 63
def addr_set(role, h, sreg):
    n = 2 if role == "att" else 6
    w = WA if h == 0 else WA1
    return [f"v_add_u32 v{XA+h}, s{sreg}, v{XB+h}"] + [f"v_add_u32 v{w+t}, s{sreg}, v{WB+t}" for t in range(n)]
def rot_instrs():
    return [[f"s_mov_b32 s{T0}, s{sPRV}", f"s_mov_b32 s{sPRV}, s{sCUR}"], [f"s_mov_b32 s{sCUR}, s{sNXT}", f"s_mov_b32 s{sNXT}, s{T0}"]]
def adv_k():
    return [f"s_add_u32 s{sKX}, s{sKX}, 128", f"s_and_b32 s{sKX}, s{sKX}, 1023",
            f"s_add_u32 s{sKW}, s{sKW}, s{sRS64}", f"s_cmp_eq_u32 s{sKW}, s22", f"s_cselect_b32 s{sKW}, 0, s{sKW}"]
def adv_x(): return [f"s_add_u32 s{sKX}, s{sKX}, 128", f"s_and_b32 s{sKX}, s{sKX}, 1023"]
def adv_w(): return [f"s_add_u32 s{sKW}, s{sKW}, s{sRS64}", f"s_cmp_eq_u32 s{sKW}, s22", f"s_cselect_b32 s{sKW}, 0, s{sKW}"]
def with_adv(pieces, adv):
    m, l = pieces[-1]
    return pieces[:-1] + [(m, l + adv)]
def all_x(role, buf): return with_adv(dma_x(role, buf), adv_x())
def all_w(buf): return with_adv(dma_w(buf, [0,1,2,3,4,5], sKW), adv_w())
def adv_instrs():
    return [[f"s_mov_b32 s{sKW2}, s{sKW}"] + adv_k()]

def gate_instrs():
    g = []
    for q in range(4):
        for row in range(2):
            g.append(f"v_dot2_f32_bf16 v{GR+row}, v{GX+4*row+q}, v{GW+q}, {'0' if q == 0 else 'v%d' % (GR+row)}")
    g += ["s_nop 0", "s_nop 0"]
    for sh in (8, 4, 2, 1):
        for row in range(2):
            g.append(f"v_add_f32_dpp v{GR+row}, v{GR+row}, v{GR+row} row_ror:{sh} row_mask:0xf bank_mask:0xf")
    for op in ("v_permlane16_swap_b32", "v_permlane32_swap_b32"):
        for row in range(2): g.append(f"v_mov_b32 v{4+row}, v{GR+row}")
        for row in range(2): g.append(f"{op} v{GR+row}, v{4+row}")
        for row in range(2): g.append(f"v_add_f32 v{GR+row}, v{GR+row}, v{4+row}")
    for row in range(2): g.append(f"v_mul_f32 v{GR+row}, 0xbfb8aa3b, v{GR+row}")
    for row in range(2): g.append(f"v_exp_f32 v{GR+row}, v{GR+row}")
    for row in range(2): g.append(f"v_add_f32 v{GR+row}, 1.0, v{GR+row}")
    for row in range(2): g.append(f"v_rcp_f32 v{GR+row}, v{GR+row}")
    return g

def body(a, role, d1, d2, wait, first=False, last=False, x1=(), x2=(), dx1=(), dx2=(), loop=None, tail1=(), noadv=False):
    up0 = addr_set(role, 0, sNXT) if not last else []
    for x in schedule(p1_mfmas(role, 0, first), p1_reads(role, 1, 1), list(d1) + list(dx1), list(x1) + up0,
                      dma_first=1 if first else 2, tail=tail1, xspan=(0, 18)): a(x)
    if last:
        a("s_waitcnt lgkmcnt(0)")
        a("s_barrier")
        for x in schedule(p1_mfmas(role, 1), [], list(d2) + list(dx2), x2): a(x)
        return
    a(f"s_waitcnt vmcnt({wait}) lgkmcnt(0)")
    a("s_barrier")
    tail = (adv_instrs() if d2 and not noadv else []) + rot_instrs()
    if loop: tail.append([f"s_add_u32 s{sLOOP}, s{sLOOP}, 1", f"s_cmp_lt_u32 s{sLOOP}, {loop[1]}"])
    for x in schedule(p1_mfmas(role, 1), p1_reads(role, 0, 0), list(d2) + list(dx2), list(x2) + addr_set(role, 1, sNXT),
                      tail=tail, xspan=(0, 20)): a(x)
    a("s_waitcnt lgkmcnt(0)")
    if loop: a(f"s_cbranch_scc1 {loop[0]}")

sLOOP = 66
sBA, sBB, sBC, sBR = 96, 97, 98, 101
def b_base(step):
    if step < 4: return sBA, step*4096
    if step < 6: return sBB, (step-4)*4096
    if step < 9: return sBC + step - 6, 0
    if step < 13: return sBA, (step-9)*4096
    if step < 15: return sBB, (step-13)*4096
    return sBC, 0
sUB, sBO, sUA = 44, 45, 8
def next_step(u, dst, shift, pos):
    if pos >= 14:
        l = [f"s_cmp_gt_u32 s{sN2}, {pos}", f"s_cselect_b32 s{dst}, s{u}, 31",
             f"s_lshl_b32 s{dst}, s{dst}, {shift}" if shift < 32 else f"s_mul_i32 s{dst}, s{dst}, {shift}"]
    else:
        l = [f"s_lshl_b32 s{dst}, s{u}, {shift}" if shift < 32 else f"s_mul_i32 s{dst}, s{u}, {shift}"]
    return l + [f"s_add_u32 s{u}, s{u}, 1", f"s_cmp_eq_u32 s{u}, s{sN2}", f"s_cselect_b32 s{u}, 0, s{u}"]
def b_dma(step):
    g = []; sb, im = b_base(step)
    for dd in range(4):
        m = next_step(sUB, sBO, 15, step) if dd == 0 else []
        g.append((m + [f"s_add_u32 m0, s{sb}, {im + dd*1024}", f"s_add_u32 s57, s{sBO}, {dd*8192}"],
                  [f"buffer_load_dwordx4 v{vBD}, s[24:27], s57 offen lds"]))
    return g
def b_addr(step, regs):
    sb, im = b_base(step)
    return [f"v_add_u32 v{regs[c]}, s{sb}, v{vBF+c}" for c in range(4)]
def b_reads(step, dst, regs):
    out = []; sb, im = b_base(step)
    for c in range(4):
        out.append(f"ds_read_b64_tr_b16 {ar(dst+4*c,2)}, v{regs[c]} offset:{im}")
        out.append(f"ds_read_b64_tr_b16 {ar(dst+4*c+2,2)}, v{regs[c]} offset:{im+2048}")
    return out

sRB2, sCT2, sU2, sN2 = 12, 13, 14, 15
def p2_scalar_setup(a):
    a(f"s_and_b32 s{T0}, s2, 7"); a(f"s_lshr_b32 s{T1}, s2, 3")
    if OPT.get("p2b", 1) == 1:
        a(f"s_lshl_b32 s{sRB2}, s{T0}, 2"); a(f"s_lshr_b32 s{T2}, s{T1}, 3"); a(f"s_add_u32 s{sRB2}, s{sRB2}, s{T2}")
        a(f"s_and_b32 s{sCT2}, s{T1}, 7")
    else:
        a(f"s_lshr_b32 s{sRB2}, s{T0}, 1"); a(f"s_lshl_b32 s{sRB2}, s{sRB2}, 3"); a(f"s_lshr_b32 s{T2}, s{T1}, 2"); a(f"s_add_u32 s{sRB2}, s{sRB2}, s{T2}")
        a(f"s_and_b32 s{sCT2}, s{T0}, 1"); a(f"s_lshl_b32 s{sCT2}, s{sCT2}, 2"); a(f"s_and_b32 s{T2}, s{T1}, 3"); a(f"s_add_u32 s{sCT2}, s{sCT2}, s{T2}")
    a(f"s_mov_b32 s{sU2}, 0"); a(f"s_mov_b32 s{sN2}, 16")
    for w, u0, n in ((1,16,15), (2,31,14), (3,45,14)):
        a(f"s_cmp_eq_u32 s{sW_}, {w}"); a(f"s_cselect_b32 s{sU2}, {u0}, s{sU2}"); a(f"s_cselect_b32 s{sN2}, {n}, s{sN2}")
    a(f"s_lshl_b32 s{sBA}, s{sW_}, 14"); a(f"s_add_u32 s{sBA}, s{sBA}, {GA}")
    a(f"s_lshl_b32 s{sBB}, s{sW_}, 13")
    a(f"s_mul_i32 s{T0}, s{sW_}, 12288"); a(f"s_add_u32 s{T0}, s{T0}, {GC}")
    for k in range(3):
        a(f"s_add_u32 s{sBC+k}, s{T0}, {4096*k}")
    a(f"s_cmp_eq_u32 s{sW_}, 3")
    a(f"s_cselect_b32 s{sBC+1}, {GC2}, s{sBC+1}"); a(f"s_cselect_b32 s{sBC+2}, {GC2+4096}, s{sBC+2}")
    a(f"s_mul_i32 s{sBR}, s{sW_}, {R2}")
    a(f"s_sub_u32 s{T0}, s{sU2}, 16"); a(f"s_lshl_b32 s{T0}, s{T0}, 15"); a(f"s_add_u32 s{T2}, s44, s{T0}"); a(f"s_addc_u32 s{T3}, s45, 0")
    a(f"s_cmp_eq_u32 s{sW_}, 0"); a(f"s_cselect_b32 s24, s8, s{T2}"); a(f"s_cselect_b32 s25, s9, s{T3}"); a("s_and_b32 s25, s25, 0xffff")
    a(f"s_lshl_b32 s26, s{sN2}, 15"); a("s_mov_b32 s27, 0x00020000")
    a(f"s_mul_i32 s{T0}, s{sU2}, {AWS_U}"); a(f"s_add_u32 s28, s10, s{T0}"); a("s_addc_u32 s29, s11, 0"); a("s_and_b32 s29, s29, 0xffff")
    a(f"s_mul_i32 s30, s{sN2}, {AWS_U}"); a("s_mov_b32 s31, 0x00020000")
    if OPT.get("rot2", 1) == 3:
        a(f"s_and_b32 s{T0}, s{sRB2}, {OPT.get('qm', 3)}"); a(f"s_mul_i32 s{T0}, s{T0}, {OPT.get('qa', 4)}")
        a(f"s_and_b32 s{T1}, s{sCT2}, {OPT.get('qc', 3)}"); a(f"s_mul_i32 s{T1}, s{T1}, {OPT.get('qb', 2)}"); a(f"s_add_u32 s{T0}, s{T0}, s{T1}")
    elif OPT.get("rot2", 1) == 1:
        a(f"s_and_b32 s{T0}, s{sRB2}, 3"); a(f"s_lshl_b32 s{T0}, s{T0}, 2"); a(f"s_lshl_b32 s{T1}, s{sCT2}, 1"); a(f"s_add_u32 s{T0}, s{T0}, s{T1}")
    elif OPT.get("p2b", 1) == 2:
        a(f"s_and_b32 s{T0}, s{sRB2}, 7"); a(f"s_lshl_b32 s{T0}, s{T0}, 1")
        a(f"s_lshr_b32 s{T1}, s{sRB2}, 3"); a(f"s_and_b32 s{T1}, s{T1}, 1"); a(f"s_add_u32 s{T0}, s{T0}, s{T1}")
        a(f"s_and_b32 s{T1}, s{sCT2}, 3"); a(f"s_lshl_b32 s{T1}, s{T1}, 2"); a(f"s_add_u32 s{T0}, s{T0}, s{T1}")
    else:
        a(f"s_and_b32 s{T0}, s{sRB2}, 3"); a(f"s_lshl_b32 s{T0}, s{T0}, 2")
        a(f"s_lshr_b32 s{T1}, s{sRB2}, 2"); a(f"s_and_b32 s{T1}, s{T1}, 3"); a(f"s_add_u32 s{T0}, s{T0}, s{T1}")
        a(f"s_and_b32 s{T1}, s{sCT2}, 3"); a(f"s_lshl_b32 s{T1}, s{T1}, 1"); a(f"s_add_u32 s{T0}, s{T0}, s{T1}")
    a(f"s_sub_u32 s{T1}, s{T0}, s{sN2}"); a(f"s_cmp_ge_u32 s{T0}, s{sN2}"); a(f"s_cselect_b32 s{sUB}, s{T1}, s{T0}")
    a(f"s_mov_b32 s{sUA}, s{sUB}")

def mix(a, valu, dmas, every):
    d = list(dmas); cnt = 0
    for k, x in enumerate(valu):
        a(x)
        if x.endswith(":") or x.startswith("s_cbranch"): continue
        cnt += 1
        if d and cnt % every == every - 2:
            for y in d[0][0]: a(y)
        if d and cnt % every == 0:
            for y in d[0][1]: a(y)
            d.pop(0)
    return d

def att_epilogue():
    e = []
    Q = lambda t, h: ACC + 4*(2*(t-1) + h)
    Kc = lambda t, h: ACC + 4*(8 + 2*t + h)
    V = lambda t, h: ACC + 4*(18 + 2*t + h)
    KF, VF, QF = 208, 228, 16
    kf = lambda t, h: KF + 10*h + 2*t
    vf = lambda t, h: VF + 10*h + 2*t
    qf = lambda t, h: QF + 2*(2*(t-1) + h)
    cv = lambda d, s: [f"v_cvt_pk_bf16_f32 v{d}, v{s}, v{s+1}", f"v_cvt_pk_bf16_f32 v{d+1}, v{s+2}, v{s+3}"]
    combos = [(t,h) for t in range(1,5) for h in range(2)]
    MC, MP, MF, SEL0, SEL1, ONES = 44, 46, 48, 50, 51, 52
    for t in range(5):
        for h in range(2): e += cv(kf(t,h), Kc(t,h))
    for (t,h) in combos: e += cv(qf(t,h), Q(t,h))
    S = lambda ci, blk: ACC + 8*ci + 4*blk
    vcv = []
    for t in range(5):
        for h in range(2): vcv += cv(vf(t,h), V(t,h))
    sm = []
    for ci,(t,h) in enumerate(combos):
        sm.append(f"v_mfma_f32_16x16x16_bf16 {vr(S(ci,0),4)}, {vr(kf(t-1,h),2)}, {vr(qf(t,h),2)}, 0")
        sm.append(f"v_mfma_f32_16x16x16_bf16 {vr(S(ci,1),4)}, {vr(kf(t,h),2)}, {vr(qf(t,h),2)}, 0")
    e.append("s_nop 1")
    for k, m in enumerate(sm):
        e.append(m)
        e += vcv[k*20//16:(k+1)*20//16]
    e += ["s_nop 7"]
    A = lambda ci: 160 + 4*ci
    for ci in range(8):
        for blk in range(2):
            s = S(ci, blk)
            e.append(f"v_cndmask_b32 v{A(ci)+2*blk}, v{s}, v{s+1}, s[46:47]")
            e.append(f"v_cndmask_b32 v{A(ci)+2*blk+1}, v{s+2}, v{s+3}, s[46:47]")
    for ci,(t,h) in enumerate(combos):
        mp = MF if t == 1 else MP
        e.append(f"v_pk_fma_f32 {vr(A(ci),2)}, {vr(A(ci),2)}, s[4:5], {vr(mp,2)} op_sel_hi:[1,0,1]")
        e.append(f"v_pk_fma_f32 {vr(A(ci)+2,2)}, {vr(A(ci)+2,2)}, s[4:5], {vr(MC,2)} op_sel_hi:[1,0,1]")
    MX = 4
    for ci in range(8):
        e.append(f"v_max3_f32 v{MX+ci}, v{A(ci)}, v{A(ci)+1}, v{A(ci)+2}")
    for ci in range(8):
        e.append(f"v_max_f32 v{MX+ci}, v{MX+ci}, v{A(ci)+3}")
    for q in range(2):
        b = MX + 4*q
        e += ["s_nop 0"] if q == 0 else []
        e.append(f"v_permlane32_swap_b32 v{b}, v{b+1}"); e.append(f"v_permlane32_swap_b32 v{b+2}, v{b+3}")
    for q in range(2):
        b = MX + 4*q
        e.append(f"v_max_f32 v{b}, v{b}, v{b+1}"); e.append(f"v_max_f32 v{b+2}, v{b+2}, v{b+3}")
    e.append("s_nop 0")
    for q in range(2):
        b = MX + 4*q
        e.append(f"v_permlane16_swap_b32 v{b}, v{b+2}")
    e.append("s_nop 0")
    for q in range(2):
        b = MX + 4*q
        e.append(f"v_max_f32 v{b}, v{b}, v{b+2}")
    for q in range(2):
        b = MX + 4*q
        e.append(f"v_mov_b32 v{b+1}, v{b}")
    e.append("s_nop 0")
    for q in range(2):
        b = MX + 4*q
        e.append(f"v_permlane32_swap_b32 v{b}, v{b+1}")
    e.append("s_nop 0")
    for q in range(2):
        b = MX + 4*q
        e.append(f"v_mov_b32 v{b+2}, v{b}"); e.append(f"v_mov_b32 v{b+3}, v{b+1}")
    e.append("s_nop 0")
    for q in range(2):
        b = MX + 4*q
        e.append(f"v_permlane16_swap_b32 v{b}, v{b+2}")
        e.append(f"v_permlane16_swap_b32 v{b+1}, v{b+3}")
    e.append("s_nop 0")
    for ci in range(8):
        e.append(f"v_pk_add_f32 {vr(A(ci),2)}, {vr(A(ci),2)}, {vr(MX+ci - (MX+ci)%2,2)} op_sel:[0,{(MX+ci)%2}] op_sel_hi:[1,{(MX+ci)%2}] neg_lo:[0,1] neg_hi:[0,1]")
        e.append(f"v_pk_add_f32 {vr(A(ci)+2,2)}, {vr(A(ci)+2,2)}, {vr(MX+ci - (MX+ci)%2,2)} op_sel:[0,{(MX+ci)%2}] op_sel_hi:[1,{(MX+ci)%2}] neg_lo:[0,1] neg_hi:[0,1]")
    P = lambda ci: ACC + 4*ci
    for ci in range(8):
        for r in range(4): e.append(f"v_exp_f32 v{A(ci)+r}, v{A(ci)+r}")
        if ci > 0:
            c1 = ci - 1
            e += [f"v_cvt_pk_bf16_f32 v12, v{A(c1)}, v{A(c1)+1}", f"v_cvt_pk_bf16_f32 v13, v{A(c1)+2}, v{A(c1)+3}",
                  f"v_perm_b32 v{P(c1)}, v12, v12, v{SEL0}", f"v_perm_b32 v{P(c1)+1}, v12, v12, v{SEL1}",
                  f"v_perm_b32 v{P(c1)+2}, v13, v13, v{SEL0}", f"v_perm_b32 v{P(c1)+3}, v13, v13, v{SEL1}"]
    e.append("s_nop 0")
    e += [f"v_cvt_pk_bf16_f32 v12, v{A(7)}, v{A(7)+1}", f"v_cvt_pk_bf16_f32 v13, v{A(7)+2}, v{A(7)+3}",
          f"v_perm_b32 v{P(7)}, v12, v12, v{SEL0}", f"v_perm_b32 v{P(7)+1}, v12, v12, v{SEL1}",
          f"v_perm_b32 v{P(7)+2}, v13, v13, v{SEL0}", f"v_perm_b32 v{P(7)+3}, v13, v13, v{SEL1}"]
    e.append("s_nop 1")
    O = lambda ci: 128 + 4*ci
    L = lambda ci: 160 + 4*ci
    for ci,(t,h) in enumerate(combos):
        e.append(f"v_mfma_f32_16x16x32_bf16 {vr(O(ci),4)}, {vr(vf(t-1,h),4)}, {vr(P(ci),4)}, 0")
        e.append(f"v_mfma_f32_16x16x32_bf16 {vr(L(ci),4)}, {vr(ONES,4)}, {vr(P(ci),4)}, 0")
    e.append("s_nop 6")
    for ci in range(8): e.append(f"v_rcp_f32 v{MX+ci}, v{L(ci)}")
    e.append("s_nop 0")
    for ci in range(8):
        sel = (MX+ci) % 2; pr = vr(MX+ci - sel, 2)
        e.append(f"v_pk_mul_f32 {vr(O(ci),2)}, {vr(O(ci),2)}, {pr} op_sel:[0,{sel}] op_sel_hi:[1,{sel}]")
        e.append(f"v_pk_mul_f32 {vr(O(ci)+2,2)}, {vr(O(ci)+2,2)}, {pr} op_sel:[0,{sel}] op_sel_hi:[1,{sel}]")
    for t in range(1,5):
        d = 16 + 4*(t-1)
        for h in range(2): e += cv(d + 2*h, O(2*(t-1)+h))
        e.append(f"buffer_store_dwordx4 {vr(d,4)}, v14, s[32:35], s{T6} offen offset:{(t-1)*1024} sc1")
    return e

def att_consts(a):
    a("s_mov_b32 s46, 0xaaaaaaaa"); a("s_mov_b32 s47, 0xaaaaaaaa")
    a("s_mov_b32 s4, 0x3eb8aa3b"); a("s_mov_b32 s5, 0x3eb8aa3b")
    a("v_and_b32 v8, 14, v3"); a("v_lshlrev_b32 v9, 2, v2"); a("v_sub_u32 v8, v8, v9")
    a("v_mov_b32 v9, 0xf149f2ca")
    for dst, blk in ((44, 0), (46, 16)):
        for k in range(2):
            a(f"v_add_u32 v10, {blk - 2*k}, v8")
            a("v_cmp_gt_u32 s[6:7], 15, v10")
            a("s_nop 1")
            a(f"v_cndmask_b32 v{dst+k}, v9, 0, s[6:7]")
    a(f"s_or_b32 s{T0}, s{sRB}, s{sRH}"); a(f"s_cmp_eq_u32 s{T0}, 0"); a("s_cselect_b64 s[6:7], -1, 0")
    for k in range(2): a(f"v_cndmask_b32 v{48+k}, v{46+k}, v9, s[6:7]")
    a("v_mov_b32 v50, 0x0c0c0100"); a("v_mov_b32 v10, 0x01000c0c"); a("v_cndmask_b32 v50, v50, v10, s[46:47]")
    a("v_mov_b32 v51, 0x0c0c0302"); a("v_mov_b32 v10, 0x03020c0c"); a("v_cndmask_b32 v51, v51, v10, s[46:47]")
    for r in range(4): a(f"v_mov_b32 v{52+r}, 0x3f803f80")
    a(f"s_lshl_b32 s{T6}, s{sGRP}, 1"); a(f"s_add_u32 s{T6}, s{T6}, s{sCH}"); a(f"s_mul_i32 s{T6}, s{T6}, {AWS_U}")
    a(f"s_lshl_b32 s{T0}, s{sRB}, 3"); a(f"s_lshl_b32 s{T1}, s{sRH}, 2"); a(f"s_add_u32 s{T0}, s{T0}, s{T1}"); a(f"s_lshl_b32 s{T0}, s{T0}, 10")
    a("v_lshlrev_b32 v14, 4, v1"); a(f"v_add_u32 v14, s{T0}, v14")

def ffn_pairs(m, rr, D):
    e = []
    prs = [ACC + 4*(6*rr + 2*m + hh) + 2*q for hh in range(2) for q in range(2)]
    T = [16 + 2*k for k in range(4)]
    for k in range(4): e.append(f"v_pk_mul_f32 {vr(T[k],2)}, {vr(prs[k],2)}, s[4:5] op_sel_hi:[1,0]")
    for k in range(4):
        e.append(f"v_exp_f32 v{T[k]}, v{T[k]}"); e.append(f"v_exp_f32 v{T[k]+1}, v{T[k]+1}")
    U = [24 + 2*k for k in range(4)]
    for k in range(4): e.append(f"v_pk_fma_f32 {vr(U[k],2)}, {vr(T[k],2)}, 0.5, 1.0 op_sel_hi:[1,0,0]")
    for k in range(4): e.append(f"v_pk_fma_f32 {vr(U[k],2)}, {vr(U[k],2)}, {vr(T[k],2)}, 1.0 op_sel_hi:[1,1,0]")
    for k in range(4):
        e.append(f"v_rcp_f32 v{U[k]}, v{U[k]}"); e.append(f"v_rcp_f32 v{U[k]+1}, v{U[k]+1}")
    for k in range(4): e.append(f"v_pk_fma_f32 {vr(prs[k],2)}, {vr(prs[k],2)}, {vr(U[k],2)}, {vr(prs[k],2)} neg_lo:[1,0,0] neg_hi:[1,0,0]")
    for k in range(4): e.append(f"v_cvt_pk_bf16_f32 v{D+k}, v{prs[k]}, v{prs[k]+1}")
    return e

def ffn_epilogue(nunits):
    e = []
    for m in range(nunits):
        for rr in range(4):
            D = 32 + 4*(rr & 1)
            e += ffn_pairs(m, rr, D)
            e.append(f"buffer_store_dwordx4 {vr(D,4)}, v14, s[32:35], s{T6} offen offset:{rr*1024} sc1")
        e.append(f"s_add_u32 s{T6}, s{T6}, {AWS_U}")
    return e

def ffn_consts(a):
    a(f"s_mov_b32 s4, {LOG2E}"); a(f"s_mov_b32 s5, {LOG2E}")
    a(f"s_mul_i32 s{T6}, s{sCH}, 3"); a(f"s_add_u32 s{T6}, s{T6}, s{sU0}"); a(f"s_add_u32 s{T6}, s{T6}, 16"); a(f"s_mul_i32 s{T6}, s{T6}, {AWS_U}")
    a(f"s_lshl_b32 s{T0}, s{sRB}, 3"); a(f"s_lshl_b32 s{T1}, s{sRH}, 2"); a(f"s_add_u32 s{T0}, s{T0}, s{T1}"); a(f"s_lshl_b32 s{T0}, s{T0}, 10")
    a("v_lshlrev_b32 v14, 4, v1"); a(f"v_add_u32 v14, s{T0}, v14")

def gate_store(a):
    a("v_cmp_eq_u32 s[68:69], 0, v1")
    a("s_nop 1")
    a("s_and_saveexec_b64 s[66:67], s[68:69]")
    a(f"buffer_store_dwordx2 {vr(GR,2)}, v{vGST}, s[36:39], 0 offen sc1")
    a("s_mov_b64 exec, s[66:67]")

NB1 = 9
def weave(a, main, inserts):
    ins = {}
    for p, l in inserts: ins.setdefault(min(p, len(main)-1), []).extend(l)
    for i, x in enumerate(main):
        a(x)
        for y in ins.get(i, []): a(y)

def dma_inserts(dmas, lo, hi):
    out = []
    for k, (m, l) in enumerate(dmas):
        p = int(lo + 2 + k * (hi - lo - 2) / len(dmas))
        out.append((p - 2, m)); out.append((p, l))
    return out

def b_copy(steps):
    tr = [60, 61, 62, 63]; out = []; last = None
    for st in steps:
        sb = b_base(st)[0]
        if sb != last: out += b_addr(st, tr)
        last = sb
        out += b_reads(st, 16*st, tr)
    return out

def is_vmem(x): return x.startswith("buffer_") or x.startswith("global_")
def resolve_waits(flat, init):
    out = []
    for i, x in enumerate(flat):
        if x.startswith("@wait"):
            tag = x.split()[1]
            pos = [j for j in range(i) if flat[j].endswith("; " + tag)]
            n = sum(1 for y in flat[pos[-1]+1:i] if is_vmem(y)) if pos else init[tag] + sum(1 for y in flat[:i] if is_vmem(y))
            out.append(f"s_waitcnt vmcnt({n})")
        else: out.append(x)
    return out
def weave_list(main, inserts):
    ins = {}
    for p, l in inserts: ins.setdefault(min(p, len(main)-1), []).extend(l)
    out = []
    for i, x in enumerate(main):
        out.append(x); out += ins.get(i, [])
    return out
def tag_last(dmas, tag):
    m, l = dmas[-1]
    return dmas[:-1] + [(m, [l[0] + " ; " + tag] + l[1:])]

def staged_epilogue(a, e, rest, P):
    n = len(e)
    r2 = []
    for st in range(NB1, 16): r2 += b_dma(st)
    ins = dma_inserts(tag_last(rest, "R1"), 0, P["r1"])
    ins.append((P["w1"], ["@wait S5"]))
    cp = b_copy(range(0, 6))
    for k, x in enumerate(cp): ins.append((P["w1"] + 1 + int(k * (P["c1"] - P["w1"] - 1) / len(cp)), [x]))
    ins.append((P["c1"] + 2, ["s_waitcnt lgkmcnt(0)"]))
    k2 = P["n2"]; assert k2 <= 24
    ins += dma_inserts(r2[:k2], P["c1"] + 3, P["d2"])
    ins.append((P["w2"], ["@wait R1"]))
    cp = b_copy(range(6, 9))
    for k, x in enumerate(cp): ins.append((P["w2"] + 1 + int(k * (P["c2"] - P["w2"] - 1) / len(cp)), [x]))
    assert P["c2"] < n
    flat = resolve_waits(weave_list(e, ins), {"S5": OPT.get("b7", 8) + 1})
    for x in flat: a(x)
    return r2[k2:]

def count_vmem(lines): return sum(1 for x in lines if x.startswith("buffer_") or x.startswith("global_"))

def epilogue_with_staging(a, R, e, rest, frac):
    n = len(e)
    p_r1, p_cp0, p_cp1, p_bar = frac[0], int(n*frac[1]), int(n*frac[2]), int(n*frac[3])
    assert count_vmem(e[:p_r1+1]) == 0
    ins = dma_inserts(rest, 0, p_r1)
    later = count_vmem(e[:p_cp0+1])
    ins.append((p_cp0, [f"s_waitcnt vmcnt({later})"]))
    cp = round1_copy()
    for k, x in enumerate(cp): ins.append((p_cp0 + int(k * (p_cp1 - p_cp0) / len(cp)), [x]))
    ins.append((p_bar, ["s_waitcnt lgkmcnt(0)", "s_barrier"]))
    r2 = []
    for st in range(NB1, 16): r2 += b_dma(st)
    k2 = OPT.get(R + "r2", 10)
    ins += dma_inserts(r2[:k2], p_bar + 1, n - 1)
    weave(a, e, ins)
    return r2[k2:]

def phase1_role(a, R):
    if OPT.get("rmode", 0) == 0:
        a(f"s_lshr_b32 s{T0}, s2, 5"); a(f"s_lshr_b32 s{T1}, s2, 2"); a(f"s_and_b32 s{T1}, s{T1}, 6"); a(f"s_add_u32 s{T0}, s{T0}, s{T1}")
    elif OPT["rmode"] == 1:
        a(f"s_lshr_b32 s{T0}, s2, 5"); a(f"s_and_b32 s{T0}, s{T0}, 3")
        a(f"s_and_b32 s{T1}, s2, 4"); a(f"s_add_u32 s{T0}, s{T0}, s{T1}")
        a(f"s_and_b32 s{T1}, s2, 3"); a(f"s_lshl_b32 s{T1}, s{T1}, 1"); a(f"s_add_u32 s{T0}, s{T0}, s{T1}")
        a(f"s_lshr_b32 s{T1}, s2, 3"); a(f"s_and_b32 s{T1}, s{T1}, 1"); a(f"s_add_u32 s{T0}, s{T0}, s{T1}")
    elif OPT["rmode"] == 2:
        a(f"s_lshr_b32 s{T0}, s2, 5"); a(f"s_lshr_b32 s{T1}, s2, 2"); a(f"s_and_b32 s{T1}, s{T1}, 6"); a(f"s_add_u32 s{T0}, s{T0}, s{T1}")
        a(f"s_and_b32 s{T1}, s2, 4"); a(f"s_add_u32 s{T0}, s{T0}, s{T1}")
        a(f"s_and_b32 s{T1}, s2, 1"); a(f"s_add_u32 s{T0}, s{T0}, s{T1}")
    elif OPT["rmode"] == 3:
        a(f"s_lshr_b32 s{T0}, s2, 5"); a(f"s_lshr_b32 s{T1}, s2, 3"); a(f"s_add_u32 s{T0}, s{T0}, s{T1}"); a(f"s_and_b32 s{T0}, s{T0}, 1")
        a(f"s_and_b32 s{T1}, s2, 3"); a(f"s_lshl_b32 s{T1}, s{T1}, 1"); a(f"s_add_u32 s{T0}, s{T0}, s{T1}")
    a(f"s_and_b32 s{T0}, s{T0}, 7")
    a(f"s_lshl_b32 s{sKX}, s{T0}, 7"); a(f"s_mul_i32 s{sKW}, s{T0}, s{sRS64}")
    if R == "ffn":
        for tt in range(6): a(f"buffer_load_dwordx2 {vr(BIAS+2*tt,2)}, v6, s[24:27], 0 offen offset:{tt*32}")
    late = chunks(capture(late_setup, R))
    a(f"s_mov_b32 s{sCUR}, 0"); a(f"s_mov_b32 s{sNXT}, {STAGE}"); a(f"s_mov_b32 s{sPRV}, {2*STAGE}")
    gl = [f"buffer_load_dwordx4 {vr(GX,4)}, v4, s[16:19], 0 offen", f"buffer_load_dwordx4 {vr(GX+4,4)}, v4, s[16:19], 0 offen offset:1024",
          f"buffer_load_dwordx4 {vr(GW,4)}, v5, s[28:31], 0 offen"]
    emit_pairs(a, all_x(R, sCUR)); emit_pairs(a, all_w(sCUR))
    for x in gl: a(x)
    pieces = all_x(R, sNXT)
    per = -(-len(late) // (len(pieces) + 1)); k = 0
    for m, l in pieces:
        for ch in late[k:k+per]:
            for x in ch: a(x)
        k += per
        for x in m: a(x)
        a("s_nop 0")
        for x in l: a(x)
    for ch in late[k:]:
        for x in ch: a(x)
    stamp(a, 2)
    for x in addr_set(R, 0, sCUR) + addr_set(R, 1, sCUR): a(x)
    if R == "ffn":
        a("s_waitcnt vmcnt(17)")
        for tt in range(6):
            for q in range(2):
                a(f"v_lshlrev_b32 v{bias_reg(tt,2*q)}, 16, v{BIAS+2*tt+q}")
                a(f"v_and_b32 v{bias_reg(tt,2*q+1)}, 0xffff0000, v{BIAS+2*tt+q}")
    a("s_waitcnt vmcnt(4)")
    a("s_barrier")
    stamp(a, 3)
    for x in p1_reads(R, 0, 0): a(x)
    a("s_waitcnt lgkmcnt(0)")
    istamp(a, 1)
    body(a, R, all_w(sNXT) + all_x(R, sPRV), all_w(sPRV) + all_x(R, sCUR), 4, first=True, noadv=True)
    istamp(a, 2)
    body(a, R, all_w(sPRV), h1(R, sCUR), 10, x2=[["v_mov_b32 v7, 1", "s_and_saveexec_b64 s[6:7], s[4:5]", "s_cbranch_execz 2f", f"global_atomic_add v{vCLR}, v7, s[50:51] sc1", "2:", "s_mov_b64 exec, s[6:7]"]])
    if OPT.get("iter"):
        for it in range(2, 5):
            istamp(a, 1 + it)
            body(a, R, h2(R, sPRV), h1(R, sCUR), 10)
    else:
        a(f"s_mov_b32 s{sLOOP}, 2")
        a.label(f"L{R}_loop")
        body(a, R, h2(R, sPRV), h1(R, sCUR), 10, loop=(f"L{R}_loop", 5))
    istamp(a, 6)
    bd = []
    for st in range(NB1): bd += b_dma(st)
    n = OPT.get("bper", 6)
    assert 4*n <= 24 and 3*n <= 24 and 2*n <= 16
    body(a, R, h2(R, sPRV), [], 10, dx2=bd[:n])
    g = gate_instrs()
    istamp(a, 7)
    body(a, R, [], [], 2*n, x1=g[:22], x2=g[22:], dx1=bd[n:2*n], dx2=bd[2*n:3*n])
    fl = chunks(capture(att_consts if R == "att" else ffn_consts))
    istamp(a, 8)
    n7 = OPT.get("b7", 8)
    body(a, R, [], [], 0, last=True, x1=fl, dx1=bd[3*n:4*n], dx2=bd[4*n:4*n+n7])
    rest = bd[4*n+n7:]
    istamp(a, 9)
    stamp(a, 4)
    a("global_load_dword v64, v43, s[50:51] sc1")
    a.nop(8)
    if R == "att":
        weave(a, att_epilogue(), dma_inserts(rest, 0, 40))
    else:
        e = ffn_epilogue(3); k = 2*len(e)//3
        weave(a, e[:k], dma_inserts(rest, 0, 30))
        a(f"s_cmp_ge_u32 s{sGRP}, 3"); a(f"s_cselect_b32 s{T0}, s{sCH}, 0"); a(f"s_cmp_eq_u32 s{T0}, 1"); a("s_cbranch_scc1 Lffn_done")
        for x in e[k:]: a(x)
        a.label("Lffn_done")
    gate_store(a)
    p2_pre(a)
    istamp(a, 10)
    stamp(a, 5)
    a(f"s_waitcnt vmcnt({5 if R == 'att' else 9})")
    for x in b_copy(range(0, NB1)): a(x)
    a("s_waitcnt lgkmcnt(0)")
    r2 = []
    for st in range(NB1, 16): r2 += b_dma(st)
    npre = OPT.get("r2pre", 4)
    emit_pairs(a, r2[:npre])
    a(f"s_waitcnt vmcnt({npre})")
    a("s_barrier")
    a("v_mov_b32 v5, 1")
    a(f"buffer_store_dword v5, v{vFLG}, s[36:39], 0 offen sc1")
    stamp(a, 6)
    if R == "att": a("s_branch Lphase2")

JR = [2, 3, 14, 15]
def p2_pre(a):
    a(f"v_mov_b32 v0, v{vOUT}")
    a("v_lshlrev_b32 v4, 4, v1"); a(f"s_lshl_b32 s{T1}, s{sRB2}, 12")
    for tau in range(4):
        a(f"s_add_u32 s{T0}, s{sW_}, {tau}"); a(f"s_and_b32 s{T0}, s{T0}, 3"); a(f"s_lshl_b32 s{T0}, s{T0}, 10"); a(f"s_add_u32 s{T0}, s{T0}, s{T1}")
        a(f"v_add_u32 v{8+tau}, s{T0}, v4")
    srd(a, 16, 48, 2048*1024)

def late_setup(a, R):
    a("v_lshrrev_b32 v7, 1, v3")
    a(f"s_lshl_b32 s{T0}, s{sRH}, 13")
    for h in range(2):
        a(f"v_or_b32 v8, {4*h}, v2"); a("v_xor_b32 v8, v8, v7"); a("v_lshlrev_b32 v8, 4, v8")
        a("v_lshl_add_u32 v8, v3, 7, v8"); a(f"v_add_u32 v{XB+h}, s{T0}, v8")
    a("v_bfe_u32 v7, v1, 2, 2"); a("v_and_b32 v8, 3, v1")
    a("v_lshl_add_u32 v9, v2, 3, v7"); a("v_lshlrev_b32 v9, 7, v9")
    a("v_and_b32 v10, 1, v8"); a("v_lshl_add_u32 v9, v10, 3, v9")
    a("v_and_b32 v10, 2, v7"); a("v_and_b32 v11, 1, v2"); a("v_lshl_or_b32 v10, v11, 2, v10")
    a("v_lshrrev_b32 v11, 1, v8"); a("v_xor_b32 v10, v10, v11")
    if R == "att":
        for t in range(2):
            a(f"s_lshl_b32 s{T0}, s{sCH}, 2"); a(f"s_add_u32 s{T0}, s{T0}, {2*t}")
            a(f"v_xor_b32 v11, s{T0}, v10"); a("v_lshl_add_u32 v11, v11, 4, v9"); a(f"v_add_u32 v{WB+t}, {WOFF}, v11")
    else:
        for t in range(6):
            a(f"s_mul_i32 s{T0}, s{sCH}, 6"); a(f"s_add_u32 s{T0}, s{T0}, {t}")
            a(f"s_lshr_b32 s{T1}, s{T0}, 2"); a(f"s_and_b32 s{T0}, s{T0}, 3"); a(f"s_lshl_b32 s{T0}, s{T0}, 1")
            a(f"s_lshl_b32 s{T1}, s{T1}, 13"); a(f"s_add_u32 s{T1}, s{T1}, {WOFF}")
            a(f"v_xor_b32 v11, s{T0}, v10"); a("v_lshl_add_u32 v11, v11, 4, v9"); a(f"v_add_u32 v{WB+t}, s{T1}, v11")
    srd(a, 32, 10, 59*AWS_U)
    p2_scalar_setup(a)
    a("v_lshrrev_b32 v7, 3, v1"); a("v_and_b32 v8, 7, v1"); a("v_lshlrev_b32 v9, 1, v2"); a("v_xor_b32 v8, v8, v9")
    a("v_lshlrev_b32 v8, 4, v8"); a("v_lshl_add_u32 v7, v7, 10, v8"); a(f"s_lshl_b32 s{T0}, s{sCT2}, 7"); a(f"v_add_u32 v{vBD}, s{T0}, v7")
    a("v_bfe_u32 v7, v1, 2, 2"); a("v_and_b32 v8, 3, v1")
    a("v_lshl_add_u32 v9, v2, 2, v7"); a("v_bfe_u32 v10, v9, 1, 2"); a("v_lshlrev_b32 v10, 1, v10")
    a("v_lshlrev_b32 v9, 7, v9"); a("v_and_b32 v11, 1, v8"); a("v_lshl_add_u32 v9, v11, 3, v9")
    a("v_lshrrev_b32 v11, 1, v8"); a("v_xor_b32 v10, v10, v11")
    for c in range(4):
        a(f"v_xor_b32 v11, {2*c}, v10"); a(f"v_lshl_add_u32 v{vBF+c}, v11, 4, v9")
    a(f"s_lshr_b32 s{T0}, s{sRB2}, 1"); a(f"s_lshl_b32 s{T0}, s{T0}, 4"); a(f"v_mov_b32 v43, s{T0}")
    a(f"s_lshl_b32 s{T0}, s{sRB2}, 2"); a(f"s_add_u32 s{T0}, s{T0}, s{sW_}"); a(f"s_lshl_b32 s{T0}, s{T0}, 6")
    a("v_lshlrev_b32 v7, 2, v3"); a(f"v_add_u32 v{vGRD}, s{T0}, v7")
    a(f"s_lshl_b32 s{T0}, s{T0}, 8"); a(f"s_lshl_b32 s{T1}, s{sCT2}, 7"); a(f"s_add_u32 s{T0}, s{T0}, s{T1}")
    a("v_and_b32 v7, 1, v2"); a("v_lshlrev_b32 v7, 5, v7"); a("v_lshrrev_b32 v8, 1, v2"); a("v_lshl_add_u32 v7, v8, 4, v7")
    a("v_lshl_add_u32 v7, v3, 10, v7"); a(f"v_add_u32 v{vOUT}, s{T0}, v7")

RED = 114688
def phase2(a):
    ACC2, AR, NR, DEP = 16, 80, 6, OPT.get('dep', 4)
    JIT = [144, 160]
    a.label("Lphase2")
    r2 = []
    for st in range(NB1, 16): r2 += b_dma(st)
    emit_pairs(a, r2[OPT.get("r2pre", 4):])
    a(f"s_lshr_b32 s{T2}, s{sRB2}, 1"); a(f"s_lshl_b32 s{T2}, s{T2}, 7"); a(f"s_add_u32 s{T2}, s{T2}, {FLAG_OFF}")
    a("v_and_b32 v5, 15, v1"); a(f"v_lshl_add_u32 v5, v5, 3, s{T2}")
    a("v_readfirstlane_b32 s68, v64")
    a(f"s_cmp_eq_u32 s{sW_}, 0"); a("s_cbranch_scc0 Lp2_other")
    a(f"s_mov_b32 s{T1}, 0")
    a.label("Lp2_clr")
    a("s_cmp_ge_u32 s68, 16"); a("s_cbranch_scc1 Lp2_cleared")
    a("s_sleep 8")
    a("global_load_dword v64, v43, s[50:51] sc1")
    a(f"s_add_u32 s{T1}, s{T1}, 1")
    a("s_waitcnt vmcnt(0)")
    a("v_readfirstlane_b32 s68, v64")
    a(f"s_cmp_gt_u32 s{T1}, 0x100000"); a("s_cbranch_scc0 Lp2_clr")
    a.label("Lp2_cleared")
    a("buffer_load_dword v6, v5, s[36:39], 0 offen sc1")
    a("s_waitcnt vmcnt(1)")
    for x in b_copy(range(NB1, 16)): a(x)
    a("s_waitcnt vmcnt(0)")
    a("s_branch Lp2_check")
    a.label("Lp2_poll")
    a(f"s_sleep {OPT.get('sleep', 1)}")
    a("buffer_load_dword v6, v5, s[36:39], 0 offen sc1")
    a(f"s_add_u32 s{T1}, s{T1}, 1")
    a("s_waitcnt vmcnt(0)")
    a(f"s_cmp_gt_u32 s{T1}, 0x200000"); a("s_cbranch_scc1 Lp2_go")
    a.label("Lp2_check")
    a("v_cmp_ne_u32 vcc, 1, v6")
    a("s_nop 4")
    a("s_cbranch_vccnz Lp2_poll")
    a("s_branch Lp2_go")
    a.label("Lp2_other")
    a("s_waitcnt vmcnt(0)")
    for x in b_copy(range(NB1, 16)): a(x)
    a.label("Lp2_go")
    a("s_waitcnt lgkmcnt(0)")
    a("s_barrier")
    stamp(a, 7)
    def loadA(step):
        return [f"buffer_load_dwordx4 {vr(AR+16*(step%NR)+4*tau,4)}, v{8+tau}, s[28:31], s{T0 + (step & 1)} offen sc1" for tau in (1, 2, 3, 0)]
    a(f"buffer_load_dword v12, v{vGRD}, s[36:39], 0 offen sc1")
    for st in range(DEP):
        for x in next_step(sUA, T0 + (st & 1), AWS_U, st): a(x)
        for x in loadA(st): a(x)
    NS = 16
    pre = []
    pre.append(["v_lshlrev_b32 v4, 4, v1", f"v_add_u32 v4, {RED}, v4"])
    for tau in range(1, 4):
        pre.append([f"s_add_u32 s{T2}, s{sW_}, {tau}", f"s_and_b32 s{T2}, s{T2}, 3", f"s_mul_i32 s{T2}, s{T2}, 12288", f"v_add_u32 v{175+tau}, s{T2}, v4"])
    pre.append([f"s_mul_i32 s{T2}, s{sW_}, 12288", f"v_add_u32 v179, s{T2}, v4"])
    pre.append(["v_sub_f32 v13, 1.0, v12"])
    for k in range(4):
        pre.append([f"s_sub_u32 s{T2}, s{sW_}, {k}", f"s_and_b32 s{T2}, s{T2}, 3", f"s_cmp_eq_u32 s{T2}, 0", "s_cselect_b64 s[68:69], -1, 0",
                    f"v_cndmask_b32 v{180+k}, v13, v12, s[68:69]"])
    for st in range(NS):
        younger = min(st + DEP - 1, NS - 1) - st
        a(f"s_waitcnt vmcnt({4*younger})")
        if st == 0: stamp(a, 8)
        bsrc = 16*st
        mf = []
        for tau in (1, 2, 3, 0):
            for c in range(4):
                d = ACC2 + 4*(4*tau + c)
                C = vr(d,4) if st > 0 else "0"
                mf.append(f"v_mfma_f32_16x16x32_bf16 {vr(d,4)}, {ar(bsrc+4*c,4)}, {vr(AR+16*(st%NR)+4*tau,4)}, {C}")
        nxt = st + 1
        rd = []
        after = [[] for _ in mf]
        for k, x in enumerate(rd): after[k].append(x)
        if st + DEP < NS:
            after[0] += next_step(sUA, T0 + ((st+DEP) & 1), AWS_U, st + DEP)
            for k, x in enumerate(loadA(st + DEP)): after[1 + 4*k].append(x)
        if 1 <= st <= 5:
            for k, ch in enumerate(pre[2*(st-1):2*st]): after[3 + 6*k] += ch
        if st == NS - 1:
            for tau in (1, 2):
                for c in range(4):
                    after[min(4*tau + 4 + c, 15)].append(f"ds_write_b128 v{175+tau}, {vr(ACC2+4*(4*tau+c),4)} offset:{(tau-1)*4096 + c*1024}")
        for m, f in zip(mf, after):
            a(m)
            for x in f: a(x)
    stamp(a, 9)
    a.nop(2)
    for c in range(4):
        a(f"ds_write_b128 v178, {vr(ACC2+4*(12+c),4)} offset:{2*4096 + c*1024}")
    for r in range(0, 16, 2): a(f"v_pk_mul_f32 {vr(ACC2+r,2)}, {vr(ACC2+r,2)}, {vr(180,2)} op_sel_hi:[1,0]")
    a("s_waitcnt lgkmcnt(0)"); a("s_barrier")
    R = 80
    for pos in range(3):
        for c in range(4):
            a(f"ds_read_b128 {vr(R+16*pos+4*c,4)}, v179 offset:{pos*4096 + c*1024}")
    for pos in range(3):
        a(f"s_waitcnt lgkmcnt({8 - 4*pos})")
        f = 181 + pos; pr = vr(f - f % 2, 2); sel = f % 2
        for r in range(0, 16, 2):
            a(f"v_pk_fma_f32 {vr(ACC2+r,2)}, {vr(R+16*pos+r,2)}, {pr}, {vr(ACC2+r,2)} op_sel:[0,{sel},0] op_sel_hi:[1,{sel},1]")
    for c in range(4):
        a(f"v_cvt_pk_bf16_f32 v{32+2*c}, v{ACC2+4*c}, v{ACC2+4*c+1}"); a(f"v_cvt_pk_bf16_f32 v{33+2*c}, v{ACC2+4*c+2}, v{ACC2+4*c+3}")
    a("s_nop 1")
    for p in range(2):
        b = 32 + 4*p
        a(f"v_permlane16_swap_b32 v{b}, v{b+2}"); a(f"v_permlane16_swap_b32 v{b+1}, v{b+3}")
    for p in range(2):
        a(f"buffer_store_dwordx4 {vr(32+4*p,4)}, v0, s[16:19], 0 offen offset:{64*p} {['', 'sc1', 'nt', 'sc0 sc1'][OPT.get('outfl', 0)]}")
    stamp(a, 10)

def kernel():
    a = Asm()
    a(f".globl {KNAME}"); a(".p2align 8"); a(f".type {KNAME},@function"); a.label(KNAME)
    a("s_cmp_ge_u32 s2, 256"); a("s_cbranch_scc1 Lend")
    stamp(a, 0)
    a("s_load_dwordx4 s[4:7], s[0:1], 0")
    a("s_load_dwordx4 s[12:15], s[0:1], 32")
    a("s_load_dwordx4 s[44:47], s[0:1], 48")
    a("s_load_dwordx2 s[8:9], s[0:1], 16")
    a("s_load_dwordx4 s[48:51], s[0:1], 64")
    a("s_load_dwordx2 s[10:11], s[0:1], 80")
    a("v_and_b32 v1, 63, v0"); a("v_lshrrev_b32 v4, 6, v0"); a("v_lshrrev_b32 v2, 4, v1"); a("v_and_b32 v3, 15, v1")
    a(f"v_readfirstlane_b32 s{sW_}, v4")
    a(f"s_and_b32 s{T0}, s2, 7"); a(f"s_lshr_b32 s{T1}, s2, 3")
    a(f"s_lshr_b32 s{T2}, s{T0}, 2"); a(f"s_and_b32 s{T3}, s{T0}, 3")
    a(f"s_lshl_b32 s{sRB}, s{T2}, 3"); a(f"s_lshr_b32 s{T4}, s{T1}, 2"); a(f"s_add_u32 s{sRB}, s{sRB}, s{T4}")
    a(f"s_and_b32 s{T4}, s{T1}, 3"); a(f"s_lshr_b32 s{sTYPE}, s{T4}, 1")
    a(f"s_lshl_b32 s{sGRP}, s{T3}, 1"); a(f"s_and_b32 s{T4}, s{T4}, 1"); a(f"s_add_u32 s{sGRP}, s{sGRP}, s{T4}")
    a(f"s_lshr_b32 s{sRH}, s{sW_}, 1"); a(f"s_and_b32 s{sCH}, s{sW_}, 1")
    a(f"s_mul_i32 s{sU0}, s{sGRP}, 6"); a(f"s_mul_i32 s{T0}, s{sGRP}, 5"); a(f"s_add_u32 s{T0}, s{T0}, 3")
    a(f"s_cmp_le_u32 s{sGRP}, 3"); a(f"s_cselect_b32 s{sU0}, s{sU0}, s{T0}")
    a(f"s_lshl_b32 s{T0}, s{sGRP}, 7"); a(f"s_lshl_b32 s{T1}, s{sU0}, 6"); a(f"s_lshl_b32 s{T5}, s{sRB}, 17")
    a(f"s_cmp_eq_u32 s{sTYPE}, 0")
    a(f"s_cselect_b32 s{T4}, s{T0}, s{T1}")
    a(f"s_movk_i32 s{T0}, 2752"); a(f"s_cselect_b32 s{T2}, 3072, s{T0}"); a(f"s_movk_i32 s{T0}, 128"); a(f"s_cselect_b32 s{T3}, 1024, s{T0}")
    a(f"s_cselect_b32 s{T0}, 16384, 0"); a(f"s_sub_u32 s{T5}, s{T5}, s{T0}")
    a(f"s_lshl_b32 s{sRS64}, s{T2}, 6")
    a(f"s_lshl_b32 s{sXD}, s{sW_}, 12"); a(f"s_add_u32 s{sXE}, s{sW_}, 16"); a(f"s_lshl_b32 s{sXE}, s{sXE}, 10")
    a(f"s_mul_i32 s{sWD}, s{sW_}, 6144"); a(f"s_add_u32 s{sWD}, s{sWD}, {WOFF}")
    a("v_lshrrev_b32 v4, 3, v1"); a("v_and_b32 v5, 7, v1"); a("v_xor_b32 v6, v5, v2")
    a("v_lshlrev_b32 v7, 10, v4"); a("v_lshl_add_u32 v8, v6, 4, v7"); a("v_xor_b32 v9, 64, v8")
    a(f"s_lshl_b32 s{T0}, s{sW_}, 15"); a(f"s_add_u32 s{T0}, s{T0}, s{T5}")
    a(f"s_cmp_lt_i32 s{T0}, 0"); a(f"s_cselect_b32 s{T1}, 16384, 0"); a(f"s_add_u32 s{T1}, s{T1}, s{T0}")
    for j in range(4):
        src = T1 if j < 2 else T0
        a(f"s_add_u32 s{T6}, s{src}, {8192*j}"); a(f"v_add_u32 v{XO+j}, s{T6}, v{8 + (j&1)}")
    a(f"s_lshl_b32 s{T0}, s{sW_}, 13"); a(f"s_add_u32 s{T0}, s{T0}, s{T5}"); a(f"s_add_u32 s{T0}, s{T0}, {128*1024}")
    a(f"s_and_b32 s{T1}, s{sW_}, 1"); a(f"s_lshl_b32 s{T1}, s{T1}, 6"); a(f"v_xor_b32 v10, s{T1}, v8"); a(f"v_add_u32 v{XO+4}, s{T0}, v10")
    a(f"v_mul_lo_u32 v7, s{T2}, v4")
    a("v_and_b32 v8, 1, v2"); a("v_lshlrev_b32 v8, 1, v8"); a("v_xor_b32 v8, v8, v5")
    a("v_xor_b32 v9, 4, v8")
    a("v_cmp_le_u32 s[44:45], 4, v8") if False else None
    a("v_lshl_add_u32 v10, v8, 4, v7"); a("v_lshl_add_u32 v11, v9, 4, v7")
    a(f"s_cmp_ge_u32 s{sGRP}, 3"); a(f"s_cselect_b32 s{T0}, s{sTYPE}, 0")
    a(f"s_lshl_b32 s{T0}, s{T0}, 30")
    a("v_lshrrev_b32 v12, 2, v8"); a(f"v_mul_lo_u32 v12, s{T0}, v12"); a(f"v_xor_b32 v13, s{T0}, v12")
    for j in range(6):
        a(f"s_mul_i32 s{T0}, s{sW_}, 6"); a(f"s_add_u32 s{T0}, s{T0}, {j}")
        a(f"s_lshr_b32 s{T1}, s{T0}, 3"); a(f"s_and_b32 s{T0}, s{T0}, 7")
        a(f"s_mul_i32 s{T5}, s{T1}, s{T3}"); a(f"s_add_u32 s{T5}, s{T5}, s{T4}")
        a(f"s_mul_i32 s{T6}, s{T0}, s{T2}"); a(f"s_lshl_b32 s{T6}, s{T6}, 3"); a(f"s_add_u32 s{T5}, s{T5}, s{T6}")
        a(f"v_add_u32 v{WO+j}, s{T5}, v{10 + (j&1)}")
        if j >= 4 or True:
            a(f"s_cmp_eq_u32 s{T1}, 2"); a(f"s_cselect_b64 s[16:17], -1, 0")
            a(f"v_cndmask_b32 v14, 0, v{12 + (j&1)}, s[16:17]"); a(f"v_add_u32 v{WO+j}, v{WO+j}, v14")
    a(f"s_lshl_b32 s{T0}, s{sTYPE}, 3"); a(f"s_add_u32 s{T0}, s{T0}, s{sGRP}"); a(f"s_lshl_b32 s{T0}, s{T0}, 3")
    a(f"s_lshl_b32 s{T1}, s{sRB}, 7"); a(f"s_add_u32 s{T0}, s{T0}, s{T1}"); a(f"s_lshl_b32 s{T1}, s{sW_}, 1"); a(f"s_add_u32 s{T0}, s{T0}, s{T1}")
    a(f"s_lshl_b32 s{T1}, s{T0}, 10"); a(f"s_lshl_b32 s{T0}, s{T0}, 2")
    a("v_lshlrev_b32 v5, 4, v1"); a(f"v_add_u32 v4, s{T1}, v5"); a(f"v_mov_b32 v{vGST}, s{T0}")
    a(f"s_lshl_b32 s{T0}, s{sTYPE}, 3"); a(f"s_add_u32 s{T0}, s{T0}, s{sGRP}"); a(f"s_lshl_b32 s{T0}, s{T0}, 3")
    a(f"s_lshl_b32 s{T1}, s{sRB}, 7"); a(f"s_add_u32 s{T0}, s{T0}, s{T1}"); a(f"s_add_u32 s{T0}, s{T0}, {FLAG_OFF}")
    a(f"s_lshl_b32 s{T1}, s{sRB}, 4")
    a("v_cmp_eq_u32 s[16:17], 0, v0"); a("v_mov_b32 v7, 0x40000000")
    a(f"v_mov_b32 v8, s{T0}"); a(f"v_mov_b32 v9, s{T1}")
    a(f"v_cndmask_b32 v{vFLG}, v7, v8, s[16:17]"); a(f"v_mov_b32 v{vCLR}, v9")
    a(f"s_lshl_b32 s{T0}, s{sU0}, 6"); a(f"s_mul_i32 s{T1}, s{sCH}, 192"); a(f"s_add_u32 s{T0}, s{T0}, s{T1}")
    a("v_lshlrev_b32 v6, 3, v2"); a(f"v_add_u32 v6, s{T0}, v6")
    a("s_waitcnt lgkmcnt(0)")
    stamp(a, 1)
    srd(a, 16, 4, 2048*1024)
    a(f"s_cmp_eq_u32 s{sTYPE}, 0")
    a("s_cselect_b32 s20, s6, s12"); a("s_cselect_b32 s21, s7, s13"); a(f"s_mov_b32 s22, {512*2752}"); a(f"s_cselect_b32 s22, {512*3072}, s22")
    a("s_and_b32 s21, s21, 0xffff"); a("s_mov_b32 s23, 0x00020000")
    srd(a, 24, 14, 2752); srd(a, 28, 46, 1024)
    a(f"s_add_u32 s36, s10, {G_OFF}"); a("s_addc_u32 s37, s11, 0"); a("s_and_b32 s37, s37, 0xffff")
    a("s_mov_b32 s38, 32768"); a("s_mov_b32 s39, 0x00020000")
    a("v_mov_b32 v7, 0")
    a(f"buffer_store_dword v7, v{vFLG}, s[36:39], 0 offen sc1")
    a(f"s_cmp_eq_u32 s{sW_}, 0"); a("s_cselect_b64 s[4:5], 1, 0")
    a(f"s_cmp_eq_u32 s{sTYPE}, 0"); a("s_cbranch_scc0 Lffn")
    phase1_role(a, "att")
    a.label("Lffn")
    phase1_role(a, "ffn")
    phase2(a)
    stamp_flush(a)
    a.label("Lend")
    a("s_endpgm")
    return a.text()

def main(out):
    t = kernel()
    src = "; Single launch: phase 1 (QKV projection + windowed attention | FFN1 + mish, gate), per-row-block counters in d_debug,\n"
    src += "; phase 2 (output projection of both branches, blended by the gate).\n"
    src += f"; @launch grid=(256,1,1) block=(256,1,1) lds={LDS_BYTES}\n"
    src += '.amdgcn_target "amdgcn-amd-amdhsa--gfx950"\n.text\n' + t + kd(KNAME, 512, 256)
    open(out, "w").write(src)

if __name__ == "__main__":
    if "--instr" in sys.argv: INSTR = True; sys.argv.remove("--instr")
    for x in list(sys.argv):
        if x.startswith("--"):
            sys.argv.remove(x); k, _, v = x[2:].partition("="); OPT[k] = int(v) if v else 1
    AWS_U = 131072 + OPT.get("skew", 0)
    main(sys.argv[1] if len(sys.argv) > 1 else "cdna_kernels/" + NAME + ".s")
```

```python
import sys
from asmlib import *

NAME = "gated_mix__sliding_local_dilated__dense_activation_mish__prompt"
KNAME = NAME + "_kernel"
LOG2E = 0x3fb8aa3b
STAGE = 43008
WOFF = 18432
AWS_U = 131072
G_OFF = 8 << 20
LDS_BYTES = 163840
GA, GB, GC, GC2, R2 = 86016, 0, 43008, 86016 + 16*4096, 28672
INSTR = False
OPT = {"p2b": 2, "r2pre": 0, "rmode": 1, "rot2": 3, "qa": 2, "qm": 7, "qb": 0}
STAMP_OFF = 16 << 20
NST = 12

sW_, sRB, sTYPE, sGRP = 40, 41, 42, 43
sRH, sCH, sBUF, sFREE, sXD, sXE, sWD, sKX, sKW, sKW2, sRS64, sIT, sU0 = range(52, 65)
T0, T1, T2, T3, T4, T5, T6 = range(65, 72)
XO, WO, XB, WB, XA, WA = 16, 21, 27, 29, 35, 37
WA1 = 208
GX, GW, GR, BIAS = 44, 52, 56, 58
vFLG, vCLR = 94, 95
FLAG_OFF = 16384
vGST, vBD, vBF, vAO, vGRD, vOUT = 86, 87, 88, 208, 92, 93
ACC = 96
BF32 = 70
SET = [0, 44]

def srd(a, s, ptr, size):
    a(f"s_mov_b32 s{s}, s{ptr}")
    a(f"s_and_b32 s{s+1}, s{ptr+1}, 0xffff")
    a(f"s_mov_b32 s{s+2}, {size}")
    a(f"s_mov_b32 s{s+3}, 0x00020000")

def istamp(a, k):
    if INSTR and OPT.get("iter"): a(f"{'s_memtime' if OPT.get('cyc') else 's_memrealtime'} s[{72+2*k}:{73+2*k}]")
def stamp(a, k):
    if OPT.get("iter") and k not in (0, NST-1): return
    if INSTR: a(f"{'s_memtime' if OPT.get('cyc') else 's_memrealtime'} s[{72+2*k}:{73+2*k}]")
def stamp_flush_dbg(a):
    a("s_waitcnt vmcnt(0) lgkmcnt(0)")
    stamp(a, NST-1)
    a("s_waitcnt lgkmcnt(0)")
    a(f"s_cmp_eq_u32 s{sW_}, 0"); a("s_cbranch_scc0 Ldbg_done")
    a("v_cmp_eq_u32 vcc, 0, v1"); a("s_and_saveexec_b64 s[28:29], vcc")
    slots = [1,2,3,5,6,7,9,10,11,13,14,15]
    order = [0, 0, 1, 3, 4, 5, 6, 7, 8, 9, 10, 11]
    for k, (sl, stp) in enumerate(zip(slots, order)):
        a(f"v_mov_b32 v2, s{72+2*stp}")
        if k == 0: a("v_not_b32 v2, v2")
        a(f"v_mov_b32 v3, {4*sl}")
        a("global_atomic_umax v3, v2, s[50:51]")
    a("s_mov_b64 exec, s[28:29]")
    a.label("Ldbg_done")
def stamp_flush(a):
    if not INSTR: return
    if OPT.get("dbg"): return stamp_flush_dbg(a)
    a("s_waitcnt vmcnt(0) lgkmcnt(0)")
    stamp(a, NST-1)
    a("s_waitcnt lgkmcnt(0)")
    a(f"s_add_u32 s24, s10, {STAMP_OFF}"); a("s_addc_u32 s25, s11, 0"); a("s_and_b32 s25, s25, 0xffff")
    a("s_mov_b32 s26, 65536"); a("s_mov_b32 s27, 0x00020000")
    a(f"s_lshl_b32 s{T0}, s2, 8"); a(f"s_lshl_b32 s{T1}, s{sW_}, 6"); a(f"s_add_u32 s{T0}, s{T0}, s{T1}")
    a(f"v_mov_b32 v0, s{T0}")
    a("v_cmp_eq_u32 vcc, 0, v1"); a("s_and_saveexec_b64 s[28:29], vcc")
    for k in range(NST):
        a(f"v_mov_b32 v2, s{72+2*k}"); a(f"buffer_store_dword v2, v0, s[24:27], 0 offen offset:{4*k}")
    a("s_mov_b64 exec, s[28:29]")

def bias_reg(ct, r):
    k = 4*ct + r
    return (BF32 + k) if k < 16 else (8 + k - 16)

def p1_reads(role, st, h):
    base = SET[st]
    nx = 5 if role == "att" else 4
    w = []
    for tt in range(6):
        off = h * 4096 + ((tt >> 1) * 8192 if role == "att" else 0)
        r = base + 20 + 4 * tt; ad = (WA if h == 0 else WA1) + (tt & 1 if role == "att" else tt)
        w.append(f"ds_read_b64_tr_b16 {ar(r,2)}, v{ad} offset:{off}")
        w.append(f"ds_read_b64_tr_b16 {ar(r+2,2)}, v{ad} offset:{off+512}")
    x = [f"ds_read_b128 {ar(base+4*t,4)}, v{XA+h} offset:{t*2048}" for t in range(nx)]
    if role == "att":
        return [w[4], w[5], x[0], x[1], x[2], w[6], w[7], x[3], x[4], w[0], w[1], w[2], w[3]] + w[8:]
    return [w[0], w[1], x[0], x[1], x[2], x[3]] + w[2:]

def p1_mfmas(role, st, first=False):
    base = SET[st]; X = lambda t: ar(base + 4*t, 4); W = lambda t: ar(base + 20 + 4*t, 4)
    out = []
    def m(c, A, B, cin=None):
        C = vr(c,4) if not first else cin
        out.append(f"v_mfma_f32_16x16x32_bf16 {vr(c,4)}, {A}, {B}, {C}")
    if role == "att":
        for a_ in range(2):
            for t in range(5): m(ACC + 4*(8 + 2*t + a_), W(2+a_), X(t), "0")
        for a_ in range(2):
            for t in range(1, 5): m(ACC + 4*(2*(t-1) + a_), W(a_), X(t), "0")
        for a_ in range(2):
            for t in range(5): m(ACC + 4*(18 + 2*t + a_), X(t), W(4+a_), "0")
    else:
        for ct in range(6):
            for rt in range(4): m(ACC + 4*(6*rt + ct), W(ct), X(rt), vr(bias_reg(ct,0), 4))
    return out

def dma_x(role, bufreg):
    g = []
    if role == "att":
        g.append(([f"s_add_u32 m0, s{bufreg}, s{sXE}"],
                  [f"s_cmp_lt_u32 s{sW_}, 2", "s_cbranch_scc0 1f", f"buffer_load_dwordx4 v{XO+4}, s[16:19], s{sKX} offen lds", "1:"]))
    for j in range(4):
        m = f"s_add_u32 m0, s{bufreg}, s{sXD}" if j == 0 else "s_add_u32 m0, m0, 1024"
        g.append(([m], [f"buffer_load_dwordx4 v{XO+j}, s[16:19], s{sKX} offen lds"]))
    return g
def dma_w(bufreg, js, sw):
    g = []
    for k, j in enumerate(js):
        if k == 0: m = [f"s_add_u32 m0, s{bufreg}, s{sWD}"] + ([f"s_add_u32 m0, m0, {1024*j}"] if j else [])
        else: m = ["s_add_u32 m0, m0, 1024"]
        g.append((m, [f"buffer_load_dwordx4 v{WO+j}, s[20:23], s{sw} offen lds"]))
    return g
def h1(role, buf): return dma_x(role, buf) + dma_w(buf, [0], sKW)
def h2(role, buf, sw=None): return dma_w(buf, [1,2,3,4,5], sKW2 if sw is None else sw)

SCC_READ = ("s_cselect", "s_cbranch_scc", "s_addc", "s_subb")
SCC_WRITE = ("s_cmp", "s_add_u32", "s_sub_u32", "s_addc", "s_subb", "s_and_b", "s_or_b", "s_xor_b", "s_lshl_b", "s_lshr_b", "s_bitcmp", "s_add_i32")
def chunks(lines):
    n = len(lines); live = [False]*(n+1)
    for i in range(n-1, -1, -1):
        x = lines[i]
        if x.startswith(SCC_READ): live[i] = True
        elif x.startswith(SCC_WRITE): live[i] = False
        else: live[i] = live[i+1]
    out = []
    for i, x in enumerate(lines):
        if out and live[i]: out[-1].append(x)
        else: out.append([x])
    return out
def capture(fn, *args):
    t = Asm(); fn(t, *args); return [x.strip() for x in t.L]

def emit_pairs(a, pairs):
    for m, l in pairs:
        for x in m: a(x)
        a("s_nop 0")
        for x in l: a(x)

def schedule(mf, reads, dmas, extra=(), dma_first=2, read_span=20, xspan=None, tail=()):
    n = len(mf); after = [[] for _ in range(n)]
    if dmas:
        step = (n - dma_first) / len(dmas)
        for k, (m, l) in enumerate(dmas):
            p = int(dma_first + k * step)
            after[max(p-1, 0)] += m
            after[p] += l
    for k, r in enumerate(reads):
        after[min(int(k * read_span / len(reads)), n-1)].insert(0, r)
    for k, x in enumerate(extra):
        lo, hi = xspan or (0, n)
        after[min(int(lo + k * (hi - lo) / len(extra)), n-1)] += (x if isinstance(x, list) else [x])
    for k, x in enumerate(tail):
        after[n - len(tail) - 1 + k] += (x if isinstance(x, list) else [x])
    out = []
    for i in range(n):
        out.append(mf[i]); out += after[i]
    return out

sPRV, sCUR, sNXT = sFREE, sBUF, sIT + 0
sNXT = 63
def addr_set(role, h, sreg):
    n = 2 if role == "att" else 6
    w = WA if h == 0 else WA1
    return [f"v_add_u32 v{XA+h}, s{sreg}, v{XB+h}"] + [f"v_add_u32 v{w+t}, s{sreg}, v{WB+t}" for t in range(n)]
def rot_instrs():
    return [[f"s_mov_b32 s{T0}, s{sPRV}", f"s_mov_b32 s{sPRV}, s{sCUR}"], [f"s_mov_b32 s{sCUR}, s{sNXT}", f"s_mov_b32 s{sNXT}, s{T0}"]]
def adv_k():
    return [f"s_add_u32 s{sKX}, s{sKX}, 128", f"s_and_b32 s{sKX}, s{sKX}, 1023",
            f"s_add_u32 s{sKW}, s{sKW}, s{sRS64}", f"s_cmp_eq_u32 s{sKW}, s22", f"s_cselect_b32 s{sKW}, 0, s{sKW}"]
def adv_x(): return [f"s_add_u32 s{sKX}, s{sKX}, 128", f"s_and_b32 s{sKX}, s{sKX}, 1023"]
def adv_w(): return [f"s_add_u32 s{sKW}, s{sKW}, s{sRS64}", f"s_cmp_eq_u32 s{sKW}, s22", f"s_cselect_b32 s{sKW}, 0, s{sKW}"]
def with_adv(pieces, adv):
    m, l = pieces[-1]
    return pieces[:-1] + [(m, l + adv)]
def all_x(role, buf): return with_adv(dma_x(role, buf), adv_x())
def all_w(buf): return with_adv(dma_w(buf, [0,1,2,3,4,5], sKW), adv_w())
def adv_instrs():
    return [[f"s_mov_b32 s{sKW2}, s{sKW}"] + adv_k()]

def gate_instrs():
    g = []
    for q in range(4):
        for row in range(2):
            g.append(f"v_dot2_f32_bf16 v{GR+row}, v{GX+4*row+q}, v{GW+q}, {'0' if q == 0 else 'v%d' % (GR+row)}")
    g += ["s_nop 0", "s_nop 0"]
    for sh in (8, 4, 2, 1):
        for row in range(2):
            g.append(f"v_add_f32_dpp v{GR+row}, v{GR+row}, v{GR+row} row_ror:{sh} row_mask:0xf bank_mask:0xf")
    for op in ("v_permlane16_swap_b32", "v_permlane32_swap_b32"):
        for row in range(2): g.append(f"v_mov_b32 v{4+row}, v{GR+row}")
        for row in range(2): g.append(f"{op} v{GR+row}, v{4+row}")
        for row in range(2): g.append(f"v_add_f32 v{GR+row}, v{GR+row}, v{4+row}")
    for row in range(2): g.append(f"v_mul_f32 v{GR+row}, 0xbfb8aa3b, v{GR+row}")
    for row in range(2): g.append(f"v_exp_f32 v{GR+row}, v{GR+row}")
    for row in range(2): g.append(f"v_add_f32 v{GR+row}, 1.0, v{GR+row}")
    for row in range(2): g.append(f"v_rcp_f32 v{GR+row}, v{GR+row}")
    return g

def body(a, role, d1, d2, wait, first=False, last=False, x1=(), x2=(), dx1=(), dx2=(), loop=None, tail1=(), noadv=False):
    up0 = addr_set(role, 0, sNXT) if not last else []
    for x in schedule(p1_mfmas(role, 0, first), p1_reads(role, 1, 1), list(d1) + list(dx1), list(x1) + up0,
                      dma_first=1 if first else 2, tail=tail1, xspan=(0, 18)): a(x)
    if last:
        a("s_waitcnt lgkmcnt(0)")
        a("s_barrier")
        for x in schedule(p1_mfmas(role, 1), [], list(d2) + list(dx2), x2): a(x)
        return
    a(f"s_waitcnt vmcnt({wait}) lgkmcnt(0)")
    a("s_barrier")
    tail = (adv_instrs() if d2 and not noadv else []) + rot_instrs()
    if loop: tail.append([f"s_add_u32 s{sLOOP}, s{sLOOP}, 1", f"s_cmp_lt_u32 s{sLOOP}, {loop[1]}"])
    for x in schedule(p1_mfmas(role, 1), p1_reads(role, 0, 0), list(d2) + list(dx2), list(x2) + addr_set(role, 1, sNXT),
                      tail=tail, xspan=(0, 20)): a(x)
    a("s_waitcnt lgkmcnt(0)")
    if loop: a(f"s_cbranch_scc1 {loop[0]}")

sLOOP = 66
sBA, sBB, sBC, sBR = 96, 97, 98, 101
def b_base(step):
    if step < 4: return sBA, step*4096
    if step < 6: return sBB, (step-4)*4096
    if step < 9: return sBC + step - 6, 0
    if step < 13: return sBA, (step-9)*4096
    if step < 15: return sBB, (step-13)*4096
    return sBC, 0
sUB, sBO, sUA = 44, 45, 8
def next_step(u, dst, shift, pos):
    if pos >= 14:
        l = [f"s_cmp_gt_u32 s{sN2}, {pos}", f"s_cselect_b32 s{dst}, s{u}, 31",
             f"s_lshl_b32 s{dst}, s{dst}, {shift}" if shift < 32 else f"s_mul_i32 s{dst}, s{dst}, {shift}"]
    else:
        l = [f"s_lshl_b32 s{dst}, s{u}, {shift}" if shift < 32 else f"s_mul_i32 s{dst}, s{u}, {shift}"]
    return l + [f"s_add_u32 s{u}, s{u}, 1", f"s_cmp_eq_u32 s{u}, s{sN2}", f"s_cselect_b32 s{u}, 0, s{u}"]
def b_dma(step):
    g = []; sb, im = b_base(step)
    for dd in range(4):
        m = next_step(sUB, sBO, 15, step) if dd == 0 else []
        g.append((m + [f"s_add_u32 m0, s{sb}, {im + dd*1024}", f"s_add_u32 s57, s{sBO}, {dd*8192}"],
                  [f"buffer_load_dwordx4 v{vBD}, s[24:27], s57 offen lds"]))
    return g
def b_addr(step, regs):
    sb, im = b_base(step)
    return [f"v_add_u32 v{regs[c]}, s{sb}, v{vBF+c}" for c in range(4)]
def b_reads(step, dst, regs):
    out = []; sb, im = b_base(step)
    for c in range(4):
        out.append(f"ds_read_b64_tr_b16 {ar(dst+4*c,2)}, v{regs[c]} offset:{im}")
        out.append(f"ds_read_b64_tr_b16 {ar(dst+4*c+2,2)}, v{regs[c]} offset:{im+2048}")
    return out

sRB2, sCT2, sU2, sN2 = 12, 13, 14, 15
def p2_scalar_setup(a):
    a(f"s_and_b32 s{T0}, s2, 7"); a(f"s_lshr_b32 s{T1}, s2, 3")
    if OPT.get("p2b", 1) == 1:
        a(f"s_lshl_b32 s{sRB2}, s{T0}, 2"); a(f"s_lshr_b32 s{T2}, s{T1}, 3"); a(f"s_add_u32 s{sRB2}, s{sRB2}, s{T2}")
        a(f"s_and_b32 s{sCT2}, s{T1}, 7")
    else:
        a(f"s_lshr_b32 s{sRB2}, s{T0}, 1"); a(f"s_lshl_b32 s{sRB2}, s{sRB2}, 3"); a(f"s_lshr_b32 s{T2}, s{T1}, 2"); a(f"s_add_u32 s{sRB2}, s{sRB2}, s{T2}")
        a(f"s_and_b32 s{sCT2}, s{T0}, 1"); a(f"s_lshl_b32 s{sCT2}, s{sCT2}, 2"); a(f"s_and_b32 s{T2}, s{T1}, 3")
        a(f"s_xor_b32 s{T2}, s{T2}, {OPT.get('cx', 3)}"); a(f"s_add_u32 s{sCT2}, s{sCT2}, s{T2}")
    a(f"s_mov_b32 s{sU2}, 0"); a(f"s_mov_b32 s{sN2}, 16")
    for w, u0, n in ((1,16,15), (2,31,14), (3,45,14)):
        a(f"s_cmp_eq_u32 s{sW_}, {w}"); a(f"s_cselect_b32 s{sU2}, {u0}, s{sU2}"); a(f"s_cselect_b32 s{sN2}, {n}, s{sN2}")
    a(f"s_lshl_b32 s{sBA}, s{sW_}, 14"); a(f"s_add_u32 s{sBA}, s{sBA}, {GA}")
    a(f"s_lshl_b32 s{sBB}, s{sW_}, 13")
    a(f"s_mul_i32 s{T0}, s{sW_}, 12288"); a(f"s_add_u32 s{T0}, s{T0}, {GC}")
    for k in range(3):
        a(f"s_add_u32 s{sBC+k}, s{T0}, {4096*k}")
    a(f"s_cmp_eq_u32 s{sW_}, 3")
    a(f"s_cselect_b32 s{sBC+1}, {GC2}, s{sBC+1}"); a(f"s_cselect_b32 s{sBC+2}, {GC2+4096}, s{sBC+2}")
    a(f"s_mul_i32 s{sBR}, s{sW_}, {R2}")
    a(f"s_sub_u32 s{T0}, s{sU2}, 16"); a(f"s_lshl_b32 s{T0}, s{T0}, 15"); a(f"s_add_u32 s{T2}, s44, s{T0}"); a(f"s_addc_u32 s{T3}, s45, 0")
    a(f"s_cmp_eq_u32 s{sW_}, 0"); a(f"s_cselect_b32 s24, s8, s{T2}"); a(f"s_cselect_b32 s25, s9, s{T3}"); a("s_and_b32 s25, s25, 0xffff")
    a(f"s_lshl_b32 s26, s{sN2}, 15"); a("s_mov_b32 s27, 0x00020000")
    a(f"s_mul_i32 s{T0}, s{sU2}, {AWS_U}"); a(f"s_add_u32 s28, s10, s{T0}"); a("s_addc_u32 s29, s11, 0"); a("s_and_b32 s29, s29, 0xffff")
    a(f"s_mul_i32 s30, s{sN2}, {AWS_U}"); a("s_mov_b32 s31, 0x00020000")
    if OPT.get("rot2", 1) == 3:
        a(f"s_and_b32 s{T0}, s{sRB2}, {OPT.get('qm', 3)}"); a(f"s_mul_i32 s{T0}, s{T0}, {OPT.get('qa', 4)}")
        a(f"s_and_b32 s{T1}, s{sCT2}, {OPT.get('qc', 3)}"); a(f"s_mul_i32 s{T1}, s{T1}, {OPT.get('qb', 2)}"); a(f"s_add_u32 s{T0}, s{T0}, s{T1}")
    elif OPT.get("rot2", 1) == 1:
        a(f"s_and_b32 s{T0}, s{sRB2}, 3"); a(f"s_lshl_b32 s{T0}, s{T0}, 2"); a(f"s_lshl_b32 s{T1}, s{sCT2}, 1"); a(f"s_add_u32 s{T0}, s{T0}, s{T1}")
    elif OPT.get("p2b", 1) == 2:
        a(f"s_and_b32 s{T0}, s{sRB2}, 7"); a(f"s_lshl_b32 s{T0}, s{T0}, 1")
        a(f"s_lshr_b32 s{T1}, s{sRB2}, 3"); a(f"s_and_b32 s{T1}, s{T1}, 1"); a(f"s_add_u32 s{T0}, s{T0}, s{T1}")
        a(f"s_and_b32 s{T1}, s{sCT2}, 3"); a(f"s_lshl_b32 s{T1}, s{T1}, 2"); a(f"s_add_u32 s{T0}, s{T0}, s{T1}")
    else:
        a(f"s_and_b32 s{T0}, s{sRB2}, 3"); a(f"s_lshl_b32 s{T0}, s{T0}, 2")
        a(f"s_lshr_b32 s{T1}, s{sRB2}, 2"); a(f"s_and_b32 s{T1}, s{T1}, 3"); a(f"s_add_u32 s{T0}, s{T0}, s{T1}")
        a(f"s_and_b32 s{T1}, s{sCT2}, 3"); a(f"s_lshl_b32 s{T1}, s{T1}, 1"); a(f"s_add_u32 s{T0}, s{T0}, s{T1}")
    a(f"s_sub_u32 s{T1}, s{T0}, s{sN2}"); a(f"s_cmp_ge_u32 s{T0}, s{sN2}"); a(f"s_cselect_b32 s{sUB}, s{T1}, s{T0}")
    a(f"s_mov_b32 s{sUA}, s{sUB}")

def mix(a, valu, dmas, every):
    d = list(dmas); cnt = 0
    for k, x in enumerate(valu):
        a(x)
        if x.endswith(":") or x.startswith("s_cbranch"): continue
        cnt += 1
        if d and cnt % every == every - 2:
            for y in d[0][0]: a(y)
        if d and cnt % every == 0:
            for y in d[0][1]: a(y)
            d.pop(0)
    return d

def att_epilogue():
    e = []
    Q = lambda t, h: ACC + 4*(2*(t-1) + h)
    Kc = lambda t, h: ACC + 4*(8 + 2*t + h)
    V = lambda t, h: ACC + 4*(18 + 2*t + h)
    KF, VF, QF = 208, 228, 16
    kf = lambda t, h: KF + 10*h + 2*t
    vf = lambda t, h: VF + 10*h + 2*t
    qf = lambda t, h: QF + 2*(2*(t-1) + h)
    cv = lambda d, s: [f"v_cvt_pk_bf16_f32 v{d}, v{s}, v{s+1}", f"v_cvt_pk_bf16_f32 v{d+1}, v{s+2}, v{s+3}"]
    combos = [(t,h) for t in range(1,5) for h in range(2)]
    MC, MP, MF, SEL0, SEL1, ONES = 70, 72, 74, 76, 77, 78
    for t in range(5):
        for h in range(2): e += cv(kf(t,h), Kc(t,h))
    for (t,h) in combos: e += cv(qf(t,h), Q(t,h))
    S = lambda ci, blk: ACC + 8*ci + 4*blk
    vcv = []
    for t in range(5):
        for h in range(2): vcv += cv(vf(t,h), V(t,h))
    sm = []
    for ci,(t,h) in enumerate(combos):
        sm.append(f"v_mfma_f32_16x16x16_bf16 {vr(S(ci,0),4)}, {vr(kf(t-1,h),2)}, {vr(qf(t,h),2)}, 0")
        sm.append(f"v_mfma_f32_16x16x16_bf16 {vr(S(ci,1),4)}, {vr(kf(t,h),2)}, {vr(qf(t,h),2)}, 0")
    e.append("s_nop 1")
    for k, m in enumerate(sm):
        e.append(m)
        e += vcv[k*20//16:(k+1)*20//16]
    e += ["s_nop 7"]
    A = lambda ci: 160 + 4*ci
    for ci in range(8):
        for blk in range(2):
            s = S(ci, blk)
            e.append(f"v_cndmask_b32 v{A(ci)+2*blk}, v{s}, v{s+1}, s[46:47]")
            e.append(f"v_cndmask_b32 v{A(ci)+2*blk+1}, v{s+2}, v{s+3}, s[46:47]")
    for ci,(t,h) in enumerate(combos):
        mp = MF if t == 1 else MP
        e.append(f"v_pk_fma_f32 {vr(A(ci),2)}, {vr(A(ci),2)}, s[0:1], {vr(mp,2)} op_sel_hi:[1,0,1]")
        e.append(f"v_pk_fma_f32 {vr(A(ci)+2,2)}, {vr(A(ci)+2,2)}, s[0:1], {vr(MC,2)} op_sel_hi:[1,0,1]")
    MX = 4
    for ci in range(8):
        e.append(f"v_max3_f32 v{MX+ci}, v{A(ci)}, v{A(ci)+1}, v{A(ci)+2}")
    for ci in range(8):
        e.append(f"v_max_f32 v{MX+ci}, v{MX+ci}, v{A(ci)+3}")
    for q in range(2):
        b = MX + 4*q
        e += ["s_nop 0"] if q == 0 else []
        e.append(f"v_permlane32_swap_b32 v{b}, v{b+1}"); e.append(f"v_permlane32_swap_b32 v{b+2}, v{b+3}")
    for q in range(2):
        b = MX + 4*q
        e.append(f"v_max_f32 v{b}, v{b}, v{b+1}"); e.append(f"v_max_f32 v{b+2}, v{b+2}, v{b+3}")
    e.append("s_nop 0")
    for q in range(2):
        b = MX + 4*q
        e.append(f"v_permlane16_swap_b32 v{b}, v{b+2}")
    e.append("s_nop 0")
    for q in range(2):
        b = MX + 4*q
        e.append(f"v_max_f32 v{b}, v{b}, v{b+2}")
    for q in range(2):
        b = MX + 4*q
        e.append(f"v_mov_b32 v{b+1}, v{b}")
    e.append("s_nop 0")
    for q in range(2):
        b = MX + 4*q
        e.append(f"v_permlane32_swap_b32 v{b}, v{b+1}")
    e.append("s_nop 0")
    for q in range(2):
        b = MX + 4*q
        e.append(f"v_mov_b32 v{b+2}, v{b}"); e.append(f"v_mov_b32 v{b+3}, v{b+1}")
    e.append("s_nop 0")
    for q in range(2):
        b = MX + 4*q
        e.append(f"v_permlane16_swap_b32 v{b}, v{b+2}")
        e.append(f"v_permlane16_swap_b32 v{b+1}, v{b+3}")
    e.append("s_nop 0")
    for ci in range(8):
        e.append(f"v_pk_add_f32 {vr(A(ci),2)}, {vr(A(ci),2)}, {vr(MX+ci - (MX+ci)%2,2)} op_sel:[0,{(MX+ci)%2}] op_sel_hi:[1,{(MX+ci)%2}] neg_lo:[0,1] neg_hi:[0,1]")
        e.append(f"v_pk_add_f32 {vr(A(ci)+2,2)}, {vr(A(ci)+2,2)}, {vr(MX+ci - (MX+ci)%2,2)} op_sel:[0,{(MX+ci)%2}] op_sel_hi:[1,{(MX+ci)%2}] neg_lo:[0,1] neg_hi:[0,1]")
    P = lambda ci: ACC + 4*ci
    for ci in range(8):
        for r in range(4): e.append(f"v_exp_f32 v{A(ci)+r}, v{A(ci)+r}")
        if ci > 0:
            c1 = ci - 1
            e += [f"v_cvt_pk_bf16_f32 v12, v{A(c1)}, v{A(c1)+1}", f"v_cvt_pk_bf16_f32 v13, v{A(c1)+2}, v{A(c1)+3}",
                  f"v_perm_b32 v{P(c1)}, v12, v12, v{SEL0}", f"v_perm_b32 v{P(c1)+1}, v12, v12, v{SEL1}",
                  f"v_perm_b32 v{P(c1)+2}, v13, v13, v{SEL0}", f"v_perm_b32 v{P(c1)+3}, v13, v13, v{SEL1}"]
    e.append("s_nop 0")
    e += [f"v_cvt_pk_bf16_f32 v12, v{A(7)}, v{A(7)+1}", f"v_cvt_pk_bf16_f32 v13, v{A(7)+2}, v{A(7)+3}",
          f"v_perm_b32 v{P(7)}, v12, v12, v{SEL0}", f"v_perm_b32 v{P(7)+1}, v12, v12, v{SEL1}",
          f"v_perm_b32 v{P(7)+2}, v13, v13, v{SEL0}", f"v_perm_b32 v{P(7)+3}, v13, v13, v{SEL1}"]
    e.append("s_nop 1")
    O = lambda ci: 128 + 4*ci
    L = lambda ci: 160 + 4*ci
    for ci,(t,h) in enumerate(combos):
        e.append(f"v_mfma_f32_16x16x32_bf16 {vr(O(ci),4)}, {vr(vf(t-1,h),4)}, {vr(P(ci),4)}, 0")
        e.append(f"v_mfma_f32_16x16x32_bf16 {vr(L(ci),4)}, {vr(ONES,4)}, {vr(P(ci),4)}, 0")
    e.append("s_nop 6")
    for ci in range(8): e.append(f"v_rcp_f32 v{MX+ci}, v{L(ci)}")
    e.append("s_nop 0")
    for ci in range(8):
        sel = (MX+ci) % 2; pr = vr(MX+ci - sel, 2)
        e.append(f"v_pk_mul_f32 {vr(O(ci),2)}, {vr(O(ci),2)}, {pr} op_sel:[0,{sel}] op_sel_hi:[1,{sel}]")
        e.append(f"v_pk_mul_f32 {vr(O(ci)+2,2)}, {vr(O(ci)+2,2)}, {pr} op_sel:[0,{sel}] op_sel_hi:[1,{sel}]")
    for t in range(1,5):
        d = 16 + 4*(t-1)
        for h in range(2): e += cv(d + 2*h, O(2*(t-1)+h))
        e.append(f"buffer_store_dwordx4 {vr(d,4)}, v250, s[32:35], s{T6} offen offset:{(t-1)*1024} sc1")
    return e

def att_consts(a):
    a("s_mov_b32 s46, 0xaaaaaaaa"); a("s_mov_b32 s47, 0xaaaaaaaa")
    a("s_mov_b32 s0, 0x3eb8aa3b"); a("s_mov_b32 s1, 0x3eb8aa3b")
    a("v_and_b32 v8, 14, v3"); a("v_lshlrev_b32 v9, 2, v2"); a("v_sub_u32 v8, v8, v9")
    a("v_mov_b32 v9, 0xf149f2ca")
    for dst, blk in ((70, 0), (72, 16)):
        for k in range(2):
            a(f"v_add_u32 v10, {blk - 2*k}, v8")
            a("v_cmp_gt_u32 s[6:7], 15, v10")
            a("s_nop 1")
            a(f"v_cndmask_b32 v{dst+k}, v9, 0, s[6:7]")
    a(f"s_or_b32 s{T0}, s{sRB}, s{sRH}"); a(f"s_cmp_eq_u32 s{T0}, 0"); a("s_cselect_b64 s[6:7], -1, 0")
    for k in range(2): a(f"v_cndmask_b32 v{74+k}, v{72+k}, v9, s[6:7]")
    a("v_mov_b32 v76, 0x0c0c0100"); a("v_mov_b32 v10, 0x01000c0c"); a("v_cndmask_b32 v76, v76, v10, s[46:47]")
    a("v_mov_b32 v77, 0x0c0c0302"); a("v_mov_b32 v10, 0x03020c0c"); a("v_cndmask_b32 v77, v77, v10, s[46:47]")
    for r in range(4): a(f"v_mov_b32 v{78+r}, 0x3f803f80")
    a(f"s_lshl_b32 s{T6}, s{sGRP}, 1"); a(f"s_add_u32 s{T6}, s{T6}, s{sCH}"); a(f"s_mul_i32 s{T6}, s{T6}, {AWS_U}")
    a(f"s_lshl_b32 s{T0}, s{sRB}, 3"); a(f"s_lshl_b32 s{T1}, s{sRH}, 2"); a(f"s_add_u32 s{T0}, s{T0}, s{T1}"); a(f"s_lshl_b32 s{T0}, s{T0}, 10")
    a("v_lshlrev_b32 v250, 4, v1"); a(f"v_add_u32 v250, s{T0}, v250")

def ffn_pairs(m, rr, D):
    e = []
    prs = [ACC + 4*(6*rr + 2*m + hh) + 2*q for hh in range(2) for q in range(2)]
    T = [16 + 2*k for k in range(4)]
    for k in range(4): e.append(f"v_pk_mul_f32 {vr(T[k],2)}, {vr(prs[k],2)}, s[0:1] op_sel_hi:[1,0]")
    for k in range(4):
        e.append(f"v_exp_f32 v{T[k]}, v{T[k]}"); e.append(f"v_exp_f32 v{T[k]+1}, v{T[k]+1}")
    U = [24 + 2*k for k in range(4)]
    for k in range(4): e.append(f"v_pk_fma_f32 {vr(U[k],2)}, {vr(T[k],2)}, 0.5, 1.0 op_sel_hi:[1,0,0]")
    for k in range(4): e.append(f"v_pk_fma_f32 {vr(U[k],2)}, {vr(U[k],2)}, {vr(T[k],2)}, 1.0 op_sel_hi:[1,1,0]")
    for k in range(4):
        e.append(f"v_rcp_f32 v{U[k]}, v{U[k]}"); e.append(f"v_rcp_f32 v{U[k]+1}, v{U[k]+1}")
    for k in range(4): e.append(f"v_pk_fma_f32 {vr(prs[k],2)}, {vr(prs[k],2)}, {vr(U[k],2)}, {vr(prs[k],2)} neg_lo:[1,0,0] neg_hi:[1,0,0]")
    for k in range(4): e.append(f"v_cvt_pk_bf16_f32 v{D+k}, v{prs[k]}, v{prs[k]+1}")
    return e

def ffn_epilogue(nunits):
    e = []
    for m in range(nunits):
        for rr in range(4):
            D = 32 + 4*(rr & 1)
            e += ffn_pairs(m, rr, D)
            e.append(f"buffer_store_dwordx4 {vr(D,4)}, v250, s[32:35], s{T6} offen offset:{rr*1024} sc1")
        e.append(f"s_add_u32 s{T6}, s{T6}, {AWS_U}")
    return e

def ffn_consts(a):
    a(f"s_mov_b32 s0, {LOG2E}"); a(f"s_mov_b32 s1, {LOG2E}")
    a(f"s_mul_i32 s{T6}, s{sCH}, 3"); a(f"s_add_u32 s{T6}, s{T6}, s{sU0}"); a(f"s_add_u32 s{T6}, s{T6}, 16"); a(f"s_mul_i32 s{T6}, s{T6}, {AWS_U}")
    a(f"s_lshl_b32 s{T0}, s{sRB}, 3"); a(f"s_lshl_b32 s{T1}, s{sRH}, 2"); a(f"s_add_u32 s{T0}, s{T0}, s{T1}"); a(f"s_lshl_b32 s{T0}, s{T0}, 10")
    a("v_lshlrev_b32 v250, 4, v1"); a(f"v_add_u32 v250, s{T0}, v250")

def gate_store(a):
    a("v_cmp_eq_u32 s[68:69], 0, v1")
    a("s_nop 1")
    a("s_and_saveexec_b64 s[66:67], s[68:69]")
    a(f"buffer_store_dwordx2 {vr(GR,2)}, v{vGST}, s[36:39], 0 offen sc1")
    a("s_mov_b64 exec, s[66:67]")

NB1 = 9
def weave(a, main, inserts):
    ins = {}
    for p, l in inserts: ins.setdefault(min(p, len(main)-1), []).extend(l)
    for i, x in enumerate(main):
        a(x)
        for y in ins.get(i, []): a(y)

def dma_inserts(dmas, lo, hi):
    out = []
    for k, (m, l) in enumerate(dmas):
        p = int(lo + 2 + k * (hi - lo - 2) / len(dmas))
        out.append((p - 2, m)); out.append((p, l))
    return out

def b_copy(steps):
    tr = [60, 61, 62, 63]; out = []; last = None
    for st in steps:
        sb = b_base(st)[0]
        if sb != last: out += b_addr(st, tr)
        last = sb
        out += b_reads(st, 16*st, tr)
    return out

def is_vmem(x): return x.startswith("buffer_") or x.startswith("global_")
def resolve_waits(flat, init):
    out = []
    for i, x in enumerate(flat):
        if x.startswith("@wait"):
            tag = x.split()[1]
            pos = [j for j in range(i) if flat[j].endswith("; " + tag)]
            n = sum(1 for y in flat[pos[-1]+1:i] if is_vmem(y)) if pos else init[tag] + sum(1 for y in flat[:i] if is_vmem(y))
            out.append(f"s_waitcnt vmcnt({n})")
        else: out.append(x)
    return out
def weave_list(main, inserts):
    ins = {}
    for p, l in inserts: ins.setdefault(min(p, len(main)-1), []).extend(l)
    out = []
    for i, x in enumerate(main):
        out.append(x); out += ins.get(i, [])
    return out
def tag_last(dmas, tag):
    m, l = dmas[-1]
    return dmas[:-1] + [(m, [l[0] + " ; " + tag] + l[1:])]

def staged_epilogue(a, e, rest, P):
    n = len(e)
    r2 = []
    for st in range(NB1, 16): r2 += b_dma(st)
    ins = dma_inserts(tag_last(rest, "R1"), 0, P["r1"])
    ins.append((P["w1"], ["@wait S5"]))
    cp = b_copy(range(0, 6))
    for k, x in enumerate(cp): ins.append((P["w1"] + 1 + int(k * (P["c1"] - P["w1"] - 1) / len(cp)), [x]))
    ins.append((P["c1"] + 2, ["s_waitcnt lgkmcnt(0)"]))
    k2 = P["n2"]; assert k2 <= 24
    ins += dma_inserts(r2[:k2], P["c1"] + 3, P["d2"])
    ins.append((P["w2"], ["@wait R1"]))
    cp = b_copy(range(6, 9))
    for k, x in enumerate(cp): ins.append((P["w2"] + 1 + int(k * (P["c2"] - P["w2"] - 1) / len(cp)), [x]))
    assert P["c2"] < n
    flat = resolve_waits(weave_list(e, ins), {"S5": OPT.get("b7", 8) + 1})
    for x in flat: a(x)
    return r2[k2:]

def count_vmem(lines): return sum(1 for x in lines if x.startswith("buffer_") or x.startswith("global_"))

def epilogue_with_staging(a, R, e, rest, frac):
    n = len(e)
    p_r1, p_cp0, p_cp1, p_bar = frac[0], int(n*frac[1]), int(n*frac[2]), int(n*frac[3])
    assert count_vmem(e[:p_r1+1]) == 0
    ins = dma_inserts(rest, 0, p_r1)
    later = count_vmem(e[:p_cp0+1])
    ins.append((p_cp0, [f"s_waitcnt vmcnt({later})"]))
    cp = round1_copy()
    for k, x in enumerate(cp): ins.append((p_cp0 + int(k * (p_cp1 - p_cp0) / len(cp)), [x]))
    ins.append((p_bar, ["s_waitcnt lgkmcnt(0)", "s_barrier"]))
    r2 = []
    for st in range(NB1, 16): r2 += b_dma(st)
    k2 = OPT.get(R + "r2", 10)
    ins += dma_inserts(r2[:k2], p_bar + 1, n - 1)
    weave(a, e, ins)
    return r2[k2:]

def w_offsets(a, R):
    RS, SEG = (3072, 1024) if R == "att" else (2752, 128)
    a(f"v_mul_u32_u24 v7, {RS}, v4")
    a("v_and_b32 v8, 1, v2"); a("v_lshlrev_b32 v8, 1, v8"); a("v_xor_b32 v8, v8, v5"); a("v_xor_b32 v9, 4, v8")
    a("v_lshl_add_u32 v10, v8, 4, v7"); a("v_lshl_add_u32 v11, v9, 4, v7")
    a(f"s_mul_i32 s{T0}, s{sW_}, 6"); a(f"s_lshr_b32 s{T1}, s{T0}, 3"); a(f"s_and_b32 s{T0}, s{T0}, 7")
    a(f"s_mul_i32 s{T1}, s{T1}, {SEG}"); a(f"s_mul_i32 s{T0}, s{T0}, {8*RS}"); a(f"s_add_u32 s{T0}, s{T0}, s{T1}")
    a(f"s_lshl_b32 s{T1}, s{sGRP if R == 'att' else sU0}, {7 if R == 'att' else 6}"); a(f"s_add_u32 s{T0}, s{T0}, s{T1}")
    a(f"s_mov_b32 s{T1}, {8*RS}"); a(f"s_mov_b32 s{T4}, {SEG - 56*RS}")
    a(f"s_cmp_eq_u32 s{sW_}, 1"); a(f"s_cselect_b32 s{T2}, s{T4}, s{T1}")
    a(f"s_cmp_eq_u32 s{sW_}, 2"); a(f"s_cselect_b32 s{T3}, s{T4}, s{T1}")
    for j in range(6):
        a(f"v_add_u32 v{WO+j}, s{T0}, v{10 + (j&1)}")
        if j < 5: a(f"s_add_u32 s{T0}, s{T0}, s{ {1: T2, 3: T3}.get(j, T1) }")
    if R == "ffn":
        a(f"s_cmp_ge_u32 s{sGRP}, 3"); a(f"s_cselect_b32 s{T0}, s{sRH}, 0"); a(f"s_cmp_eq_u32 s{T0}, 1"); a("s_cbranch_scc0 Lffn_woffdone")
        a("v_lshrrev_b32 v12, 2, v8"); a("v_lshlrev_b32 v12, 30, v12"); a("v_xor_b32 v13, 0x40000000, v12")
        for j in (4, 5): a(f"v_add_u32 v{WO+j}, v{WO+j}, v{12 + (j&1)}")
        a(f"s_cmp_eq_u32 s{sW_}, 3"); a("s_cbranch_scc0 Lffn_woffdone")
        for j in range(4): a(f"v_add_u32 v{WO+j}, v{WO+j}, v{12 + (j&1)}")
        a.label("Lffn_woffdone")
    p = 6 if R == "att" else 12
    a(f"s_mov_b32 s20, s{p}"); a(f"s_and_b32 s21, s{p+1}, 0xffff"); a(f"s_mov_b32 s22, {512*RS}"); a("s_mov_b32 s23, 0x00020000")
    a(f"s_mov_b32 s{sRS64}, {64*RS}"); a(f"s_mul_i32 s{sKW}, s{T6}, {64*RS}")

def misc_setup(a, R):
    j16 = (8 if R == "ffn" else 0)
    a(f"s_add_u32 s{T2}, s{sGRP}, {j16}"); a(f"s_lshl_b32 s{T2}, s{T2}, 3")
    a(f"s_lshl_b32 s{T1}, s{sRB}, 7"); a(f"s_add_u32 s{T2}, s{T2}, s{T1}")
    a(f"s_lshl_b32 s{T1}, s{sW_}, 1"); a(f"s_add_u32 s{T0}, s{T2}, s{T1}")
    a(f"s_lshl_b32 s{T1}, s{T0}, 10"); a(f"s_lshl_b32 s{T0}, s{T0}, 2")
    a("v_lshlrev_b32 v5, 4, v1"); a(f"v_add_u32 v4, s{T1}, v5"); a(f"v_mov_b32 v{vGST}, s{T0}")
    a(f"s_add_u32 s{T2}, s{T2}, {FLAG_OFF}"); a(f"s_lshl_b32 s{T1}, s{sRB}, 4")
    a("v_cmp_eq_u32 s[28:29], 0, v0"); a("v_mov_b32 v7, 0x40000000")
    a(f"v_mov_b32 v8, s{T2}"); a(f"v_mov_b32 v{vCLR}, s{T1}")
    a(f"v_cndmask_b32 v{vFLG}, v7, v8, s[28:29]")
    a(f"s_add_u32 s36, s10, {G_OFF}"); a("s_addc_u32 s37, s11, 0"); a("s_and_b32 s37, s37, 0xffff")
    a("s_mov_b32 s38, 32768"); a("s_mov_b32 s39, 0x00020000")
    a("v_mov_b32 v7, 0")
    a(f"buffer_store_dword v7, v{vFLG}, s[36:39], 0 offen sc1")
    a(f"s_cmp_eq_u32 s{sW_}, 0"); a("s_cselect_b64 s[4:5], 1, 0")
    srd(a, 28, 46, 1024)
    if R == "ffn":
        srd(a, 24, 14, 2752)
        a(f"s_lshl_b32 s{T0}, s{sU0}, 6"); a(f"s_mul_i32 s{T1}, s{sCH}, 192"); a(f"s_add_u32 s{T0}, s{T0}, s{T1}")
        a("v_lshlrev_b32 v6, 3, v2"); a(f"v_add_u32 v6, s{T0}, v6")

def phase1_role(a, R):
    if R == "ffn":
        a(f"s_mul_i32 s{sU0}, s{sGRP}, 6"); a(f"s_mul_i32 s{T0}, s{sGRP}, 5"); a(f"s_add_u32 s{T0}, s{T0}, 3")
        a(f"s_cmp_le_u32 s{sGRP}, 3"); a(f"s_cselect_b32 s{sU0}, s{sU0}, s{T0}")
    a(f"s_lshl_b32 s{T5}, s{sRB}, 17")
    if R == "att": a(f"s_sub_u32 s{T5}, s{T5}, 16384")
    a(f"s_lshl_b32 s{T0}, s{sW_}, 15"); a(f"s_add_u32 s{T0}, s{T0}, s{T5}")
    if R == "att":
        a(f"s_cmp_lt_i32 s{T0}, 0"); a(f"s_cselect_b32 s{T1}, 16384, 0"); a(f"s_add_u32 s{T1}, s{T1}, s{T0}")
    for j in range(4):
        src = T1 if (j < 2 and R == "att") else T0
        if j: a(f"s_add_u32 s{T2}, s{src}, {8192*j}")
        a(f"v_add_u32 v{XO+j}, s{T2 if j else src}, v{8 + (j&1)}")
    if R == "att":
        a(f"s_lshl_b32 s{T0}, s{sW_}, 13"); a(f"s_add_u32 s{T0}, s{T0}, s{T5}"); a(f"s_add_u32 s{T0}, s{T0}, {128*1024}")
        a(f"s_lshl_b32 s{T1}, s{sCH}, 6"); a(f"v_xor_b32 v10, s{T1}, v8"); a(f"v_add_u32 v{XO+4}, s{T0}, v10")
    a("s_waitcnt lgkmcnt(0)")
    stamp(a, 1)
    srd(a, 16, 4, 2048*1024)
    emit_pairs(a, all_x(R, sCUR))
    w_offsets(a, R)
    emit_pairs(a, all_w(sCUR))
    misc_setup(a, R)
    a(f"buffer_load_dwordx4 {vr(GX,4)}, v4, s[16:19], 0 offen"); a(f"buffer_load_dwordx4 {vr(GX+4,4)}, v4, s[16:19], 0 offen offset:1024")
    a(f"buffer_load_dwordx4 {vr(GW,4)}, v5, s[28:31], 0 offen")
    if R == "ffn":
        for tt in range(6): a(f"buffer_load_dwordx2 {vr(BIAS+2*tt,2)}, v6, s[24:27], 0 offen offset:{tt*32}")
    late = chunks(capture(late_setup, R))
    pieces = all_x(R, sNXT)
    per = -(-len(late) // (len(pieces) + 1)); k = 0
    for m, l in pieces:
        for ch in late[k:k+per]:
            for x in ch: a(x)
        k += per
        for x in m: a(x)
        a("s_nop 0")
        for x in l: a(x)
    for ch in late[k:]:
        for x in ch: a(x)
    stamp(a, 2)
    for x in addr_set(R, 0, sCUR) + addr_set(R, 1, sCUR): a(x)
    (att_consts if R == "att" else ffn_consts)(a)
    a("s_waitcnt vmcnt(4)")
    a("s_barrier")
    stamp(a, 3)
    for x in p1_reads(R, 0, 0): a(x)
    if R == "ffn":
        for tt in range(6):
            for q in range(2):
                a(f"v_lshlrev_b32 v{bias_reg(tt,2*q)}, 16, v{BIAS+2*tt+q}")
                a(f"v_and_b32 v{bias_reg(tt,2*q+1)}, 0xffff0000, v{BIAS+2*tt+q}")
    a("s_waitcnt lgkmcnt(0)")
    istamp(a, 1)
    g = gate_instrs()
    body(a, R, all_w(sNXT) + all_x(R, sPRV), all_w(sPRV) + all_x(R, sCUR), 4, first=True, noadv=True, x1=g[:22], x2=g[22:])
    istamp(a, 2)
    body(a, R, all_w(sPRV), h1(R, sCUR), 10, x2=[["v_mov_b32 v7, 1", "s_and_saveexec_b64 s[6:7], s[4:5]", "s_cbranch_execz 2f", f"global_atomic_add v{vCLR}, v7, s[50:51] sc1", "2:", "s_mov_b64 exec, s[6:7]"]])
    if OPT.get("iter"):
        for it in range(2, 5):
            istamp(a, 1 + it)
            body(a, R, h2(R, sPRV), h1(R, sCUR), 10)
    else:
        a(f"s_mov_b32 s{sLOOP}, 2")
        a.label(f"L{R}_loop")
        body(a, R, h2(R, sPRV), h1(R, sCUR), 10, loop=(f"L{R}_loop", 5))
    istamp(a, 6)
    bd = []
    for st in range(NB1): bd += b_dma(st)
    n = OPT.get("bper", 6)
    assert 4*n <= 24 and 3*n <= 24 and 2*n <= 16
    body(a, R, h2(R, sPRV), [], 10, dx2=bd[:n])
    istamp(a, 7)
    body(a, R, [], [], 2*n, dx1=bd[n:2*n], dx2=bd[2*n:3*n])
    fl = []
    istamp(a, 8)
    n7 = OPT.get("b7", 8)
    body(a, R, [], [], 0, last=True, x1=fl, dx1=bd[3*n:4*n], dx2=bd[4*n:4*n+n7])
    rest = bd[4*n+n7:]
    istamp(a, 9)
    stamp(a, 4)
    a("global_load_dword v64, v43, s[50:51] sc1")
    a.nop(8)
    if R == "att":
        weave(a, att_epilogue(), dma_inserts(rest, 0, 40))
    else:
        e = ffn_epilogue(3); k = 2*len(e)//3
        weave(a, e[:k], dma_inserts(rest, 0, 30))
        a(f"s_cmp_ge_u32 s{sGRP}, 3"); a(f"s_cselect_b32 s{T0}, s{sCH}, 0"); a(f"s_cmp_eq_u32 s{T0}, 1"); a("s_cbranch_scc1 Lffn_done")
        for x in e[k:]: a(x)
        a.label("Lffn_done")
    gate_store(a)
    p2_pre(a)
    istamp(a, 10)
    stamp(a, 5)
    a(f"s_waitcnt vmcnt({5 if R == 'att' else 9})")
    for x in b_copy(range(0, NB1)): a(x)
    a("s_waitcnt lgkmcnt(0)")
    r2 = []
    for st in range(NB1, 16): r2 += b_dma(st)
    npre = OPT.get("r2pre", 4)
    emit_pairs(a, r2[:npre])
    a(f"s_waitcnt vmcnt({npre})")
    a("s_barrier")
    a("v_mov_b32 v5, 1")
    a(f"buffer_store_dword v5, v{vFLG}, s[36:39], 0 offen sc1")
    stamp(a, 6)
    if R == "att": a("s_branch Lphase2")

JR = [2, 3, 14, 15]
def p2_pre(a):
    a(f"v_mov_b32 v0, v{vOUT}")
    a("v_lshlrev_b32 v4, 4, v1"); a(f"s_lshl_b32 s{T1}, s{sRB2}, 12")
    for tau in range(4):
        a(f"s_add_u32 s{T0}, s{sW_}, {tau}"); a(f"s_and_b32 s{T0}, s{T0}, 3"); a(f"s_lshl_b32 s{T0}, s{T0}, 10"); a(f"s_add_u32 s{T0}, s{T0}, s{T1}")
        a(f"v_add_u32 v{8+tau}, s{T0}, v4")
    srd(a, 16, 48, 2048*1024)

def late_setup(a, R):
    a("v_lshrrev_b32 v7, 1, v3")
    a(f"s_lshl_b32 s{T0}, s{sRH}, 13")
    for h in range(2):
        a(f"v_or_b32 v8, {4*h}, v2"); a("v_xor_b32 v8, v8, v7"); a("v_lshlrev_b32 v8, 4, v8")
        a("v_lshl_add_u32 v8, v3, 7, v8"); a(f"v_add_u32 v{XB+h}, s{T0}, v8")
    a("v_bfe_u32 v7, v1, 2, 2"); a("v_and_b32 v8, 3, v1")
    a("v_lshl_add_u32 v9, v2, 3, v7"); a("v_lshlrev_b32 v9, 7, v9")
    a("v_and_b32 v10, 1, v8"); a("v_lshl_add_u32 v9, v10, 3, v9")
    a("v_and_b32 v10, 2, v7"); a("v_and_b32 v11, 1, v2"); a("v_lshl_or_b32 v10, v11, 2, v10")
    a("v_lshrrev_b32 v11, 1, v8"); a("v_xor_b32 v10, v10, v11")
    if R == "att":
        for t in range(2):
            a(f"s_lshl_b32 s{T0}, s{sCH}, 2"); a(f"s_add_u32 s{T0}, s{T0}, {2*t}")
            a(f"v_xor_b32 v11, s{T0}, v10"); a("v_lshl_add_u32 v11, v11, 4, v9"); a(f"v_add_u32 v{WB+t}, {WOFF}, v11")
    else:
        for t in range(6):
            a(f"s_mul_i32 s{T0}, s{sCH}, 6"); a(f"s_add_u32 s{T0}, s{T0}, {t}")
            a(f"s_lshr_b32 s{T1}, s{T0}, 2"); a(f"s_and_b32 s{T0}, s{T0}, 3"); a(f"s_lshl_b32 s{T0}, s{T0}, 1")
            a(f"s_lshl_b32 s{T1}, s{T1}, 13"); a(f"s_add_u32 s{T1}, s{T1}, {WOFF}")
            a(f"v_xor_b32 v11, s{T0}, v10"); a("v_lshl_add_u32 v11, v11, 4, v9"); a(f"v_add_u32 v{WB+t}, s{T1}, v11")
    srd(a, 32, 10, 59*AWS_U)
    p2_scalar_setup(a)
    a("v_lshrrev_b32 v7, 3, v1"); a("v_and_b32 v8, 7, v1"); a("v_lshlrev_b32 v9, 1, v2"); a("v_xor_b32 v8, v8, v9")
    a("v_lshlrev_b32 v8, 4, v8"); a("v_lshl_add_u32 v7, v7, 10, v8"); a(f"s_lshl_b32 s{T0}, s{sCT2}, 7"); a(f"v_add_u32 v{vBD}, s{T0}, v7")
    a("v_bfe_u32 v7, v1, 2, 2"); a("v_and_b32 v8, 3, v1")
    a("v_lshl_add_u32 v9, v2, 2, v7"); a("v_bfe_u32 v10, v9, 1, 2"); a("v_lshlrev_b32 v10, 1, v10")
    a("v_lshlrev_b32 v9, 7, v9"); a("v_and_b32 v11, 1, v8"); a("v_lshl_add_u32 v9, v11, 3, v9")
    a("v_lshrrev_b32 v11, 1, v8"); a("v_xor_b32 v10, v10, v11")
    for c in range(4):
        a(f"v_xor_b32 v11, {2*c}, v10"); a(f"v_lshl_add_u32 v{vBF+c}, v11, 4, v9")
    a(f"s_lshr_b32 s{T0}, s{sRB2}, 1"); a(f"s_lshl_b32 s{T0}, s{T0}, 4"); a(f"v_mov_b32 v43, s{T0}")
    a(f"s_lshl_b32 s{T0}, s{sRB2}, 2"); a(f"s_add_u32 s{T0}, s{T0}, s{sW_}"); a(f"s_lshl_b32 s{T0}, s{T0}, 6")
    a("v_lshlrev_b32 v7, 2, v3"); a(f"v_add_u32 v{vGRD}, s{T0}, v7")
    a(f"s_lshl_b32 s{T0}, s{T0}, 8"); a(f"s_lshl_b32 s{T1}, s{sCT2}, 7"); a(f"s_add_u32 s{T0}, s{T0}, s{T1}")
    a("v_and_b32 v7, 1, v2"); a("v_lshlrev_b32 v7, 5, v7"); a("v_lshrrev_b32 v8, 1, v2"); a("v_lshl_add_u32 v7, v8, 4, v7")
    a("v_lshl_add_u32 v7, v3, 10, v7"); a(f"v_add_u32 v{vOUT}, s{T0}, v7")

RED = 114688
def phase2(a):
    ACC2, AR, NR, DEP = 16, 80, 6, OPT.get('dep', 4)
    JIT = [144, 160]
    a.label("Lphase2")
    assert OPT.get("r2pre", 4) <= 20
    r2 = []
    for st in range(NB1, 14): r2 += b_dma(st)
    emit_pairs(a, r2[OPT.get("r2pre", 4):])
    for st in (14, 15):
        a(f"s_cmp_gt_u32 s{sN2}, {st}"); a("s_cbranch_scc0 Lp2_nomore")
        emit_pairs(a, b_dma(st))
    a.label("Lp2_nomore")
    a(f"s_lshr_b32 s{T2}, s{sRB2}, 1"); a(f"s_lshl_b32 s{T2}, s{T2}, 7"); a(f"s_add_u32 s{T2}, s{T2}, {FLAG_OFF}")
    a("v_and_b32 v5, 15, v1"); a(f"v_lshl_add_u32 v5, v5, 3, s{T2}")
    a("v_readfirstlane_b32 s68, v64")
    a(f"s_cmp_eq_u32 s{sW_}, 0"); a("s_cbranch_scc0 Lp2_other")
    a(f"s_mov_b32 s{T1}, 0")
    a.label("Lp2_clr")
    a("s_cmp_ge_u32 s68, 16"); a("s_cbranch_scc1 Lp2_cleared")
    a("s_sleep 8")
    a("global_load_dword v64, v43, s[50:51] sc1")
    a(f"s_add_u32 s{T1}, s{T1}, 1")
    a("s_waitcnt vmcnt(0)")
    a("v_readfirstlane_b32 s68, v64")
    a(f"s_cmp_gt_u32 s{T1}, 0x100000"); a("s_cbranch_scc0 Lp2_clr")
    a.label("Lp2_cleared")
    a("buffer_load_dword v6, v5, s[36:39], 0 offen sc1")
    a("s_waitcnt vmcnt(1)")
    for x in b_copy(range(NB1, 16)): a(x)
    a("s_waitcnt vmcnt(0)")
    a("s_branch Lp2_check")
    a.label("Lp2_poll")
    a(f"s_sleep {OPT.get('sleep', 1)}")
    a("buffer_load_dword v6, v5, s[36:39], 0 offen sc1")
    a(f"s_add_u32 s{T1}, s{T1}, 1")
    a("s_waitcnt vmcnt(0)")
    a(f"s_cmp_gt_u32 s{T1}, 0x200000"); a("s_cbranch_scc1 Lp2_go")
    a.label("Lp2_check")
    a("v_cmp_ne_u32 vcc, 1, v6")
    a("s_nop 4")
    a("s_cbranch_vccnz Lp2_poll")
    a("s_branch Lp2_go")
    a.label("Lp2_other")
    a("s_waitcnt vmcnt(0)")
    for x in b_copy(range(NB1, 16)): a(x)
    a.label("Lp2_go")
    a("s_waitcnt lgkmcnt(0)")
    a("s_barrier")
    stamp(a, 7)
    def loadA(step):
        return [f"buffer_load_dwordx4 {vr(AR+16*(step%NR)+4*tau,4)}, v{8+tau}, s[28:31], s{T0 + (step & 1)} offen sc1" for tau in (1, 2, 3, 0)]
    a(f"buffer_load_dword v12, v{vGRD}, s[36:39], 0 offen sc1")
    for st in range(DEP):
        for x in next_step(sUA, T0 + (st & 1), AWS_U, st): a(x)
        for x in loadA(st): a(x)
    NS = 16
    pre = []
    pre.append(["v_lshlrev_b32 v4, 4, v1", f"v_add_u32 v4, {RED}, v4"])
    for tau in range(1, 4):
        pre.append([f"s_add_u32 s{T2}, s{sW_}, {tau}", f"s_and_b32 s{T2}, s{T2}, 3", f"s_mul_i32 s{T2}, s{T2}, 12288", f"v_add_u32 v{175+tau}, s{T2}, v4"])
    pre.append([f"s_mul_i32 s{T2}, s{sW_}, 12288", f"v_add_u32 v179, s{T2}, v4"])
    pre.append(["v_sub_f32 v13, 1.0, v12"])
    for k in range(4):
        pre.append([f"s_sub_u32 s{T2}, s{sW_}, {k}", f"s_and_b32 s{T2}, s{T2}, 3", f"s_cmp_eq_u32 s{T2}, 0", "s_cselect_b64 s[68:69], -1, 0",
                    f"v_cndmask_b32 v{180+k}, v13, v12, s[68:69]"])
    for st in range(NS):
        younger = min(st + DEP - 1, NS - 1) - st
        if st >= 14:
            a(f"s_cmp_gt_u32 s{sN2}, {st}"); a("s_cbranch_scc0 Lp2_short")
        a(f"s_waitcnt vmcnt({4*younger})")
        if st == 0: stamp(a, 8)
        bsrc = 16*st
        mf = []
        for tau in (1, 2, 3, 0):
            for c in range(4):
                d = ACC2 + 4*(4*tau + c)
                C = vr(d,4) if st > 0 else "0"
                mf.append(f"v_mfma_f32_16x16x32_bf16 {vr(d,4)}, {ar(bsrc+4*c,4)}, {vr(AR+16*(st%NR)+4*tau,4)}, {C}")
        nxt = st + 1
        rd = []
        after = [[] for _ in mf]
        for k, x in enumerate(rd): after[k].append(x)
        if st + DEP < NS:
            after[0] += next_step(sUA, T0 + ((st+DEP) & 1), AWS_U, st + DEP)
            for k, x in enumerate(loadA(st + DEP)): after[1 + 4*k].append(x)
        if 1 <= st <= 5:
            for k, ch in enumerate(pre[2*(st-1):2*st]): after[3 + 6*k] += ch
        if st == NS - 1:
            for tau in (1, 2):
                for c in range(4):
                    after[min(4*tau + 4 + c, 15)].append(f"ds_write_b128 v{175+tau}, {vr(ACC2+4*(4*tau+c),4)} offset:{(tau-1)*4096 + c*1024}")
        for m, f in zip(mf, after):
            a(m)
            for x in f: a(x)
    a.nop(2)
    a("s_branch Lp2_red")
    a.label("Lp2_short")
    a("s_waitcnt vmcnt(0)")
    a.nop(8)
    for tau in (1, 2):
        for c in range(4):
            a(f"ds_write_b128 v{175+tau}, {vr(ACC2+4*(4*tau+c),4)} offset:{(tau-1)*4096 + c*1024}")
    a.label("Lp2_red")
    stamp(a, 9)
    for c in range(4):
        a(f"ds_write_b128 v178, {vr(ACC2+4*(12+c),4)} offset:{2*4096 + c*1024}")
    for r in range(0, 16, 2): a(f"v_pk_mul_f32 {vr(ACC2+r,2)}, {vr(ACC2+r,2)}, {vr(180,2)} op_sel_hi:[1,0]")
    a("s_waitcnt lgkmcnt(0)"); a("s_barrier")
    R = 80
    for pos in range(3):
        for c in range(4):
            a(f"ds_read_b128 {vr(R+16*pos+4*c,4)}, v179 offset:{pos*4096 + c*1024}")
    for pos in range(3):
        a(f"s_waitcnt lgkmcnt({8 - 4*pos})")
        f = 181 + pos; pr = vr(f - f % 2, 2); sel = f % 2
        for r in range(0, 16, 2):
            a(f"v_pk_fma_f32 {vr(ACC2+r,2)}, {vr(R+16*pos+r,2)}, {pr}, {vr(ACC2+r,2)} op_sel:[0,{sel},0] op_sel_hi:[1,{sel},1]")
    for c in range(4):
        a(f"v_cvt_pk_bf16_f32 v{32+2*c}, v{ACC2+4*c}, v{ACC2+4*c+1}"); a(f"v_cvt_pk_bf16_f32 v{33+2*c}, v{ACC2+4*c+2}, v{ACC2+4*c+3}")
    a("s_nop 1")
    for p in range(2):
        b = 32 + 4*p
        a(f"v_permlane16_swap_b32 v{b}, v{b+2}"); a(f"v_permlane16_swap_b32 v{b+1}, v{b+3}")
    for p in range(2):
        a(f"buffer_store_dwordx4 {vr(32+4*p,4)}, v0, s[16:19], 0 offen offset:{64*p} {['', 'sc1', 'nt', 'sc0 sc1'][OPT.get('outfl', 0)]}")
    stamp(a, 10)

def kernel():
    a = Asm()
    a(f".globl {KNAME}"); a(".p2align 8"); a(f".type {KNAME},@function"); a.label(KNAME)
    a("s_cmp_ge_u32 s2, 256"); a("s_cbranch_scc1 Lend")
    stamp(a, 0)
    a("s_load_dwordx4 s[4:7], s[0:1], 0")
    a("s_load_dwordx4 s[12:15], s[0:1], 32")
    a("s_load_dwordx4 s[44:47], s[0:1], 48")
    a("s_load_dwordx2 s[8:9], s[0:1], 16")
    a("s_load_dwordx4 s[48:51], s[0:1], 64")
    a("s_load_dwordx2 s[10:11], s[0:1], 80")
    a("v_lshrrev_b32 v4, 6, v0"); a("v_and_b32 v1, 63, v0"); a("v_lshrrev_b32 v2, 4, v1"); a("v_and_b32 v3, 15, v1")
    a(f"v_readfirstlane_b32 s{sW_}, v4")
    a(f"s_and_b32 s{T2}, s2, 4"); a(f"s_lshl_b32 s{sRB}, s{T2}, 1"); a(f"s_lshr_b32 s{T4}, s2, 5"); a(f"s_add_u32 s{sRB}, s{sRB}, s{T4}")
    a(f"s_and_b32 s{T3}, s2, 3"); a(f"s_lshl_b32 s{T3}, s{T3}, 1")
    a(f"s_bfe_u32 s{T5}, s2, 0x10003"); a(f"s_add_u32 s{sGRP}, s{T3}, s{T5}")
    a(f"s_bfe_u32 s{sTYPE}, s2, 0x10004")
    a(f"s_and_b32 s{T4}, s{T4}, 3"); a(f"s_add_u32 s{T4}, s{T4}, s{T2}"); a(f"s_add_u32 s{T4}, s{T4}, s{sGRP}"); a(f"s_and_b32 s{T6}, s{T4}, 7")
    a(f"s_lshr_b32 s{sRH}, s{sW_}, 1"); a(f"s_and_b32 s{sCH}, s{sW_}, 1")
    a(f"s_lshl_b32 s{sKX}, s{T6}, 7")
    a(f"s_lshl_b32 s{sXD}, s{sW_}, 12"); a(f"s_add_u32 s{sXE}, s{sW_}, 16"); a(f"s_lshl_b32 s{sXE}, s{sXE}, 10")
    a(f"s_mul_i32 s{sWD}, s{sW_}, 6144"); a(f"s_add_u32 s{sWD}, s{sWD}, {WOFF}")
    a(f"s_mov_b32 s{sCUR}, 0"); a(f"s_mov_b32 s{sNXT}, {STAGE}"); a(f"s_mov_b32 s{sPRV}, {2*STAGE}")
    a("v_lshrrev_b32 v4, 3, v1"); a("v_and_b32 v5, 7, v1"); a("v_xor_b32 v6, v5, v2")
    a("v_lshlrev_b32 v7, 10, v4"); a("v_lshl_add_u32 v8, v6, 4, v7"); a("v_xor_b32 v9, 64, v8")
    a(f"s_cmp_eq_u32 s{sTYPE}, 0"); a("s_cbranch_scc0 Lffn")
    phase1_role(a, "att")
    a.label("Lffn")
    phase1_role(a, "ffn")
    phase2(a)
    stamp_flush(a)
    a.label("Lend")
    a("s_endpgm")
    return a.text()

def main(out):
    t = kernel()
    src = "; Single launch: phase 1 (QKV projection + windowed attention | FFN1 + mish, gate), per-row-block counters in d_debug,\n"
    src += "; phase 2 (output projection of both branches, blended by the gate).\n"
    src += f"; @launch grid=(256,1,1) block=(256,1,1) lds={LDS_BYTES}\n"
    src += '.amdgcn_target "amdgcn-amd-amdhsa--gfx950"\n.text\n' + t + kd(KNAME, 512, 256)
    open(out, "w").write(src)

if __name__ == "__main__":
    if "--instr" in sys.argv: INSTR = True; sys.argv.remove("--instr")
    for x in list(sys.argv):
        if x.startswith("--"):
            sys.argv.remove(x); k, _, v = x[2:].partition("="); OPT[k] = int(v) if v else 1
    AWS_U = 131072 + OPT.get("skew", 0)
    main(sys.argv[1] if len(sys.argv) > 1 else "cdna_kernels/" + NAME + ".s")
```

```python
import sys
from asmlib import *

NAME = "gated_mix__sliding_local_dilated__dense_activation_mish__prompt"
KNAME = NAME + "_kernel"
LOG2E = 0x3fb8aa3b
STAGE = 43008
WOFF = 18432
AWS_U = 131072
G_OFF = 8 << 20
LDS_BYTES = 163840
GA, GB, GC, GC2, R2 = 86016, 0, 43008, 86016 + 16*4096, 28672
INSTR = False
OPT = {"p2b": 2, "r2pre": 0, "rmode": 1, "rot2": 3, "qa": 2, "qm": 7, "qb": 0}
STAMP_OFF = 16 << 20
NST = 12

sW_, sRB, sTYPE, sGRP = 40, 41, 42, 43
sRH, sCH, sBUF, sFREE, sXD, sXE, sWD, sKX, sKW, sKW2, sRS64, sIT, sU0 = range(52, 65)
T0, T1, T2, T3, T4, T5, T6 = range(65, 72)
XO, WO, XB, WB, XA, WA = 16, 21, 27, 29, 35, 37
WA1 = 208
GX, GW, GR, BIAS = 44, 52, 56, 58
vFLG, vCLR = 94, 95
FLAG_OFF = 16384
vGST, vBD, vBF, vAO, vGRD, vOUT = 86, 87, 88, 208, 92, 93
ACC = 96
BF32 = 70
SET = [0, 44]

def srd(a, s, ptr, size):
    a(f"s_mov_b32 s{s}, s{ptr}")
    a(f"s_and_b32 s{s+1}, s{ptr+1}, 0xffff")
    a(f"s_mov_b32 s{s+2}, {size}")
    a(f"s_mov_b32 s{s+3}, 0x00020000")

def istamp(a, k):
    if INSTR and OPT.get("iter"): a(f"{'s_memtime' if OPT.get('cyc') else 's_memrealtime'} s[{72+2*k}:{73+2*k}]")
def stamp(a, k):
    if OPT.get("iter") and k not in (0, NST-1): return
    if INSTR: a(f"{'s_memtime' if OPT.get('cyc') else 's_memrealtime'} s[{72+2*k}:{73+2*k}]")
def stamp_flush_dbg(a):
    a("s_waitcnt vmcnt(0) lgkmcnt(0)")
    stamp(a, NST-1)
    a("s_waitcnt lgkmcnt(0)")
    a(f"s_cmp_eq_u32 s{sW_}, 0"); a("s_cbranch_scc0 Ldbg_done")
    a("v_cmp_eq_u32 vcc, 0, v1"); a("s_and_saveexec_b64 s[28:29], vcc")
    slots = [1,2,3,5,6,7,9,10,11,13,14,15]
    order = [0, 0, 1, 3, 4, 5, 6, 7, 8, 9, 10, 11]
    for k, (sl, stp) in enumerate(zip(slots, order)):
        a(f"v_mov_b32 v2, s{72+2*stp}")
        if k == 0: a("v_not_b32 v2, v2")
        a(f"v_mov_b32 v3, {4*sl}")
        a("global_atomic_umax v3, v2, s[50:51]")
    a("s_mov_b64 exec, s[28:29]")
    a.label("Ldbg_done")
def stamp_flush(a):
    if not INSTR: return
    if OPT.get("dbg"): return stamp_flush_dbg(a)
    a("s_waitcnt vmcnt(0) lgkmcnt(0)")
    stamp(a, NST-1)
    a("s_waitcnt lgkmcnt(0)")
    a(f"s_add_u32 s24, s10, {STAMP_OFF}"); a("s_addc_u32 s25, s11, 0"); a("s_and_b32 s25, s25, 0xffff")
    a("s_mov_b32 s26, 65536"); a("s_mov_b32 s27, 0x00020000")
    a(f"s_lshl_b32 s{T0}, s2, 8"); a(f"s_lshl_b32 s{T1}, s{sW_}, 6"); a(f"s_add_u32 s{T0}, s{T0}, s{T1}")
    a(f"v_mov_b32 v0, s{T0}")
    a("v_cmp_eq_u32 vcc, 0, v1"); a("s_and_saveexec_b64 s[28:29], vcc")
    for k in range(NST):
        a(f"v_mov_b32 v2, s{72+2*k}"); a(f"buffer_store_dword v2, v0, s[24:27], 0 offen offset:{4*k}")
    a("s_mov_b64 exec, s[28:29]")

def bias_reg(ct, r):
    k = 4*ct + r
    return (BF32 + k) if k < 16 else (8 + k - 16)

def p1_reads(role, st, h):
    base = SET[st]
    nx = 5 if role == "att" else 4
    w = []
    for tt in range(6):
        off = h * 4096 + ((tt >> 1) * 8192 if role == "att" else 0)
        r = base + 20 + 4 * tt; ad = (WA if h == 0 else WA1) + (tt & 1 if role == "att" else tt)
        w.append(f"ds_read_b64_tr_b16 {ar(r,2)}, v{ad} offset:{off}")
        w.append(f"ds_read_b64_tr_b16 {ar(r+2,2)}, v{ad} offset:{off+512}")
    x = [f"ds_read_b128 {ar(base+4*t,4)}, v{XA+h} offset:{t*2048}" for t in range(nx)]
    if role == "att":
        return [w[4], w[5], x[0], x[1], x[2], w[6], w[7], x[3], x[4], w[0], w[1], w[2], w[3]] + w[8:]
    return [w[0], w[1], x[0], x[1], x[2], x[3]] + w[2:]

def p1_mfmas(role, st, first=False):
    base = SET[st]; X = lambda t: ar(base + 4*t, 4); W = lambda t: ar(base + 20 + 4*t, 4)
    out = []
    def m(c, A, B, cin=None):
        C = vr(c,4) if not first else cin
        out.append(f"v_mfma_f32_16x16x32_bf16 {vr(c,4)}, {A}, {B}, {C}")
    if role == "att":
        for a_ in range(2):
            for t in range(5): m(ACC + 4*(8 + 2*t + a_), W(2+a_), X(t), "0")
        for a_ in range(2):
            for t in range(1, 5): m(ACC + 4*(2*(t-1) + a_), W(a_), X(t), "0")
        for a_ in range(2):
            for t in range(5): m(ACC + 4*(18 + 2*t + a_), X(t), W(4+a_), "0")
    else:
        for ct in range(6):
            for rt in range(4): m(ACC + 4*(6*rt + ct), W(ct), X(rt), vr(bias_reg(ct,0), 4))
    return out

def dma_x(role, bufreg):
    g = []
    if role == "att":
        g.append(([f"s_add_u32 m0, s{bufreg}, s{sXE}"],
                  [f"s_cmp_lt_u32 s{sW_}, 2", "s_cbranch_scc0 1f", f"buffer_load_dwordx4 v{XO+4}, s[16:19], s{sKX} offen lds", "1:"]))
    for j in range(4):
        m = f"s_add_u32 m0, s{bufreg}, s{sXD}" if j == 0 else "s_add_u32 m0, m0, 1024"
        g.append(([m], [f"buffer_load_dwordx4 v{XO+j}, s[16:19], s{sKX} offen lds"]))
    return g
def dma_w(bufreg, js, sw):
    g = []
    for k, j in enumerate(js):
        if k == 0: m = [f"s_add_u32 m0, s{bufreg}, s{sWD}"] + ([f"s_add_u32 m0, m0, {1024*j}"] if j else [])
        else: m = ["s_add_u32 m0, m0, 1024"]
        g.append((m, [f"buffer_load_dwordx4 v{WO+j}, s[20:23], s{sw} offen lds"]))
    return g
def h1(role, buf): return dma_x(role, buf) + dma_w(buf, [0], sKW)
def h2(role, buf, sw=None): return dma_w(buf, [1,2,3,4,5], sKW2 if sw is None else sw)

SCC_READ = ("s_cselect", "s_cbranch_scc", "s_addc", "s_subb")
SCC_WRITE = ("s_cmp", "s_add_u32", "s_sub_u32", "s_addc", "s_subb", "s_and_b", "s_or_b", "s_xor_b", "s_lshl_b", "s_lshr_b", "s_bitcmp", "s_add_i32")
def chunks(lines):
    n = len(lines); live = [False]*(n+1)
    for i in range(n-1, -1, -1):
        x = lines[i]
        if x.startswith(SCC_READ): live[i] = True
        elif x.startswith(SCC_WRITE): live[i] = False
        else: live[i] = live[i+1]
    out = []
    for i, x in enumerate(lines):
        if out and live[i]: out[-1].append(x)
        else: out.append([x])
    return out
def capture(fn, *args):
    t = Asm(); fn(t, *args); return [x.strip() for x in t.L]

def emit_pairs(a, pairs):
    for m, l in pairs:
        for x in m: a(x)
        a("s_nop 0")
        for x in l: a(x)

def schedule(mf, reads, dmas, extra=(), dma_first=2, read_span=20, xspan=None, tail=()):
    n = len(mf); after = [[] for _ in range(n)]
    if dmas:
        step = (n - dma_first) / len(dmas)
        for k, (m, l) in enumerate(dmas):
            p = int(dma_first + k * step)
            after[max(p-1, 0)] += m
            after[p] += l
    for k, r in enumerate(reads):
        after[min(int(k * read_span / len(reads)), n-1)].insert(0, r)
    for k, x in enumerate(extra):
        lo, hi = xspan or (0, n)
        after[min(int(lo + k * (hi - lo) / len(extra)), n-1)] += (x if isinstance(x, list) else [x])
    for k, x in enumerate(tail):
        after[n - len(tail) - 1 + k] += (x if isinstance(x, list) else [x])
    out = []
    for i in range(n):
        out.append(mf[i]); out += after[i]
    return out

sPRV, sCUR, sNXT = sFREE, sBUF, sIT + 0
sNXT = 63
def addr_set(role, h, sreg):
    n = 2 if role == "att" else 6
    w = WA if h == 0 else WA1
    return [f"v_add_u32 v{XA+h}, s{sreg}, v{XB+h}"] + [f"v_add_u32 v{w+t}, s{sreg}, v{WB+t}" for t in range(n)]
def rot_instrs():
    return [[f"s_mov_b32 s{T0}, s{sPRV}", f"s_mov_b32 s{sPRV}, s{sCUR}"], [f"s_mov_b32 s{sCUR}, s{sNXT}", f"s_mov_b32 s{sNXT}, s{T0}"]]
def adv_k():
    return [f"s_add_u32 s{sKX}, s{sKX}, 128", f"s_and_b32 s{sKX}, s{sKX}, 1023",
            f"s_add_u32 s{sKW}, s{sKW}, s{sRS64}", f"s_cmp_eq_u32 s{sKW}, s22", f"s_cselect_b32 s{sKW}, 0, s{sKW}"]
def adv_x(): return [f"s_add_u32 s{sKX}, s{sKX}, 128", f"s_and_b32 s{sKX}, s{sKX}, 1023"]
def adv_w(): return [f"s_add_u32 s{sKW}, s{sKW}, s{sRS64}", f"s_cmp_eq_u32 s{sKW}, s22", f"s_cselect_b32 s{sKW}, 0, s{sKW}"]
def with_adv(pieces, adv):
    m, l = pieces[-1]
    return pieces[:-1] + [(m, l + adv)]
def all_x(role, buf): return with_adv(dma_x(role, buf), adv_x())
def all_w(buf): return with_adv(dma_w(buf, [0,1,2,3,4,5], sKW), adv_w())
def adv_instrs():
    return [[f"s_mov_b32 s{sKW2}, s{sKW}"] + adv_k()]

def gate_instrs():
    g = []
    for q in range(4):
        for row in range(2):
            g.append(f"v_dot2_f32_bf16 v{GR+row}, v{GX+4*row+q}, v{GW+q}, {'0' if q == 0 else 'v%d' % (GR+row)}")
    g += ["s_nop 0", "s_nop 0"]
    for sh in (8, 4, 2, 1):
        for row in range(2):
            g.append(f"v_add_f32_dpp v{GR+row}, v{GR+row}, v{GR+row} row_ror:{sh} row_mask:0xf bank_mask:0xf")
    for op in ("v_permlane16_swap_b32", "v_permlane32_swap_b32"):
        for row in range(2): g.append(f"v_mov_b32 v{4+row}, v{GR+row}")
        for row in range(2): g.append(f"{op} v{GR+row}, v{4+row}")
        for row in range(2): g.append(f"v_add_f32 v{GR+row}, v{GR+row}, v{4+row}")
    for row in range(2): g.append(f"v_mul_f32 v{GR+row}, 0xbfb8aa3b, v{GR+row}")
    for row in range(2): g.append(f"v_exp_f32 v{GR+row}, v{GR+row}")
    for row in range(2): g.append(f"v_add_f32 v{GR+row}, 1.0, v{GR+row}")
    for row in range(2): g.append(f"v_rcp_f32 v{GR+row}, v{GR+row}")
    return g

def body(a, role, d1, d2, wait, first=False, last=False, x1=(), x2=(), dx1=(), dx2=(), loop=None, tail1=(), noadv=False):
    up0 = addr_set(role, 0, sNXT) if not last else []
    for x in schedule(p1_mfmas(role, 0, first), p1_reads(role, 1, 1), list(d1) + list(dx1), list(x1) + up0,
                      dma_first=1 if first else 2, tail=tail1, xspan=(0, 18)): a(x)
    if last:
        a("s_waitcnt lgkmcnt(0)")
        a("s_barrier")
        for x in schedule(p1_mfmas(role, 1), [], list(d2) + list(dx2), x2): a(x)
        return
    a(f"s_waitcnt vmcnt({wait}) lgkmcnt(0)")
    a("s_barrier")
    tail = (adv_instrs() if d2 and not noadv else []) + rot_instrs()
    if loop: tail.append([f"s_add_u32 s{sLOOP}, s{sLOOP}, 1", f"s_cmp_lt_u32 s{sLOOP}, {loop[1]}"])
    for x in schedule(p1_mfmas(role, 1), p1_reads(role, 0, 0), list(d2) + list(dx2), list(x2) + addr_set(role, 1, sNXT),
                      tail=tail, xspan=(0, 20)): a(x)
    a("s_waitcnt lgkmcnt(0)")
    if loop: a(f"s_cbranch_scc1 {loop[0]}")

sLOOP = 66
sBA, sBB, sBC, sBR = 96, 97, 98, 101
def b_base(step):
    if step < 4: return sBA, step*4096
    if step < 6: return sBB, (step-4)*4096
    if step < 9: return sBC + step - 6, 0
    if step < 13: return sBA, (step-9)*4096
    if step < 15: return sBB, (step-13)*4096
    return sBC, 0
sUB, sBO, sUA = 44, 45, 8
def next_step(u, dst, shift, pos):
    if pos >= 14:
        l = [f"s_cmp_gt_u32 s{sN2}, {pos}", f"s_cselect_b32 s{dst}, s{u}, 31",
             f"s_lshl_b32 s{dst}, s{dst}, {shift}" if shift < 32 else f"s_mul_i32 s{dst}, s{dst}, {shift}"]
    else:
        l = [f"s_lshl_b32 s{dst}, s{u}, {shift}" if shift < 32 else f"s_mul_i32 s{dst}, s{u}, {shift}"]
    return l + [f"s_add_u32 s{u}, s{u}, 1", f"s_cmp_eq_u32 s{u}, s{sN2}", f"s_cselect_b32 s{u}, 0, s{u}"]
def b_dma(step):
    g = []; sb, im = b_base(step)
    for dd in range(4):
        m = next_step(sUB, sBO, 15, step) if dd == 0 else []
        g.append((m + [f"s_add_u32 m0, s{sb}, {im + dd*1024}", f"s_add_u32 s57, s{sBO}, {dd*8192}"],
                  [f"buffer_load_dwordx4 v{vBD}, s[24:27], s57 offen lds"]))
    return g
def b_addr(step, regs):
    sb, im = b_base(step)
    return [f"v_add_u32 v{regs[c]}, s{sb}, v{vBF+c}" for c in range(4)]
def b_reads(step, dst, regs):
    out = []; sb, im = b_base(step)
    for c in range(4):
        out.append(f"ds_read_b64_tr_b16 {ar(dst+4*c,2)}, v{regs[c]} offset:{im}")
        out.append(f"ds_read_b64_tr_b16 {ar(dst+4*c+2,2)}, v{regs[c]} offset:{im+2048}")
    return out

sRB2, sCT2, sU2, sN2 = 12, 13, 14, 15
def p2_scalar_setup(a):
    a(f"s_and_b32 s{T0}, s2, 7"); a(f"s_lshr_b32 s{T1}, s2, 3")
    if OPT.get("p2b", 1) == 1:
        a(f"s_lshl_b32 s{sRB2}, s{T0}, 2"); a(f"s_lshr_b32 s{T2}, s{T1}, 3"); a(f"s_add_u32 s{sRB2}, s{sRB2}, s{T2}")
        a(f"s_and_b32 s{sCT2}, s{T1}, 7")
    else:
        a(f"s_lshr_b32 s{sRB2}, s{T0}, 1"); a(f"s_lshl_b32 s{sRB2}, s{sRB2}, 3"); a(f"s_lshr_b32 s{T2}, s{T1}, 2"); a(f"s_add_u32 s{sRB2}, s{sRB2}, s{T2}")
        a(f"s_and_b32 s{sCT2}, s{T0}, 1"); a(f"s_lshl_b32 s{sCT2}, s{sCT2}, 2"); a(f"s_and_b32 s{T2}, s{T1}, 3")
        a(f"s_xor_b32 s{T2}, s{T2}, {OPT.get('cx', 3)}"); a(f"s_add_u32 s{sCT2}, s{sCT2}, s{T2}")
    a(f"s_mov_b32 s{sU2}, 0"); a(f"s_mov_b32 s{sN2}, 16")
    for w, u0, n in ((1,16,15), (2,31,14), (3,45,14)):
        a(f"s_cmp_eq_u32 s{sW_}, {w}"); a(f"s_cselect_b32 s{sU2}, {u0}, s{sU2}"); a(f"s_cselect_b32 s{sN2}, {n}, s{sN2}")
    a(f"s_lshl_b32 s{sBA}, s{sW_}, 14"); a(f"s_add_u32 s{sBA}, s{sBA}, {GA}")
    a(f"s_lshl_b32 s{sBB}, s{sW_}, 13")
    a(f"s_mul_i32 s{T0}, s{sW_}, 12288"); a(f"s_add_u32 s{T0}, s{T0}, {GC}")
    for k in range(3):
        a(f"s_add_u32 s{sBC+k}, s{T0}, {4096*k}")
    a(f"s_cmp_eq_u32 s{sW_}, 3")
    a(f"s_cselect_b32 s{sBC+1}, {GC2}, s{sBC+1}"); a(f"s_cselect_b32 s{sBC+2}, {GC2+4096}, s{sBC+2}")
    a(f"s_mul_i32 s{sBR}, s{sW_}, {R2}")
    a(f"s_sub_u32 s{T0}, s{sU2}, 16"); a(f"s_lshl_b32 s{T0}, s{T0}, 15"); a(f"s_add_u32 s{T2}, s44, s{T0}"); a(f"s_addc_u32 s{T3}, s45, 0")
    a(f"s_cmp_eq_u32 s{sW_}, 0"); a(f"s_cselect_b32 s24, s8, s{T2}"); a(f"s_cselect_b32 s25, s9, s{T3}"); a("s_and_b32 s25, s25, 0xffff")
    a(f"s_lshl_b32 s26, s{sN2}, 15"); a("s_mov_b32 s27, 0x00020000")
    a(f"s_mul_i32 s{T0}, s{sU2}, {AWS_U}"); a(f"s_add_u32 s28, s10, s{T0}"); a("s_addc_u32 s29, s11, 0"); a("s_and_b32 s29, s29, 0xffff")
    a(f"s_mul_i32 s30, s{sN2}, {AWS_U}"); a("s_mov_b32 s31, 0x00020000")
    if OPT.get("rot2", 1) == 3:
        a(f"s_and_b32 s{T0}, s{sRB2}, {OPT.get('qm', 3)}"); a(f"s_mul_i32 s{T0}, s{T0}, {OPT.get('qa', 4)}")
        a(f"s_and_b32 s{T1}, s{sCT2}, {OPT.get('qc', 3)}"); a(f"s_mul_i32 s{T1}, s{T1}, {OPT.get('qb', 2)}"); a(f"s_add_u32 s{T0}, s{T0}, s{T1}")
    elif OPT.get("rot2", 1) == 1:
        a(f"s_and_b32 s{T0}, s{sRB2}, 3"); a(f"s_lshl_b32 s{T0}, s{T0}, 2"); a(f"s_lshl_b32 s{T1}, s{sCT2}, 1"); a(f"s_add_u32 s{T0}, s{T0}, s{T1}")
    elif OPT.get("p2b", 1) == 2:
        a(f"s_and_b32 s{T0}, s{sRB2}, 7"); a(f"s_lshl_b32 s{T0}, s{T0}, 1")
        a(f"s_lshr_b32 s{T1}, s{sRB2}, 3"); a(f"s_and_b32 s{T1}, s{T1}, 1"); a(f"s_add_u32 s{T0}, s{T0}, s{T1}")
        a(f"s_and_b32 s{T1}, s{sCT2}, 3"); a(f"s_lshl_b32 s{T1}, s{T1}, 2"); a(f"s_add_u32 s{T0}, s{T0}, s{T1}")
    else:
        a(f"s_and_b32 s{T0}, s{sRB2}, 3"); a(f"s_lshl_b32 s{T0}, s{T0}, 2")
        a(f"s_lshr_b32 s{T1}, s{sRB2}, 2"); a(f"s_and_b32 s{T1}, s{T1}, 3"); a(f"s_add_u32 s{T0}, s{T0}, s{T1}")
        a(f"s_and_b32 s{T1}, s{sCT2}, 3"); a(f"s_lshl_b32 s{T1}, s{T1}, 1"); a(f"s_add_u32 s{T0}, s{T0}, s{T1}")
    a(f"s_sub_u32 s{T1}, s{T0}, s{sN2}"); a(f"s_cmp_ge_u32 s{T0}, s{sN2}"); a(f"s_cselect_b32 s{sUB}, s{T1}, s{T0}")
    a(f"s_mov_b32 s{sUA}, s{sUB}")

def mix(a, valu, dmas, every):
    d = list(dmas); cnt = 0
    for k, x in enumerate(valu):
        a(x)
        if x.endswith(":") or x.startswith("s_cbranch"): continue
        cnt += 1
        if d and cnt % every == every - 2:
            for y in d[0][0]: a(y)
        if d and cnt % every == 0:
            for y in d[0][1]: a(y)
            d.pop(0)
    return d

def att_epilogue():
    e = []
    Q = lambda t, h: ACC + 4*(2*(t-1) + h)
    Kc = lambda t, h: ACC + 4*(8 + 2*t + h)
    V = lambda t, h: ACC + 4*(18 + 2*t + h)
    KF, VF, QF = 208, 228, 16
    kf = lambda t, h: KF + 10*h + 2*t
    vf = lambda t, h: VF + 10*h + 2*t
    qf = lambda t, h: QF + 2*(2*(t-1) + h)
    cv = lambda d, s: [f"v_cvt_pk_bf16_f32 v{d}, v{s}, v{s+1}", f"v_cvt_pk_bf16_f32 v{d+1}, v{s+2}, v{s+3}"]
    combos = [(t,h) for t in range(1,5) for h in range(2)]
    MC, MP, MF, SEL0, SEL1, ONES = 70, 72, 74, 76, 77, 78
    for t in range(5):
        for h in range(2): e += cv(kf(t,h), Kc(t,h))
    for (t,h) in combos: e += cv(qf(t,h), Q(t,h))
    S = lambda ci, blk: ACC + 8*ci + 4*blk
    vcv = []
    for t in range(5):
        for h in range(2): vcv += cv(vf(t,h), V(t,h))
    sm = []
    for ci,(t,h) in enumerate(combos):
        sm.append(f"v_mfma_f32_16x16x16_bf16 {vr(S(ci,0),4)}, {vr(kf(t-1,h),2)}, {vr(qf(t,h),2)}, 0")
        sm.append(f"v_mfma_f32_16x16x16_bf16 {vr(S(ci,1),4)}, {vr(kf(t,h),2)}, {vr(qf(t,h),2)}, 0")
    e.append("s_nop 1")
    for k, m in enumerate(sm):
        e.append(m)
        e += vcv[k*20//16:(k+1)*20//16]
    e += ["s_nop 7"]
    A = lambda ci: 160 + 4*ci
    for ci in range(8):
        for blk in range(2):
            s = S(ci, blk)
            e.append(f"v_cndmask_b32 v{A(ci)+2*blk}, v{s}, v{s+1}, s[46:47]")
            e.append(f"v_cndmask_b32 v{A(ci)+2*blk+1}, v{s+2}, v{s+3}, s[46:47]")
    for ci,(t,h) in enumerate(combos):
        mp = MF if t == 1 else MP
        e.append(f"v_pk_fma_f32 {vr(A(ci),2)}, {vr(A(ci),2)}, s[0:1], {vr(mp,2)} op_sel_hi:[1,0,1]")
        e.append(f"v_pk_fma_f32 {vr(A(ci)+2,2)}, {vr(A(ci)+2,2)}, s[0:1], {vr(MC,2)} op_sel_hi:[1,0,1]")
    MX = 4
    for ci in range(8):
        e.append(f"v_max3_f32 v{MX+ci}, v{A(ci)}, v{A(ci)+1}, v{A(ci)+2}")
    for ci in range(8):
        e.append(f"v_max_f32 v{MX+ci}, v{MX+ci}, v{A(ci)+3}")
    for q in range(2):
        b = MX + 4*q
        e += ["s_nop 0"] if q == 0 else []
        e.append(f"v_permlane32_swap_b32 v{b}, v{b+1}"); e.append(f"v_permlane32_swap_b32 v{b+2}, v{b+3}")
    for q in range(2):
        b = MX + 4*q
        e.append(f"v_max_f32 v{b}, v{b}, v{b+1}"); e.append(f"v_max_f32 v{b+2}, v{b+2}, v{b+3}")
    e.append("s_nop 0")
    for q in range(2):
        b = MX + 4*q
        e.append(f"v_permlane16_swap_b32 v{b}, v{b+2}")
    e.append("s_nop 0")
    for q in range(2):
        b = MX + 4*q
        e.append(f"v_max_f32 v{b}, v{b}, v{b+2}")
    for q in range(2):
        b = MX + 4*q
        e.append(f"v_mov_b32 v{b+1}, v{b}")
    e.append("s_nop 0")
    for q in range(2):
        b = MX + 4*q
        e.append(f"v_permlane32_swap_b32 v{b}, v{b+1}")
    e.append("s_nop 0")
    for q in range(2):
        b = MX + 4*q
        e.append(f"v_mov_b32 v{b+2}, v{b}"); e.append(f"v_mov_b32 v{b+3}, v{b+1}")
    e.append("s_nop 0")
    for q in range(2):
        b = MX + 4*q
        e.append(f"v_permlane16_swap_b32 v{b}, v{b+2}")
        e.append(f"v_permlane16_swap_b32 v{b+1}, v{b+3}")
    e.append("s_nop 0")
    for ci in range(8):
        e.append(f"v_pk_add_f32 {vr(A(ci),2)}, {vr(A(ci),2)}, {vr(MX+ci - (MX+ci)%2,2)} op_sel:[0,{(MX+ci)%2}] op_sel_hi:[1,{(MX+ci)%2}] neg_lo:[0,1] neg_hi:[0,1]")
        e.append(f"v_pk_add_f32 {vr(A(ci)+2,2)}, {vr(A(ci)+2,2)}, {vr(MX+ci - (MX+ci)%2,2)} op_sel:[0,{(MX+ci)%2}] op_sel_hi:[1,{(MX+ci)%2}] neg_lo:[0,1] neg_hi:[0,1]")
    P = lambda ci: ACC + 4*ci
    for ci in range(8):
        for r in range(4): e.append(f"v_exp_f32 v{A(ci)+r}, v{A(ci)+r}")
        if ci > 0:
            c1 = ci - 1
            e += [f"v_cvt_pk_bf16_f32 v12, v{A(c1)}, v{A(c1)+1}", f"v_cvt_pk_bf16_f32 v13, v{A(c1)+2}, v{A(c1)+3}",
                  f"v_perm_b32 v{P(c1)}, v12, v12, v{SEL0}", f"v_perm_b32 v{P(c1)+1}, v12, v12, v{SEL1}",
                  f"v_perm_b32 v{P(c1)+2}, v13, v13, v{SEL0}", f"v_perm_b32 v{P(c1)+3}, v13, v13, v{SEL1}"]
    e.append("s_nop 0")
    e += [f"v_cvt_pk_bf16_f32 v12, v{A(7)}, v{A(7)+1}", f"v_cvt_pk_bf16_f32 v13, v{A(7)+2}, v{A(7)+3}",
          f"v_perm_b32 v{P(7)}, v12, v12, v{SEL0}", f"v_perm_b32 v{P(7)+1}, v12, v12, v{SEL1}",
          f"v_perm_b32 v{P(7)+2}, v13, v13, v{SEL0}", f"v_perm_b32 v{P(7)+3}, v13, v13, v{SEL1}"]
    e.append("s_nop 1")
    O = lambda ci: 128 + 4*ci
    L = lambda ci: 160 + 4*ci
    for ci,(t,h) in enumerate(combos):
        e.append(f"v_mfma_f32_16x16x32_bf16 {vr(O(ci),4)}, {vr(vf(t-1,h),4)}, {vr(P(ci),4)}, 0")
        e.append(f"v_mfma_f32_16x16x32_bf16 {vr(L(ci),4)}, {vr(ONES,4)}, {vr(P(ci),4)}, 0")
    e.append("s_nop 6")
    for ci in range(8): e.append(f"v_rcp_f32 v{MX+ci}, v{L(ci)}")
    e.append("s_nop 0")
    for ci in range(8):
        sel = (MX+ci) % 2; pr = vr(MX+ci - sel, 2)
        e.append(f"v_pk_mul_f32 {vr(O(ci),2)}, {vr(O(ci),2)}, {pr} op_sel:[0,{sel}] op_sel_hi:[1,{sel}]")
        e.append(f"v_pk_mul_f32 {vr(O(ci)+2,2)}, {vr(O(ci)+2,2)}, {pr} op_sel:[0,{sel}] op_sel_hi:[1,{sel}]")
    for t in range(1,5):
        d = 16 + 4*(t-1)
        for h in range(2): e += cv(d + 2*h, O(2*(t-1)+h))
        e.append(f"buffer_store_dwordx4 {vr(d,4)}, v250, s[32:35], s{T6} offen offset:{(t-1)*1024} sc1")
    return e

def att_consts(a):
    a("s_mov_b32 s46, 0xaaaaaaaa"); a("s_mov_b32 s47, 0xaaaaaaaa")
    a("s_mov_b32 s0, 0x3eb8aa3b"); a("s_mov_b32 s1, 0x3eb8aa3b")
    a("v_and_b32 v8, 14, v3"); a("v_lshlrev_b32 v9, 2, v2"); a("v_sub_u32 v8, v8, v9")
    a("v_mov_b32 v9, 0xf149f2ca")
    for dst, blk in ((70, 0), (72, 16)):
        for k in range(2):
            a(f"v_add_u32 v10, {blk - 2*k}, v8")
            a("v_cmp_gt_u32 s[6:7], 15, v10")
            a("s_nop 1")
            a(f"v_cndmask_b32 v{dst+k}, v9, 0, s[6:7]")
    a(f"s_or_b32 s{T0}, s{sRB}, s{sRH}"); a(f"s_cmp_eq_u32 s{T0}, 0"); a("s_cselect_b64 s[6:7], -1, 0")
    for k in range(2): a(f"v_cndmask_b32 v{74+k}, v{72+k}, v9, s[6:7]")
    a("v_mov_b32 v76, 0x0c0c0100"); a("v_mov_b32 v10, 0x01000c0c"); a("v_cndmask_b32 v76, v76, v10, s[46:47]")
    a("v_mov_b32 v77, 0x0c0c0302"); a("v_mov_b32 v10, 0x03020c0c"); a("v_cndmask_b32 v77, v77, v10, s[46:47]")
    for r in range(4): a(f"v_mov_b32 v{78+r}, 0x3f803f80")
    a(f"s_lshl_b32 s{T6}, s{sGRP}, 1"); a(f"s_add_u32 s{T6}, s{T6}, s{sCH}"); a(f"s_mul_i32 s{T6}, s{T6}, {AWS_U}")
    a(f"s_lshl_b32 s{T0}, s{sRB}, 3"); a(f"s_lshl_b32 s{T1}, s{sRH}, 2"); a(f"s_add_u32 s{T0}, s{T0}, s{T1}"); a(f"s_lshl_b32 s{T0}, s{T0}, 10")
    a("v_lshlrev_b32 v250, 4, v1"); a(f"v_add_u32 v250, s{T0}, v250")

def ffn_pairs(m, rr, D):
    e = []
    prs = [ACC + 4*(6*rr + 2*m + hh) + 2*q for hh in range(2) for q in range(2)]
    T = [16 + 2*k for k in range(4)]
    for k in range(4): e.append(f"v_pk_mul_f32 {vr(T[k],2)}, {vr(prs[k],2)}, s[0:1] op_sel_hi:[1,0]")
    for k in range(4):
        e.append(f"v_exp_f32 v{T[k]}, v{T[k]}"); e.append(f"v_exp_f32 v{T[k]+1}, v{T[k]+1}")
    U = [24 + 2*k for k in range(4)]
    for k in range(4): e.append(f"v_pk_fma_f32 {vr(U[k],2)}, {vr(T[k],2)}, 0.5, 1.0 op_sel_hi:[1,0,0]")
    for k in range(4): e.append(f"v_pk_fma_f32 {vr(U[k],2)}, {vr(U[k],2)}, {vr(T[k],2)}, 1.0 op_sel_hi:[1,1,0]")
    for k in range(4):
        e.append(f"v_rcp_f32 v{U[k]}, v{U[k]}"); e.append(f"v_rcp_f32 v{U[k]+1}, v{U[k]+1}")
    for k in range(4): e.append(f"v_pk_fma_f32 {vr(prs[k],2)}, {vr(prs[k],2)}, {vr(U[k],2)}, {vr(prs[k],2)} neg_lo:[1,0,0] neg_hi:[1,0,0]")
    for k in range(4): e.append(f"v_cvt_pk_bf16_f32 v{D+k}, v{prs[k]}, v{prs[k]+1}")
    return e

def ffn_epilogue(nunits):
    e = []
    for m in range(nunits):
        for rr in range(4):
            D = 32 + 4*(rr & 1)
            e += ffn_pairs(m, rr, D)
            e.append(f"buffer_store_dwordx4 {vr(D,4)}, v250, s[32:35], s{T6} offen offset:{rr*1024} sc1")
        e.append(f"s_add_u32 s{T6}, s{T6}, {AWS_U}")
    return e

def ffn_consts(a):
    a(f"s_mov_b32 s0, {LOG2E}"); a(f"s_mov_b32 s1, {LOG2E}")
    a(f"s_mul_i32 s{T6}, s{sCH}, 3"); a(f"s_add_u32 s{T6}, s{T6}, s{sU0}"); a(f"s_add_u32 s{T6}, s{T6}, 16"); a(f"s_mul_i32 s{T6}, s{T6}, {AWS_U}")
    a(f"s_lshl_b32 s{T0}, s{sRB}, 3"); a(f"s_lshl_b32 s{T1}, s{sRH}, 2"); a(f"s_add_u32 s{T0}, s{T0}, s{T1}"); a(f"s_lshl_b32 s{T0}, s{T0}, 10")
    a("v_lshlrev_b32 v250, 4, v1"); a(f"v_add_u32 v250, s{T0}, v250")

def gate_store(a):
    a("v_cmp_eq_u32 s[68:69], 0, v1")
    a("s_nop 1")
    a("s_and_saveexec_b64 s[66:67], s[68:69]")
    a(f"buffer_store_dwordx2 {vr(GR,2)}, v{vGST}, s[36:39], 0 offen sc1")
    a("s_mov_b64 exec, s[66:67]")

NB1 = 9
def weave(a, main, inserts):
    ins = {}
    for p, l in inserts: ins.setdefault(min(p, len(main)-1), []).extend(l)
    for i, x in enumerate(main):
        a(x)
        for y in ins.get(i, []): a(y)

def dma_inserts(dmas, lo, hi):
    out = []
    for k, (m, l) in enumerate(dmas):
        p = int(lo + 2 + k * (hi - lo - 2) / len(dmas))
        out.append((p - 2, m)); out.append((p, l))
    return out

def b_copy(steps):
    tr = [60, 61, 62, 63]; out = []; last = None
    for st in steps:
        sb = b_base(st)[0]
        if sb != last: out += b_addr(st, tr)
        last = sb
        out += b_reads(st, 16*st, tr)
    return out

def is_vmem(x): return x.startswith("buffer_") or x.startswith("global_")
def resolve_waits(flat, init):
    out = []
    for i, x in enumerate(flat):
        if x.startswith("@wait"):
            tag = x.split()[1]
            pos = [j for j in range(i) if flat[j].endswith("; " + tag)]
            n = sum(1 for y in flat[pos[-1]+1:i] if is_vmem(y)) if pos else init[tag] + sum(1 for y in flat[:i] if is_vmem(y))
            out.append(f"s_waitcnt vmcnt({n})")
        else: out.append(x)
    return out
def weave_list(main, inserts):
    ins = {}
    for p, l in inserts: ins.setdefault(min(p, len(main)-1), []).extend(l)
    out = []
    for i, x in enumerate(main):
        out.append(x); out += ins.get(i, [])
    return out
def tag_last(dmas, tag):
    m, l = dmas[-1]
    return dmas[:-1] + [(m, [l[0] + " ; " + tag] + l[1:])]

def staged_epilogue(a, e, rest, P):
    n = len(e)
    r2 = []
    for st in range(NB1, 16): r2 += b_dma(st)
    ins = dma_inserts(tag_last(rest, "R1"), 0, P["r1"])
    ins.append((P["w1"], ["@wait S5"]))
    cp = b_copy(range(0, 6))
    for k, x in enumerate(cp): ins.append((P["w1"] + 1 + int(k * (P["c1"] - P["w1"] - 1) / len(cp)), [x]))
    ins.append((P["c1"] + 2, ["s_waitcnt lgkmcnt(0)"]))
    k2 = P["n2"]; assert k2 <= 24
    ins += dma_inserts(r2[:k2], P["c1"] + 3, P["d2"])
    ins.append((P["w2"], ["@wait R1"]))
    cp = b_copy(range(6, 9))
    for k, x in enumerate(cp): ins.append((P["w2"] + 1 + int(k * (P["c2"] - P["w2"] - 1) / len(cp)), [x]))
    assert P["c2"] < n
    flat = resolve_waits(weave_list(e, ins), {"S5": OPT.get("b7", 8) + 1})
    for x in flat: a(x)
    return r2[k2:]

def count_vmem(lines): return sum(1 for x in lines if x.startswith("buffer_") or x.startswith("global_"))

def epilogue_with_staging(a, R, e, rest, frac):
    n = len(e)
    p_r1, p_cp0, p_cp1, p_bar = frac[0], int(n*frac[1]), int(n*frac[2]), int(n*frac[3])
    assert count_vmem(e[:p_r1+1]) == 0
    ins = dma_inserts(rest, 0, p_r1)
    later = count_vmem(e[:p_cp0+1])
    ins.append((p_cp0, [f"s_waitcnt vmcnt({later})"]))
    cp = round1_copy()
    for k, x in enumerate(cp): ins.append((p_cp0 + int(k * (p_cp1 - p_cp0) / len(cp)), [x]))
    ins.append((p_bar, ["s_waitcnt lgkmcnt(0)", "s_barrier"]))
    r2 = []
    for st in range(NB1, 16): r2 += b_dma(st)
    k2 = OPT.get(R + "r2", 10)
    ins += dma_inserts(r2[:k2], p_bar + 1, n - 1)
    weave(a, e, ins)
    return r2[k2:]

def w_offsets(a, R):
    RS, SEG = (3072, 1024) if R == "att" else (2752, 128)
    a(f"v_mul_u32_u24 v7, {RS}, v4")
    a("v_and_b32 v8, 1, v2"); a("v_lshlrev_b32 v8, 1, v8"); a("v_xor_b32 v8, v8, v5"); a("v_xor_b32 v9, 4, v8")
    a("v_lshl_add_u32 v10, v8, 4, v7"); a("v_lshl_add_u32 v11, v9, 4, v7")
    a(f"s_mul_i32 s{T0}, s{sW_}, 6"); a(f"s_lshr_b32 s{T1}, s{T0}, 3"); a(f"s_and_b32 s{T0}, s{T0}, 7")
    a(f"s_mul_i32 s{T1}, s{T1}, {SEG}"); a(f"s_mul_i32 s{T0}, s{T0}, {8*RS}"); a(f"s_add_u32 s{T0}, s{T0}, s{T1}")
    a(f"s_lshl_b32 s{T1}, s{sGRP if R == 'att' else sU0}, {7 if R == 'att' else 6}"); a(f"s_add_u32 s{T0}, s{T0}, s{T1}")
    a(f"s_mov_b32 s{T1}, {8*RS}"); a(f"s_mov_b32 s{T4}, {SEG - 56*RS}")
    a(f"s_cmp_eq_u32 s{sW_}, 1"); a(f"s_cselect_b32 s{T2}, s{T4}, s{T1}")
    a(f"s_cmp_eq_u32 s{sW_}, 2"); a(f"s_cselect_b32 s{T3}, s{T4}, s{T1}")
    for j in range(6):
        a(f"v_add_u32 v{WO+j}, s{T0}, v{10 + (j&1)}")
        if j < 5: a(f"s_add_u32 s{T0}, s{T0}, s{ {1: T2, 3: T3}.get(j, T1) }")
    if R == "ffn":
        a(f"s_cmp_ge_u32 s{sGRP}, 3"); a(f"s_cselect_b32 s{T0}, s{sRH}, 0"); a(f"s_cmp_eq_u32 s{T0}, 1"); a("s_cbranch_scc0 Lffn_woffdone")
        a("v_lshrrev_b32 v12, 2, v8"); a("v_lshlrev_b32 v12, 30, v12"); a("v_xor_b32 v13, 0x40000000, v12")
        for j in (4, 5): a(f"v_add_u32 v{WO+j}, v{WO+j}, v{12 + (j&1)}")
        a(f"s_cmp_eq_u32 s{sW_}, 3"); a("s_cbranch_scc0 Lffn_woffdone")
        for j in range(4): a(f"v_add_u32 v{WO+j}, v{WO+j}, v{12 + (j&1)}")
        a.label("Lffn_woffdone")
    p = 6 if R == "att" else 12
    a(f"s_mov_b32 s20, s{p}"); a(f"s_and_b32 s21, s{p+1}, 0xffff"); a(f"s_mov_b32 s22, {512*RS}"); a("s_mov_b32 s23, 0x00020000")
    a(f"s_mov_b32 s{sRS64}, {64*RS}"); a(f"s_mul_i32 s{sKW}, s{T6}, {64*RS}")

def misc_setup(a, R):
    j16 = (8 if R == "ffn" else 0)
    a(f"s_add_u32 s{T2}, s{sGRP}, {j16}"); a(f"s_lshl_b32 s{T2}, s{T2}, 3")
    a(f"s_lshl_b32 s{T1}, s{sRB}, 7"); a(f"s_add_u32 s{T2}, s{T2}, s{T1}")
    a(f"s_lshl_b32 s{T1}, s{sW_}, 1"); a(f"s_add_u32 s{T0}, s{T2}, s{T1}")
    a(f"s_lshl_b32 s{T1}, s{T0}, 10"); a(f"s_lshl_b32 s{T0}, s{T0}, 2")
    a("v_lshlrev_b32 v5, 4, v1"); a(f"v_add_u32 v4, s{T1}, v5"); a(f"v_mov_b32 v{vGST}, s{T0}")
    a(f"s_add_u32 s{T2}, s{T2}, {FLAG_OFF}"); a(f"s_lshl_b32 s{T1}, s{sRB}, 4")
    a("v_cmp_eq_u32 s[28:29], 0, v0"); a("v_mov_b32 v7, 0x40000000")
    a(f"v_mov_b32 v8, s{T2}"); a(f"v_mov_b32 v{vCLR}, s{T1}")
    a(f"v_cndmask_b32 v{vFLG}, v7, v8, s[28:29]")
    a(f"s_add_u32 s36, s10, {G_OFF}"); a("s_addc_u32 s37, s11, 0"); a("s_and_b32 s37, s37, 0xffff")
    a("s_mov_b32 s38, 32768"); a("s_mov_b32 s39, 0x00020000")
    a("v_mov_b32 v7, 0")
    a(f"buffer_store_dword v7, v{vFLG}, s[36:39], 0 offen sc1")
    a(f"s_cmp_eq_u32 s{sW_}, 0"); a("s_cselect_b64 s[4:5], 1, 0")
    srd(a, 28, 46, 1024)
    if R == "ffn":
        srd(a, 24, 14, 2752)
        a(f"s_lshl_b32 s{T0}, s{sU0}, 6"); a(f"s_mul_i32 s{T1}, s{sCH}, 192"); a(f"s_add_u32 s{T0}, s{T0}, s{T1}")
        a("v_lshlrev_b32 v6, 3, v2"); a(f"v_add_u32 v6, s{T0}, v6")

def phase1_role(a, R):
    if R == "ffn":
        a(f"s_mul_i32 s{sU0}, s{sGRP}, 6"); a(f"s_mul_i32 s{T0}, s{sGRP}, 5"); a(f"s_add_u32 s{T0}, s{T0}, 3")
        a(f"s_cmp_le_u32 s{sGRP}, 3"); a(f"s_cselect_b32 s{sU0}, s{sU0}, s{T0}")
    a(f"s_lshl_b32 s{T5}, s{sRB}, 17")
    if R == "att": a(f"s_sub_u32 s{T5}, s{T5}, 16384")
    a(f"s_lshl_b32 s{T0}, s{sW_}, 15"); a(f"s_add_u32 s{T0}, s{T0}, s{T5}")
    if R == "att":
        a(f"s_cmp_lt_i32 s{T0}, 0"); a(f"s_cselect_b32 s{T1}, 16384, 0"); a(f"s_add_u32 s{T1}, s{T1}, s{T0}")
    for j in range(4):
        src = T1 if (j < 2 and R == "att") else T0
        if j: a(f"s_add_u32 s{T2}, s{src}, {8192*j}")
        a(f"v_add_u32 v{XO+j}, s{T2 if j else src}, v{8 + (j&1)}")
    if R == "att":
        a(f"s_lshl_b32 s{T0}, s{sW_}, 13"); a(f"s_add_u32 s{T0}, s{T0}, s{T5}"); a(f"s_add_u32 s{T0}, s{T0}, {128*1024}")
        a(f"s_lshl_b32 s{T1}, s{sCH}, 6"); a(f"v_xor_b32 v10, s{T1}, v8"); a(f"v_add_u32 v{XO+4}, s{T0}, v10")
    a("s_waitcnt lgkmcnt(0)")
    stamp(a, 1)
    srd(a, 16, 4, 2048*1024)
    emit_pairs(a, all_x(R, sCUR))
    w_offsets(a, R)
    emit_pairs(a, all_w(sCUR))
    misc_setup(a, R)
    a(f"buffer_load_dwordx4 {vr(GX,4)}, v4, s[16:19], 0 offen"); a(f"buffer_load_dwordx4 {vr(GX+4,4)}, v4, s[16:19], 0 offen offset:1024")
    a(f"buffer_load_dwordx4 {vr(GW,4)}, v5, s[28:31], 0 offen")
    if R == "ffn":
        for tt in range(6): a(f"buffer_load_dwordx2 {vr(BIAS+2*tt,2)}, v6, s[24:27], 0 offen offset:{tt*32}")
    late = chunks(capture(late_setup, R))
    pieces = all_x(R, sNXT)
    per = -(-len(late) // (len(pieces) + 1)); k = 0
    for m, l in pieces:
        for ch in late[k:k+per]:
            for x in ch: a(x)
        k += per
        for x in m: a(x)
        a("s_nop 0")
        for x in l: a(x)
    for ch in late[k:]:
        for x in ch: a(x)
    stamp(a, 2)
    for x in addr_set(R, 0, sCUR) + addr_set(R, 1, sCUR): a(x)
    (att_consts if R == "att" else ffn_consts)(a)
    a("s_waitcnt vmcnt(4)")
    a("s_barrier")
    stamp(a, 3)
    for x in p1_reads(R, 0, 0): a(x)
    if R == "ffn":
        for tt in range(6):
            for q in range(2):
                a(f"v_lshlrev_b32 v{bias_reg(tt,2*q)}, 16, v{BIAS+2*tt+q}")
                a(f"v_and_b32 v{bias_reg(tt,2*q+1)}, 0xffff0000, v{BIAS+2*tt+q}")
    a("s_waitcnt lgkmcnt(0)")
    istamp(a, 1)
    g = gate_instrs()
    body(a, R, all_w(sNXT) + all_x(R, sPRV), all_w(sPRV) + all_x(R, sCUR), 4, first=True, noadv=True, x1=g[:22], x2=g[22:])
    istamp(a, 2)
    body(a, R, all_w(sPRV), h1(R, sCUR), 10, x2=[["v_mov_b32 v7, 1", "s_and_saveexec_b64 s[6:7], s[4:5]", "s_cbranch_execz 2f", f"global_atomic_add v{vCLR}, v7, s[50:51] sc1", "2:", "s_mov_b64 exec, s[6:7]"]])
    if OPT.get("iter"):
        for it in range(2, 5):
            istamp(a, 1 + it)
            body(a, R, h2(R, sPRV), h1(R, sCUR), 10)
    else:
        a(f"s_mov_b32 s{sLOOP}, 2")
        a.label(f"L{R}_loop")
        body(a, R, h2(R, sPRV), h1(R, sCUR), 10, loop=(f"L{R}_loop", 5))
    istamp(a, 6)
    bd = []
    for st in range(NB1): bd += b_dma(st)
    n = OPT.get("bper", 6)
    assert 4*n <= 24 and 3*n <= 24 and 2*n <= 16
    body(a, R, h2(R, sPRV), [], 10, dx2=bd[:n])
    istamp(a, 7)
    body(a, R, [], [], 2*n, dx1=bd[n:2*n], dx2=bd[2*n:3*n])
    fl = []
    istamp(a, 8)
    n7 = OPT.get("b7", 8)
    body(a, R, [], [], 0, last=True, x1=fl, dx1=bd[3*n:4*n], dx2=bd[4*n:4*n+n7])
    rest = bd[4*n+n7:]
    istamp(a, 9)
    stamp(a, 4)
    a("global_load_dword v64, v43, s[50:51] sc1")
    a.nop(8)
    if R == "att":
        weave(a, att_epilogue(), dma_inserts(rest, 0, 40))
    else:
        e = ffn_epilogue(3); k = 2*len(e)//3
        weave(a, e[:k], dma_inserts(rest, 0, 30))
        a(f"s_cmp_ge_u32 s{sGRP}, 3"); a(f"s_cselect_b32 s{T0}, s{sCH}, 0"); a(f"s_cmp_eq_u32 s{T0}, 1"); a("s_cbranch_scc1 Lffn_done")
        for x in e[k:]: a(x)
        a.label("Lffn_done")
    gate_store(a)
    p2_pre(a)
    istamp(a, 10)
    stamp(a, 5)
    a(f"s_waitcnt vmcnt({5 if R == 'att' else 9})")
    for x in b_copy(range(0, NB1)): a(x)
    a("s_waitcnt lgkmcnt(0)")
    r2 = []
    for st in range(NB1, 16): r2 += b_dma(st)
    npre = OPT.get("r2pre", 4)
    emit_pairs(a, r2[:npre])
    a(f"s_waitcnt vmcnt({npre})")
    a("s_barrier")
    a("v_mov_b32 v5, 1")
    a(f"buffer_store_dword v5, v{vFLG}, s[36:39], 0 offen sc1")
    stamp(a, 6)
    if R == "att": a("s_branch Lphase2")

JR = [2, 3, 14, 15]
def p2_pre(a):
    a(f"v_mov_b32 v0, v{vOUT}")
    a("v_lshlrev_b32 v4, 4, v1"); a(f"s_lshl_b32 s{T1}, s{sRB2}, 12")
    for tau in range(4):
        a(f"s_add_u32 s{T0}, s{sW_}, {tau}"); a(f"s_and_b32 s{T0}, s{T0}, 3"); a(f"s_lshl_b32 s{T0}, s{T0}, 10"); a(f"s_add_u32 s{T0}, s{T0}, s{T1}")
        a(f"v_add_u32 v{8+tau}, s{T0}, v4")
    srd(a, 16, 48, 2048*1024)

def late_setup(a, R):
    a("v_lshrrev_b32 v7, 1, v3")
    a(f"s_lshl_b32 s{T0}, s{sRH}, 13")
    for h in range(2):
        a(f"v_or_b32 v8, {4*h}, v2"); a("v_xor_b32 v8, v8, v7"); a("v_lshlrev_b32 v8, 4, v8")
        a("v_lshl_add_u32 v8, v3, 7, v8"); a(f"v_add_u32 v{XB+h}, s{T0}, v8")
    a("v_bfe_u32 v7, v1, 2, 2"); a("v_and_b32 v8, 3, v1")
    a("v_lshl_add_u32 v9, v2, 3, v7"); a("v_lshlrev_b32 v9, 7, v9")
    a("v_and_b32 v10, 1, v8"); a("v_lshl_add_u32 v9, v10, 3, v9")
    a("v_and_b32 v10, 2, v7"); a("v_and_b32 v11, 1, v2"); a("v_lshl_or_b32 v10, v11, 2, v10")
    a("v_lshrrev_b32 v11, 1, v8"); a("v_xor_b32 v10, v10, v11")
    if R == "att":
        for t in range(2):
            a(f"s_lshl_b32 s{T0}, s{sCH}, 2"); a(f"s_add_u32 s{T0}, s{T0}, {2*t}")
            a(f"v_xor_b32 v11, s{T0}, v10"); a("v_lshl_add_u32 v11, v11, 4, v9"); a(f"v_add_u32 v{WB+t}, {WOFF}, v11")
    else:
        for t in range(6):
            a(f"s_mul_i32 s{T0}, s{sCH}, 6"); a(f"s_add_u32 s{T0}, s{T0}, {t}")
            a(f"s_lshr_b32 s{T1}, s{T0}, 2"); a(f"s_and_b32 s{T0}, s{T0}, 3"); a(f"s_lshl_b32 s{T0}, s{T0}, 1")
            a(f"s_lshl_b32 s{T1}, s{T1}, 13"); a(f"s_add_u32 s{T1}, s{T1}, {WOFF}")
            a(f"v_xor_b32 v11, s{T0}, v10"); a("v_lshl_add_u32 v11, v11, 4, v9"); a(f"v_add_u32 v{WB+t}, s{T1}, v11")
    srd(a, 32, 10, 59*AWS_U)
    p2_scalar_setup(a)
    a("v_lshrrev_b32 v7, 3, v1"); a("v_and_b32 v8, 7, v1"); a("v_lshlrev_b32 v9, 1, v2"); a("v_xor_b32 v8, v8, v9")
    a("v_lshlrev_b32 v8, 4, v8"); a("v_lshl_add_u32 v7, v7, 10, v8"); a(f"s_lshl_b32 s{T0}, s{sCT2}, 7"); a(f"v_add_u32 v{vBD}, s{T0}, v7")
    a("v_bfe_u32 v7, v1, 2, 2"); a("v_and_b32 v8, 3, v1")
    a("v_lshl_add_u32 v9, v2, 2, v7"); a("v_bfe_u32 v10, v9, 1, 2"); a("v_lshlrev_b32 v10, 1, v10")
    a("v_lshlrev_b32 v9, 7, v9"); a("v_and_b32 v11, 1, v8"); a("v_lshl_add_u32 v9, v11, 3, v9")
    a("v_lshrrev_b32 v11, 1, v8"); a("v_xor_b32 v10, v10, v11")
    for c in range(4):
        a(f"v_xor_b32 v11, {2*c}, v10"); a(f"v_lshl_add_u32 v{vBF+c}, v11, 4, v9")
    a(f"s_lshr_b32 s{T0}, s{sRB2}, 1"); a(f"s_lshl_b32 s{T0}, s{T0}, 4"); a(f"v_mov_b32 v43, s{T0}")
    a(f"s_lshl_b32 s{T0}, s{sRB2}, 2"); a(f"s_add_u32 s{T0}, s{T0}, s{sW_}"); a(f"s_lshl_b32 s{T0}, s{T0}, 6")
    a("v_lshlrev_b32 v7, 2, v3"); a(f"v_add_u32 v{vGRD}, s{T0}, v7")
    a(f"s_lshl_b32 s{T0}, s{T0}, 8"); a(f"s_lshl_b32 s{T1}, s{sCT2}, 7"); a(f"s_add_u32 s{T0}, s{T0}, s{T1}")
    a("v_and_b32 v7, 1, v2"); a("v_lshlrev_b32 v7, 5, v7"); a("v_lshrrev_b32 v8, 1, v2"); a("v_lshl_add_u32 v7, v8, 4, v7")
    a("v_lshl_add_u32 v7, v3, 10, v7"); a(f"v_add_u32 v{vOUT}, s{T0}, v7")

RED = 114688
def phase2(a):
    ACC2, AR, NR, DEP = 16, 80, 6, OPT.get('dep', 4)
    JIT = [144, 160]
    a.label("Lphase2")
    assert OPT.get("r2pre", 4) <= 20
    r2 = []
    for st in range(NB1, 14): r2 += b_dma(st)
    emit_pairs(a, r2[OPT.get("r2pre", 4):])
    for st in (14, 15):
        a(f"s_cmp_gt_u32 s{sN2}, {st}"); a("s_cbranch_scc0 Lp2_nomore")
        emit_pairs(a, b_dma(st))
    a.label("Lp2_nomore")
    a(f"s_lshr_b32 s{T2}, s{sRB2}, 1"); a(f"s_lshl_b32 s{T2}, s{T2}, 7"); a(f"s_add_u32 s{T2}, s{T2}, {FLAG_OFF}")
    a("v_and_b32 v5, 15, v1"); a(f"v_lshl_add_u32 v5, v5, 3, s{T2}")
    a("v_readfirstlane_b32 s68, v64")
    a(f"s_cmp_eq_u32 s{sW_}, 0"); a("s_cbranch_scc0 Lp2_other")
    a(f"s_mov_b32 s{T1}, 0")
    a.label("Lp2_clr")
    a("s_cmp_ge_u32 s68, 16"); a("s_cbranch_scc1 Lp2_cleared")
    a("s_sleep 8")
    a("global_load_dword v64, v43, s[50:51] sc1")
    a(f"s_add_u32 s{T1}, s{T1}, 1")
    a("s_waitcnt vmcnt(0)")
    a("v_readfirstlane_b32 s68, v64")
    a(f"s_cmp_gt_u32 s{T1}, 0x100000"); a("s_cbranch_scc0 Lp2_clr")
    a.label("Lp2_cleared")
    a("buffer_load_dword v6, v5, s[36:39], 0 offen sc1")
    a("s_waitcnt vmcnt(1)")
    for x in b_copy(range(NB1, 16)): a(x)
    a("s_waitcnt vmcnt(0)")
    a("s_branch Lp2_check")
    a.label("Lp2_poll")
    a(f"s_sleep {OPT.get('sleep', 1)}")
    a("buffer_load_dword v6, v5, s[36:39], 0 offen sc1")
    a(f"s_add_u32 s{T1}, s{T1}, 1")
    a("s_waitcnt vmcnt(0)")
    a(f"s_cmp_gt_u32 s{T1}, 0x200000"); a("s_cbranch_scc1 Lp2_go")
    a.label("Lp2_check")
    a("v_cmp_ne_u32 vcc, 1, v6")
    a("s_nop 4")
    a("s_cbranch_vccnz Lp2_poll")
    a("s_branch Lp2_go")
    a.label("Lp2_other")
    a("s_waitcnt vmcnt(0)")
    for x in b_copy(range(NB1, 16)): a(x)
    a.label("Lp2_go")
    a("s_waitcnt lgkmcnt(0)")
    a("s_barrier")
    stamp(a, 7)
    def loadA(step):
        return [f"buffer_load_dwordx4 {vr(AR+16*(step%NR)+4*tau,4)}, v{8+tau}, s[28:31], s{T0 + (step & 1)} offen sc1" for tau in (1, 2, 3, 0)]
    a(f"buffer_load_dword v12, v{vGRD}, s[36:39], 0 offen sc1")
    for st in range(DEP):
        for x in next_step(sUA, T0 + (st & 1), AWS_U, st): a(x)
        for x in loadA(st): a(x)
    NS = 16
    pre = []
    pre.append(["v_lshlrev_b32 v4, 4, v1", f"v_add_u32 v4, {RED}, v4"])
    for tau in range(1, 4):
        pre.append([f"s_add_u32 s{T2}, s{sW_}, {tau}", f"s_and_b32 s{T2}, s{T2}, 3", f"s_mul_i32 s{T2}, s{T2}, 12288", f"v_add_u32 v{175+tau}, s{T2}, v4"])
    pre.append([f"s_mul_i32 s{T2}, s{sW_}, 12288", f"v_add_u32 v179, s{T2}, v4"])
    pre.append(["v_sub_f32 v13, 1.0, v12"])
    for k in range(4):
        pre.append([f"s_sub_u32 s{T2}, s{sW_}, {k}", f"s_and_b32 s{T2}, s{T2}, 3", f"s_cmp_eq_u32 s{T2}, 0", "s_cselect_b64 s[68:69], -1, 0",
                    f"v_cndmask_b32 v{180+k}, v13, v12, s[68:69]"])
    for st in range(NS):
        younger = min(st + DEP - 1, NS - 1) - st
        if st >= 14:
            a(f"s_cmp_gt_u32 s{sN2}, {st}"); a("s_cbranch_scc0 Lp2_short")
        a(f"s_waitcnt vmcnt({4*younger})")
        if st == 0: stamp(a, 8)
        bsrc = 16*st
        mf = []
        for tau in (1, 2, 3, 0):
            for c in range(4):
                d = ACC2 + 4*(4*tau + c)
                C = vr(d,4) if st > 0 else "0"
                mf.append(f"v_mfma_f32_16x16x32_bf16 {vr(d,4)}, {ar(bsrc+4*c,4)}, {vr(AR+16*(st%NR)+4*tau,4)}, {C}")
        nxt = st + 1
        rd = []
        after = [[] for _ in mf]
        for k, x in enumerate(rd): after[k].append(x)
        if st + DEP < NS:
            after[0] += next_step(sUA, T0 + ((st+DEP) & 1), AWS_U, st + DEP)
            for k, x in enumerate(loadA(st + DEP)): after[1 + 4*k].append(x)
        if 1 <= st <= 5:
            for k, ch in enumerate(pre[2*(st-1):2*st]): after[3 + 6*k] += ch
        if st == NS - 1:
            for tau in (1, 2):
                for c in range(4):
                    after[min(4*tau + 4 + c, 15)].append(f"ds_write_b128 v{175+tau}, {vr(ACC2+4*(4*tau+c),4)} offset:{(tau-1)*4096 + c*1024}")
        for m, f in zip(mf, after):
            a(m)
            for x in f: a(x)
    a.nop(2)
    a("s_branch Lp2_red")
    a.label("Lp2_short")
    a("s_waitcnt vmcnt(0)")
    a.nop(8)
    for tau in (1, 2):
        for c in range(4):
            a(f"ds_write_b128 v{175+tau}, {vr(ACC2+4*(4*tau+c),4)} offset:{(tau-1)*4096 + c*1024}")
    a.label("Lp2_red")
    stamp(a, 9)
    for c in range(4):
        a(f"ds_write_b128 v178, {vr(ACC2+4*(12+c),4)} offset:{2*4096 + c*1024}")
    for r in range(0, 16, 2): a(f"v_pk_mul_f32 {vr(ACC2+r,2)}, {vr(ACC2+r,2)}, {vr(180,2)} op_sel_hi:[1,0]")
    a("s_waitcnt lgkmcnt(0)"); a("s_barrier")
    R = 80
    for pos in range(3):
        for c in range(4):
            a(f"ds_read_b128 {vr(R+16*pos+4*c,4)}, v179 offset:{pos*4096 + c*1024}")
    for pos in range(3):
        a(f"s_waitcnt lgkmcnt({8 - 4*pos})")
        f = 181 + pos; pr = vr(f - f % 2, 2); sel = f % 2
        for r in range(0, 16, 2):
            a(f"v_pk_fma_f32 {vr(ACC2+r,2)}, {vr(R+16*pos+r,2)}, {pr}, {vr(ACC2+r,2)} op_sel:[0,{sel},0] op_sel_hi:[1,{sel},1]")
    for c in range(4):
        a(f"v_cvt_pk_bf16_f32 v{32+2*c}, v{ACC2+4*c}, v{ACC2+4*c+1}"); a(f"v_cvt_pk_bf16_f32 v{33+2*c}, v{ACC2+4*c+2}, v{ACC2+4*c+3}")
    a("s_nop 1")
    for p in range(2):
        b = 32 + 4*p
        a(f"v_permlane16_swap_b32 v{b}, v{b+2}"); a(f"v_permlane16_swap_b32 v{b+1}, v{b+3}")
    for p in range(2):
        a(f"buffer_store_dwordx4 {vr(32+4*p,4)}, v0, s[16:19], 0 offen offset:{64*p} {['', 'sc1', 'nt', 'sc0 sc1'][OPT.get('outfl', 0)]}")
    stamp(a, 10)

def kernel():
    a = Asm()
    a(f".globl {KNAME}"); a(".p2align 8"); a(f".type {KNAME},@function"); a.label(KNAME)
    a("s_cmp_ge_u32 s2, 256"); a("s_cbranch_scc1 Lend")
    stamp(a, 0)
    a("s_load_dwordx4 s[4:7], s[0:1], 0")
    a("s_load_dwordx4 s[12:15], s[0:1], 32")
    a("s_load_dwordx4 s[44:47], s[0:1], 48")
    a("s_load_dwordx2 s[8:9], s[0:1], 16")
    a("s_load_dwordx4 s[48:51], s[0:1], 64")
    a("s_load_dwordx2 s[10:11], s[0:1], 80")
    a("v_lshrrev_b32 v4, 6, v0"); a("v_and_b32 v1, 63, v0"); a("v_lshrrev_b32 v2, 4, v1"); a("v_and_b32 v3, 15, v1")
    a(f"v_readfirstlane_b32 s{sW_}, v4")
    if OPT.get("cpf", 1):
        NL = OPT.get("cpfn", 10)
        a("s_getpc_b64 s[16:17]")
        a.label("Lpc")
        a(f"s_lshr_b32 s18, s2, 3"); a(f"s_mul_i32 s18, s18, {NL}")
        a(f"v_min_u32 v5, {NL-1}, v1"); a("v_add_u32 v5, s18, v5"); a("v_lshlrev_b32 v5, 7, v5")
        a("v_min_u32 v5, (Lend-Lpc), v5")
        a(f"s_cmp_eq_u32 s{sW_}, 0"); a("s_cbranch_scc0 Lnopf")
        a("global_load_dword v255, v5, s[16:17]")
        a.label("Lnopf")
    a(f"s_and_b32 s{T2}, s2, 4"); a(f"s_lshl_b32 s{sRB}, s{T2}, 1"); a(f"s_lshr_b32 s{T4}, s2, 5"); a(f"s_add_u32 s{sRB}, s{sRB}, s{T4}")
    a(f"s_and_b32 s{T3}, s2, 3"); a(f"s_lshl_b32 s{T3}, s{T3}, 1")
    a(f"s_bfe_u32 s{T5}, s2, 0x10003"); a(f"s_add_u32 s{sGRP}, s{T3}, s{T5}")
    a(f"s_bfe_u32 s{sTYPE}, s2, 0x10004")
    a(f"s_and_b32 s{T4}, s{T4}, 3"); a(f"s_add_u32 s{T4}, s{T4}, s{T2}"); a(f"s_add_u32 s{T4}, s{T4}, s{sGRP}"); a(f"s_and_b32 s{T6}, s{T4}, 7")
    a(f"s_lshr_b32 s{sRH}, s{sW_}, 1"); a(f"s_and_b32 s{sCH}, s{sW_}, 1")
    a(f"s_lshl_b32 s{sKX}, s{T6}, 7")
    a(f"s_lshl_b32 s{sXD}, s{sW_}, 12"); a(f"s_add_u32 s{sXE}, s{sW_}, 16"); a(f"s_lshl_b32 s{sXE}, s{sXE}, 10")
    a(f"s_mul_i32 s{sWD}, s{sW_}, 6144"); a(f"s_add_u32 s{sWD}, s{sWD}, {WOFF}")
    a(f"s_mov_b32 s{sCUR}, 0"); a(f"s_mov_b32 s{sNXT}, {STAGE}"); a(f"s_mov_b32 s{sPRV}, {2*STAGE}")
    a("v_lshrrev_b32 v4, 3, v1"); a("v_and_b32 v5, 7, v1"); a("v_xor_b32 v6, v5, v2")
    a("v_lshlrev_b32 v7, 10, v4"); a("v_lshl_add_u32 v8, v6, 4, v7"); a("v_xor_b32 v9, 64, v8")
    a(f"s_cmp_eq_u32 s{sTYPE}, 0"); a("s_cbranch_scc0 Lffn")
    phase1_role(a, "att")
    a.label("Lffn")
    phase1_role(a, "ffn")
    phase2(a)
    stamp_flush(a)
    a.label("Lend")
    a("s_endpgm")
    return a.text()

def main(out):
    t = kernel()
    src = "; Single launch: phase 1 (QKV projection + windowed attention | FFN1 + mish, gate), per-row-block counters in d_debug,\n"
    src += "; phase 2 (output projection of both branches, blended by the gate).\n"
    src += f"; @launch grid=(256,1,1) block=(256,1,1) lds={LDS_BYTES}\n"
    src += '.amdgcn_target "amdgcn-amd-amdhsa--gfx950"\n.text\n' + t + kd(KNAME, 512, 256)
    open(out, "w").write(src)

if __name__ == "__main__":
    if "--instr" in sys.argv: INSTR = True; sys.argv.remove("--instr")
    for x in list(sys.argv):
        if x.startswith("--"):
            sys.argv.remove(x); k, _, v = x[2:].partition("="); OPT[k] = int(v) if v else 1
    AWS_U = 131072 + OPT.get("skew", 0)
    main(sys.argv[1] if len(sys.argv) > 1 else "cdna_kernels/" + NAME + ".s")
```

```python
import sys
from asmlib import *

NAME = "gated_mix__sliding_local_dilated__dense_activation_mish__prompt"
KNAME = NAME + "_kernel"
LOG2E = 0x3fb8aa3b
STAGE = 43008
WOFF = 18432
AWS_U = 131072
G_OFF = 8 << 20
LDS_BYTES = 163840
GA, GB, GC, GC2, R2 = 86016, 0, 43008, 86016 + 16*4096, 28672
INSTR = False
OPT = {"p2b": 2, "r2pre": 0, "rmode": 1, "rot2": 3, "qa": 2, "qm": 7, "qb": 0}
STAMP_OFF = 16 << 20
NST = 12

sW_, sRB, sTYPE, sGRP = 40, 41, 42, 43
sRH, sCH, sBUF, sFREE, sXD, sXE, sWD, sKX, sKW, sKW2, sRS64, sIT, sU0 = range(52, 65)
T0, T1, T2, T3, T4, T5, T6 = range(65, 72)
XO, WO, XB, WB, XA, WA = 16, 21, 27, 29, 35, 37
WA1 = 208
GX, GW, GR, BIAS = 44, 52, 56, 58
vFLG, vCLR = 94, 95
FLAG_OFF = 16384
vGST, vBD, vBF, vAO, vGRD, vOUT = 86, 87, 88, 208, 92, 93
ACC = 96
BF32 = 70
SET = [0, 44]

def srd(a, s, ptr, size):
    a(f"s_mov_b32 s{s}, s{ptr}")
    a(f"s_and_b32 s{s+1}, s{ptr+1}, 0xffff")
    a(f"s_mov_b32 s{s+2}, {size}")
    a(f"s_mov_b32 s{s+3}, 0x00020000")

def istamp(a, k):
    if OPT.get("epist") and k not in (9, 10): return
    if INSTR and OPT.get("iter"): a(f"{'s_memtime' if OPT.get('cyc') else 's_memrealtime'} s[{72+2*k}:{73+2*k}]")
def stamp(a, k):
    if OPT.get("iter") and k not in (0, NST-1): return
    if INSTR: a(f"{'s_memtime' if OPT.get('cyc') else 's_memrealtime'} s[{72+2*k}:{73+2*k}]")
def stamp_flush_dbg(a):
    a("s_waitcnt vmcnt(0) lgkmcnt(0)")
    stamp(a, NST-1)
    a("s_waitcnt lgkmcnt(0)")
    a(f"s_cmp_eq_u32 s{sW_}, 0"); a("s_cbranch_scc0 Ldbg_done")
    a("v_cmp_eq_u32 vcc, 0, v1"); a("s_and_saveexec_b64 s[28:29], vcc")
    slots = [1,2,3,5,6,7,9,10,11,13,14,15]
    order = [0, 0, 1, 3, 4, 5, 6, 7, 8, 9, 10, 11]
    for k, (sl, stp) in enumerate(zip(slots, order)):
        a(f"v_mov_b32 v2, s{72+2*stp}")
        if k == 0: a("v_not_b32 v2, v2")
        a(f"v_mov_b32 v3, {4*sl}")
        a("global_atomic_umax v3, v2, s[50:51]")
    a("s_mov_b64 exec, s[28:29]")
    a.label("Ldbg_done")
def stamp_flush(a):
    if not INSTR: return
    if OPT.get("dbg"): return stamp_flush_dbg(a)
    a("s_waitcnt vmcnt(0) lgkmcnt(0)")
    stamp(a, NST-1)
    a("s_waitcnt lgkmcnt(0)")
    a(f"s_add_u32 s24, s10, {STAMP_OFF}"); a("s_addc_u32 s25, s11, 0"); a("s_and_b32 s25, s25, 0xffff")
    a("s_mov_b32 s26, 65536"); a("s_mov_b32 s27, 0x00020000")
    a(f"s_lshl_b32 s{T0}, s2, 8"); a(f"s_lshl_b32 s{T1}, s{sW_}, 6"); a(f"s_add_u32 s{T0}, s{T0}, s{T1}")
    a(f"v_mov_b32 v0, s{T0}")
    a("v_cmp_eq_u32 vcc, 0, v1"); a("s_and_saveexec_b64 s[28:29], vcc")
    for k in range(NST):
        a(f"v_mov_b32 v2, s{72+2*k}"); a(f"buffer_store_dword v2, v0, s[24:27], 0 offen offset:{4*k}")
    a("s_mov_b64 exec, s[28:29]")

def bias_reg(ct, r):
    k = 4*ct + r
    return (BF32 + k) if k < 16 else (8 + k - 16)

def isatt(role): return role.startswith("att")
def p1_reads(role, st, h):
    base = SET[st]
    nx = 5 if isatt(role) else 4
    w = []
    for tt in range(6):
        off = h * 4096 + ((tt >> 1) * 8192 if isatt(role) else 0)
        r = base + 20 + 4 * tt; ad = (WA if h == 0 else WA1) + (tt & 1 if isatt(role) else tt)
        w.append(f"ds_read_b64_tr_b16 {ar(r,2)}, v{ad} offset:{off}")
        w.append(f"ds_read_b64_tr_b16 {ar(r+2,2)}, v{ad} offset:{off+512}")
    tile = lambda t: (t + 4 if (role == "att1" and t > 0) else t)
    x = [f"ds_read_b128 {ar(base+4*t,4)}, v{XA+h} offset:{tile(t)*2048}" for t in range(nx)]
    if isatt(role):
        return [w[4], w[5], x[1], x[2], x[3], w[6], w[7], x[4], x[0], w[0], w[1], w[2], w[3]] + w[8:]
    return [w[0], w[1], x[0], x[1], x[2], x[3]] + w[2:]

def p1_mfmas(role, st, first=False):
    base = SET[st]; X = lambda t: ar(base + 4*t, 4); W = lambda t: ar(base + 20 + 4*t, 4)
    out = []
    def m(c, A, B, cin=None):
        C = vr(c,4) if not first else cin
        out.append(f"v_mfma_f32_16x16x32_bf16 {vr(c,4)}, {A}, {B}, {C}")
    if isatt(role):
        for a_ in range(2):
            for t in ((1, 2, 3, 4, 0) if role == "att0" else (1, 2, 3, 4)): m(ACC + 4*(8 + 2*t + a_), W(2+a_), X(t), "0")
        for a_ in range(2):
            for t in range(1, 5): m(ACC + 4*(2*(t-1) + a_), W(a_), X(t), "0")
        for a_ in range(2):
            for t in ((1, 2, 3, 4) if role == "att0" else (1, 2, 3, 4, 0)): m(ACC + 4*(18 + 2*t + a_), X(t), W(4+a_), "0")
    else:
        for ct in range(6):
            for rt in range(4): m(ACC + 4*(6*rt + ct), W(ct), X(rt), vr(bias_reg(ct,0), 4))
    return out

def dma_x(role, bufreg):
    g = []
    if role == "att":
        g.append(([f"s_add_u32 m0, s{bufreg}, s{sXE}"],
                  [f"s_cmp_lt_u32 s{sW_}, 2", "s_cbranch_scc0 1f", f"buffer_load_dwordx4 v{XO+4}, s[16:19], s{sKX} offen lds", "1:"]))
    if role == "att0":
        g.append(([f"s_add_u32 m0, s{bufreg}, s{sXE}"], [f"buffer_load_dwordx4 v{XO+4}, s[16:19], s{sKX} offen lds"]))
    for j in range(4):
        m = f"s_add_u32 m0, s{bufreg}, s{sXD}" if j == 0 else "s_add_u32 m0, m0, 1024"
        g.append(([m], [f"buffer_load_dwordx4 v{XO+j}, s[16:19], s{sKX} offen lds"]))
    return g
def dma_w(bufreg, js, sw):
    g = []
    for k, j in enumerate(js):
        if k == 0: m = [f"s_add_u32 m0, s{bufreg}, s{sWD}"] + ([f"s_add_u32 m0, m0, {1024*j}"] if j else [])
        else: m = ["s_add_u32 m0, m0, 1024"]
        g.append((m, [f"buffer_load_dwordx4 v{WO+j}, s[20:23], s{sw} offen lds"]))
    return g
def h1(role, buf): return dma_x(role, buf) + dma_w(buf, [0], sKW)
def h2(role, buf, sw=None): return dma_w(buf, [1,2,3,4,5], sKW2 if sw is None else sw)

SCC_READ = ("s_cselect", "s_cbranch_scc", "s_addc", "s_subb")
SCC_WRITE = ("s_cmp", "s_add_u32", "s_sub_u32", "s_addc", "s_subb", "s_and_b", "s_or_b", "s_xor_b", "s_lshl_b", "s_lshr_b", "s_bitcmp", "s_add_i32")
def chunks(lines):
    n = len(lines); live = [False]*(n+1)
    for i in range(n-1, -1, -1):
        x = lines[i]
        if x.startswith(SCC_READ): live[i] = True
        elif x.startswith(SCC_WRITE): live[i] = False
        else: live[i] = live[i+1]
    out = []
    for i, x in enumerate(lines):
        if out and live[i]: out[-1].append(x)
        else: out.append([x])
    return out
def capture(fn, *args):
    t = Asm(); fn(t, *args); return [x.strip() for x in t.L]

def emit_pairs(a, pairs):
    for m, l in pairs:
        for x in m: a(x)
        a("s_nop 0")
        for x in l: a(x)

def schedule(mf, reads, dmas, extra=(), dma_first=2, read_span=20, xspan=None, tail=()):
    n = len(mf); after = [[] for _ in range(n)]
    if dmas:
        step = (n - len(tail) - dma_first) / len(dmas)
        for k, (m, l) in enumerate(dmas):
            p = int(dma_first + k * step)
            after[max(p-1, 0)] += m
            after[p] += l
    for k, r in enumerate(reads):
        after[min(int(k * read_span / len(reads)), n-1)].insert(0, r)
    for k, x in enumerate(extra):
        lo, hi = xspan or (0, n)
        after[min(int(lo + k * (hi - lo) / len(extra)), n-1)] += (x if isinstance(x, list) else [x])
    for k, x in enumerate(tail):
        after[n - len(tail) - 1 + k] += (x if isinstance(x, list) else [x])
    out = []
    for i in range(n):
        out.append(mf[i]); out += after[i]
    return out

sPRV, sCUR, sNXT = sFREE, sBUF, sIT + 0
sNXT = 63
def addr_set(role, h, sreg):
    n = 2 if isatt(role) else 6
    w = WA if h == 0 else WA1
    return [f"v_add_u32 v{XA+h}, s{sreg}, v{XB+h}"] + [f"v_add_u32 v{w+t}, s{sreg}, v{WB+t}" for t in range(n)]
def rot_instrs():
    return [[f"s_mov_b32 s{T0}, s{sPRV}", f"s_mov_b32 s{sPRV}, s{sCUR}"], [f"s_mov_b32 s{sCUR}, s{sNXT}", f"s_mov_b32 s{sNXT}, s{T0}"]]
def adv_k():
    return [f"s_add_u32 s{sKX}, s{sKX}, 128", f"s_and_b32 s{sKX}, s{sKX}, 1023",
            f"s_add_u32 s{sKW}, s{sKW}, s{sRS64}", f"s_cmp_eq_u32 s{sKW}, s22", f"s_cselect_b32 s{sKW}, 0, s{sKW}"]
def adv_x(): return [f"s_add_u32 s{sKX}, s{sKX}, 128", f"s_and_b32 s{sKX}, s{sKX}, 1023"]
def adv_w(): return [f"s_add_u32 s{sKW}, s{sKW}, s{sRS64}", f"s_cmp_eq_u32 s{sKW}, s22", f"s_cselect_b32 s{sKW}, 0, s{sKW}"]
def with_adv(pieces, adv):
    m, l = pieces[-1]
    return pieces[:-1] + [(m, l + adv)]
def all_x(role, buf): return with_adv(dma_x(role, buf), adv_x())
def all_w(buf): return with_adv(dma_w(buf, [0,1,2,3,4,5], sKW), adv_w())
def adv_instrs():
    return [[f"s_mov_b32 s{sKW2}, s{sKW}"] + adv_k()]

def gate_instrs():
    g = []
    for q in range(4):
        for row in range(2):
            g.append(f"v_dot2_f32_bf16 v{GR+row}, v{GX+4*row+q}, v{GW+q}, {'0' if q == 0 else 'v%d' % (GR+row)}")
    g += ["s_nop 0", "s_nop 0"]
    for sh in (8, 4, 2, 1):
        for row in range(2):
            g.append(f"v_add_f32_dpp v{GR+row}, v{GR+row}, v{GR+row} row_ror:{sh} row_mask:0xf bank_mask:0xf")
    for op in ("v_permlane16_swap_b32", "v_permlane32_swap_b32"):
        for row in range(2): g.append(f"v_mov_b32 v{4+row}, v{GR+row}")
        for row in range(2): g.append(f"{op} v{GR+row}, v{4+row}")
        for row in range(2): g.append(f"v_add_f32 v{GR+row}, v{GR+row}, v{4+row}")
    for row in range(2): g.append(f"v_mul_f32 v{GR+row}, 0xbfb8aa3b, v{GR+row}")
    for row in range(2): g.append(f"v_exp_f32 v{GR+row}, v{GR+row}")
    for row in range(2): g.append(f"v_add_f32 v{GR+row}, 1.0, v{GR+row}")
    for row in range(2): g.append(f"v_rcp_f32 v{GR+row}, v{GR+row}")
    return g

def body(a, role, d1, d2, wait, first=False, last=False, x1=(), x2=(), dx1=(), dx2=(), loop=None, tail1=(), noadv=False):
    up0 = addr_set(role, 0, sNXT) if not last else []
    for x in schedule(p1_mfmas(role, 0, first), p1_reads(role, 1, 1), list(d1) + list(dx1), list(x1) + up0,
                      dma_first=1 if first else 2, tail=tail1, xspan=(0, 18)): a(x)
    if last:
        a("s_waitcnt lgkmcnt(0)")
        a("s_barrier")
        for x in schedule(p1_mfmas(role, 1), [], list(d2) + list(dx2), x2): a(x)
        return
    a(f"s_waitcnt vmcnt({wait}) lgkmcnt(0)")
    a("s_barrier")
    tail = (adv_instrs() if d2 and not noadv else []) + rot_instrs()
    if loop: tail.append([f"s_add_u32 s{sLOOP}, s{sLOOP}, 1", f"s_cmp_lt_u32 s{sLOOP}, {loop[1]}"])
    for x in schedule(p1_mfmas(role, 1), p1_reads(role, 0, 0), list(d2) + list(dx2), list(x2) + addr_set(role, 1, sNXT),
                      tail=tail, xspan=(0, 20)): a(x)
    a("s_waitcnt lgkmcnt(0)")
    if loop: a(f"s_cbranch_scc1 {loop[0]}")

sLOOP = 66
sBA, sBB, sBC, sBR = 96, 97, 98, 101
def b_base(step):
    if step < 4: return sBA, step*4096
    if step < 6: return sBB, (step-4)*4096
    if step < 9: return sBC + step - 6, 0
    if step < 13: return sBA, (step-9)*4096
    if step < 15: return sBB, (step-13)*4096
    return sBC, 0
sUB, sBO, sUA = 44, 45, 8
def next_step(u, dst, shift, pos):
    if pos >= 14:
        l = [f"s_cmp_gt_u32 s{sN2}, {pos}", f"s_cselect_b32 s{dst}, s{u}, 31",
             f"s_lshl_b32 s{dst}, s{dst}, {shift}" if shift < 32 else f"s_mul_i32 s{dst}, s{dst}, {shift}"]
    else:
        l = [f"s_lshl_b32 s{dst}, s{u}, {shift}" if shift < 32 else f"s_mul_i32 s{dst}, s{u}, {shift}"]
    return l + [f"s_add_u32 s{u}, s{u}, 1", f"s_cmp_eq_u32 s{u}, s{sN2}", f"s_cselect_b32 s{u}, 0, s{u}"]
def b_dma(step):
    g = []; sb, im = b_base(step)
    for dd in range(4):
        m = next_step(sUB, sBO, 15, step) if dd == 0 else []
        g.append((m + [f"s_add_u32 m0, s{sb}, {im + dd*1024}", f"s_add_u32 s57, s{sBO}, {dd*8192}"],
                  [f"buffer_load_dwordx4 v{vBD}, s[24:27], s57 offen lds"]))
    return g
def b_addr(step, regs):
    sb, im = b_base(step)
    return [f"v_add_u32 v{regs[c]}, s{sb}, v{vBF+c}" for c in range(4)]
def b_reads(step, dst, regs):
    out = []; sb, im = b_base(step)
    for c in range(4):
        out.append(f"ds_read_b64_tr_b16 {ar(dst+4*c,2)}, v{regs[c]} offset:{im}")
        out.append(f"ds_read_b64_tr_b16 {ar(dst+4*c+2,2)}, v{regs[c]} offset:{im+2048}")
    return out

sRB2, sCT2, sU2, sN2 = 12, 13, 14, 15
def p2_scalar_setup(a):
    a(f"s_and_b32 s{T0}, s2, 7"); a(f"s_lshr_b32 s{T1}, s2, 3")
    if OPT.get("p2b", 1) == 1:
        a(f"s_lshl_b32 s{sRB2}, s{T0}, 2"); a(f"s_lshr_b32 s{T2}, s{T1}, 3"); a(f"s_add_u32 s{sRB2}, s{sRB2}, s{T2}")
        a(f"s_and_b32 s{sCT2}, s{T1}, 7")
    else:
        a(f"s_lshr_b32 s{sRB2}, s{T0}, 1"); a(f"s_lshl_b32 s{sRB2}, s{sRB2}, 3"); a(f"s_lshr_b32 s{T2}, s{T1}, 2"); a(f"s_add_u32 s{sRB2}, s{sRB2}, s{T2}")
        a(f"s_and_b32 s{sCT2}, s{T0}, 1"); a(f"s_lshl_b32 s{sCT2}, s{sCT2}, 2"); a(f"s_and_b32 s{T2}, s{T1}, 3")
        a(f"s_xor_b32 s{T2}, s{T2}, {OPT.get('cx', 3)}"); a(f"s_add_u32 s{sCT2}, s{sCT2}, s{T2}")
    a(f"s_mov_b32 s{sU2}, 0"); a(f"s_mov_b32 s{sN2}, 16")
    for w, u0, n in ((1,16,15), (2,31,14), (3,45,14)):
        a(f"s_cmp_eq_u32 s{sW_}, {w}"); a(f"s_cselect_b32 s{sU2}, {u0}, s{sU2}"); a(f"s_cselect_b32 s{sN2}, {n}, s{sN2}")
    a(f"s_lshl_b32 s{sBA}, s{sW_}, 14"); a(f"s_add_u32 s{sBA}, s{sBA}, {GA}")
    a(f"s_lshl_b32 s{sBB}, s{sW_}, 13")
    a(f"s_mul_i32 s{T0}, s{sW_}, 12288"); a(f"s_add_u32 s{T0}, s{T0}, {GC}")
    for k in range(3):
        a(f"s_add_u32 s{sBC+k}, s{T0}, {4096*k}")
    a(f"s_cmp_eq_u32 s{sW_}, 3")
    a(f"s_cselect_b32 s{sBC+1}, {GC2}, s{sBC+1}"); a(f"s_cselect_b32 s{sBC+2}, {GC2+4096}, s{sBC+2}")
    a(f"s_mul_i32 s{sBR}, s{sW_}, {R2}")
    a(f"s_sub_u32 s{T0}, s{sU2}, 16"); a(f"s_lshl_b32 s{T0}, s{T0}, 15"); a(f"s_add_u32 s{T2}, s44, s{T0}"); a(f"s_addc_u32 s{T3}, s45, 0")
    a(f"s_cmp_eq_u32 s{sW_}, 0"); a(f"s_cselect_b32 s24, s8, s{T2}"); a(f"s_cselect_b32 s25, s9, s{T3}"); a("s_and_b32 s25, s25, 0xffff")
    a(f"s_lshl_b32 s26, s{sN2}, 15"); a("s_mov_b32 s27, 0x00020000")
    a(f"s_mul_i32 s{T0}, s{sU2}, {AWS_U}"); a(f"s_add_u32 s28, s10, s{T0}"); a("s_addc_u32 s29, s11, 0"); a("s_and_b32 s29, s29, 0xffff")
    a(f"s_mul_i32 s30, s{sN2}, {AWS_U}"); a("s_mov_b32 s31, 0x00020000")
    if OPT.get("rot2", 1) == 3:
        a(f"s_and_b32 s{T0}, s{sRB2}, {OPT.get('qm', 3)}"); a(f"s_mul_i32 s{T0}, s{T0}, {OPT.get('qa', 4)}")
        a(f"s_and_b32 s{T1}, s{sCT2}, {OPT.get('qc', 3)}"); a(f"s_mul_i32 s{T1}, s{T1}, {OPT.get('qb', 2)}"); a(f"s_add_u32 s{T0}, s{T0}, s{T1}")
    elif OPT.get("rot2", 1) == 1:
        a(f"s_and_b32 s{T0}, s{sRB2}, 3"); a(f"s_lshl_b32 s{T0}, s{T0}, 2"); a(f"s_lshl_b32 s{T1}, s{sCT2}, 1"); a(f"s_add_u32 s{T0}, s{T0}, s{T1}")
    elif OPT.get("p2b", 1) == 2:
        a(f"s_and_b32 s{T0}, s{sRB2}, 7"); a(f"s_lshl_b32 s{T0}, s{T0}, 1")
        a(f"s_lshr_b32 s{T1}, s{sRB2}, 3"); a(f"s_and_b32 s{T1}, s{T1}, 1"); a(f"s_add_u32 s{T0}, s{T0}, s{T1}")
        a(f"s_and_b32 s{T1}, s{sCT2}, 3"); a(f"s_lshl_b32 s{T1}, s{T1}, 2"); a(f"s_add_u32 s{T0}, s{T0}, s{T1}")
    else:
        a(f"s_and_b32 s{T0}, s{sRB2}, 3"); a(f"s_lshl_b32 s{T0}, s{T0}, 2")
        a(f"s_lshr_b32 s{T1}, s{sRB2}, 2"); a(f"s_and_b32 s{T1}, s{T1}, 3"); a(f"s_add_u32 s{T0}, s{T0}, s{T1}")
        a(f"s_and_b32 s{T1}, s{sCT2}, 3"); a(f"s_lshl_b32 s{T1}, s{T1}, 1"); a(f"s_add_u32 s{T0}, s{T0}, s{T1}")
    a(f"s_sub_u32 s{T1}, s{T0}, s{sN2}"); a(f"s_cmp_ge_u32 s{T0}, s{sN2}"); a(f"s_cselect_b32 s{sUB}, s{T1}, s{T0}")
    a(f"s_mov_b32 s{sUA}, s{sUB}")

def mix(a, valu, dmas, every):
    d = list(dmas); cnt = 0
    for k, x in enumerate(valu):
        a(x)
        if x.endswith(":") or x.startswith("s_cbranch"): continue
        cnt += 1
        if d and cnt % every == every - 2:
            for y in d[0][0]: a(y)
        if d and cnt % every == 0:
            for y in d[0][1]: a(y)
            d.pop(0)
    return d

XCH = 32768
def att_epilogue(role):
    e = []
    Q = lambda t, h: ACC + 4*(2*(t-1) + h)
    Kc = lambda t, h: ACC + 4*(8 + 2*t + h)
    V = lambda t, h: ACC + 4*(18 + 2*t + h)
    KF, VF, QF = 208, 228, 16
    kf = lambda t, h: KF + 10*h + 2*t
    vf = lambda t, h: VF + 10*h + 2*t
    qf = lambda t, h: QF + 2*(2*(t-1) + h)
    cv = lambda d, s: [f"v_cvt_pk_bf16_f32 v{d}, v{s}, v{s+1}", f"v_cvt_pk_bf16_f32 v{d+1}, v{s+2}, v{s+3}"]
    combos = [(t,h) for t in range(1,5) for h in range(2)]
    MC, MP, MF, SEL0, SEL1, ONES = 70, 72, 74, 76, 77, 78
    a0 = role == "att0"
    for t in (range(0, 5) if a0 else range(1, 5)):
        for h in range(2): e += cv(kf(t,h), Kc(t,h))
    for (t,h) in combos: e += cv(qf(t,h), Q(t,h))
    S = lambda ci, blk: ACC + 8*ci + 4*blk
    vcv = []
    for t in ((4, 1, 2, 3) if a0 else (0, 1, 2, 3, 4)):
        for h in range(2): vcv += cv(vf(t,h), V(t,h))
    sm = [f"v_mfma_f32_16x16x16_bf16 {vr(S(ci,1),4)}, {vr(kf(t,h),2)}, {vr(qf(t,h),2)}, 0" for ci,(t,h) in enumerate(combos)]
    sp = [f"v_mfma_f32_16x16x16_bf16 {vr(S(ci,0),4)}, {vr(kf(t-1,h),2)}, {vr(qf(t,h),2)}, 0" for ci,(t,h) in list(enumerate(combos))[::-1]]
    e += ["@st 2", "s_nop 1"]
    n1 = 12 if a0 else 14
    for k, m in enumerate(sm):
        e.append(m); e += vcv[k*n1//8:(k+1)*n1//8]
    for h in range(2):
        if a0:
            e.append(f"ds_write_b64 v251, {vr(kf(4,h),2)} offset:{512*h}"); e.append(f"ds_write_b64 v251, {vr(vf(4,h),2)} offset:{1024+512*h}")
        else:
            e.append(f"ds_write_b64 v251, {vr(vf(0,h),2)} offset:{2048+512*h}")
    rem = vcv[n1:]
    e += rem[:2] + ["s_waitcnt lgkmcnt(0)", "s_barrier", "@st 3"]
    for h in range(2):
        if a0: e.append(f"ds_read_b64 {vr(vf(0,h),2)}, v251 offset:{2048+512*h}")
        else:
            e.append(f"ds_read_b64 {vr(kf(0,h),2)}, v251 offset:{512*h}"); e.append(f"ds_read_b64 {vr(vf(0,h),2)}, v251 offset:{1024+512*h}")
    rem = rem[2:]
    for k, m in enumerate(sp[:6]):
        e.append(m); e += rem[k*len(rem)//6:(k+1)*len(rem)//6]
    e += ["s_waitcnt lgkmcnt(0)"] + sp[6:]
    e += (["s_nop 7"] if OPT.get("epist") == 2 else ["@st 4", "s_nop 7"])
    A = lambda ci: 160 + 4*ci
    for ci in range(8):
        for blk in range(2):
            s = S(ci, blk)
            e.append(f"v_cndmask_b32 v{A(ci)+2*blk}, v{s}, v{s+1}, s[46:47]")
            e.append(f"v_cndmask_b32 v{A(ci)+2*blk+1}, v{s+2}, v{s+3}, s[46:47]")
    for ci,(t,h) in enumerate(combos):
        mp = MF if t == 1 else MP
        e.append(f"v_pk_fma_f32 {vr(A(ci),2)}, {vr(A(ci),2)}, s[0:1], {vr(mp,2)} op_sel_hi:[1,0,1]")
        e.append(f"v_pk_fma_f32 {vr(A(ci)+2,2)}, {vr(A(ci)+2,2)}, s[0:1], {vr(MC,2)} op_sel_hi:[1,0,1]")
    MX = 4
    for ci in range(8):
        e.append(f"v_max3_f32 v{MX+ci}, v{A(ci)}, v{A(ci)+1}, v{A(ci)+2}")
    for ci in range(8):
        e.append(f"v_max_f32 v{MX+ci}, v{MX+ci}, v{A(ci)+3}")
    for q in range(2):
        b = MX + 4*q
        e += ["s_nop 0"] if q == 0 else []
        e.append(f"v_permlane32_swap_b32 v{b}, v{b+1}"); e.append(f"v_permlane32_swap_b32 v{b+2}, v{b+3}")
    for q in range(2):
        b = MX + 4*q
        e.append(f"v_max_f32 v{b}, v{b}, v{b+1}"); e.append(f"v_max_f32 v{b+2}, v{b+2}, v{b+3}")
    e.append("s_nop 0")
    for q in range(2):
        b = MX + 4*q
        e.append(f"v_permlane16_swap_b32 v{b}, v{b+2}")
    e.append("s_nop 0")
    for q in range(2):
        b = MX + 4*q
        e.append(f"v_max_f32 v{b}, v{b}, v{b+2}")
    for q in range(2):
        b = MX + 4*q
        e.append(f"v_mov_b32 v{b+1}, v{b}")
    e.append("s_nop 0")
    for q in range(2):
        b = MX + 4*q
        e.append(f"v_permlane32_swap_b32 v{b}, v{b+1}")
    e.append("s_nop 0")
    for q in range(2):
        b = MX + 4*q
        e.append(f"v_mov_b32 v{b+2}, v{b}"); e.append(f"v_mov_b32 v{b+3}, v{b+1}")
    e.append("s_nop 0")
    for q in range(2):
        b = MX + 4*q
        e.append(f"v_permlane16_swap_b32 v{b}, v{b+2}")
        e.append(f"v_permlane16_swap_b32 v{b+1}, v{b+3}")
    e.append("s_nop 0")
    for ci in range(8):
        e.append(f"v_pk_add_f32 {vr(A(ci),2)}, {vr(A(ci),2)}, {vr(MX+ci - (MX+ci)%2,2)} op_sel:[0,{(MX+ci)%2}] op_sel_hi:[1,{(MX+ci)%2}] neg_lo:[0,1] neg_hi:[0,1]")
        e.append(f"v_pk_add_f32 {vr(A(ci)+2,2)}, {vr(A(ci)+2,2)}, {vr(MX+ci - (MX+ci)%2,2)} op_sel:[0,{(MX+ci)%2}] op_sel_hi:[1,{(MX+ci)%2}] neg_lo:[0,1] neg_hi:[0,1]")
    if OPT.get("epist") != 2: e.append("@st 5")
    P = lambda ci: ACC + 4*ci
    for ci in range(8):
        for r in range(4): e.append(f"v_exp_f32 v{A(ci)+r}, v{A(ci)+r}")
        if ci > 0:
            c1 = ci - 1
            e += [f"v_cvt_pk_bf16_f32 v12, v{A(c1)}, v{A(c1)+1}", f"v_cvt_pk_bf16_f32 v13, v{A(c1)+2}, v{A(c1)+3}",
                  f"v_perm_b32 v{P(c1)}, v12, v12, v{SEL0}", f"v_perm_b32 v{P(c1)+1}, v12, v12, v{SEL1}",
                  f"v_perm_b32 v{P(c1)+2}, v13, v13, v{SEL0}", f"v_perm_b32 v{P(c1)+3}, v13, v13, v{SEL1}"]
    e.append("s_nop 0")
    e += [f"v_cvt_pk_bf16_f32 v12, v{A(7)}, v{A(7)+1}", f"v_cvt_pk_bf16_f32 v13, v{A(7)+2}, v{A(7)+3}",
          f"v_perm_b32 v{P(7)}, v12, v12, v{SEL0}", f"v_perm_b32 v{P(7)+1}, v12, v12, v{SEL1}",
          f"v_perm_b32 v{P(7)+2}, v13, v13, v{SEL0}", f"v_perm_b32 v{P(7)+3}, v13, v13, v{SEL1}"]
    e.append("s_nop 1")
    if OPT.get("epist") != 2: e.append("@st 6")
    O = lambda ci: 128 + 4*ci
    L = lambda ci: 160 + 4*ci
    for ci,(t,h) in enumerate(combos):
        e.append(f"v_mfma_f32_16x16x32_bf16 {vr(O(ci),4)}, {vr(vf(t-1,h),4)}, {vr(P(ci),4)}, 0")
        e.append(f"v_mfma_f32_16x16x32_bf16 {vr(L(ci),4)}, {vr(ONES,4)}, {vr(P(ci),4)}, 0")
    e.append("s_nop 6")
    for ci in range(8): e.append(f"v_rcp_f32 v{MX+ci}, v{L(ci)}")
    e.append("s_nop 0")
    for ci in range(8):
        sel = (MX+ci) % 2; pr = vr(MX+ci - sel, 2)
        e.append(f"v_pk_mul_f32 {vr(O(ci),2)}, {vr(O(ci),2)}, {pr} op_sel:[0,{sel}] op_sel_hi:[1,{sel}]")
        e.append(f"v_pk_mul_f32 {vr(O(ci)+2,2)}, {vr(O(ci)+2,2)}, {pr} op_sel:[0,{sel}] op_sel_hi:[1,{sel}]")
    if OPT.get("epist") != 2: e.append("@st 7")
    for t in range(1,5):
        d = 16 + 4*(t-1)
        for h in range(2): e += cv(d + 2*h, O(2*(t-1)+h))
        e.append(f"buffer_store_dwordx4 {vr(d,4)}, v250, s[32:35], s{T6} offen offset:{(t-1)*1024} sc1")
    out = []
    for x in e:
        if x.startswith("@st"):
            k = int(x.split()[1])
            if INSTR and OPT.get("epist"): out.append(f"{'s_memtime' if OPT.get('cyc') else 's_memrealtime'} s[{72+2*k}:{73+2*k}]")
        else: out.append(x)
    return out

def att_consts(a):
    a("s_mov_b32 s46, 0xaaaaaaaa"); a("s_mov_b32 s47, 0xaaaaaaaa")
    a("s_mov_b32 s0, 0x3eb8aa3b"); a("s_mov_b32 s1, 0x3eb8aa3b")
    a("v_and_b32 v8, 14, v3"); a("v_lshlrev_b32 v9, 2, v2"); a("v_sub_u32 v8, v8, v9")
    a("v_mov_b32 v9, 0xf149f2ca")
    for dst, blk in ((70, 0), (72, 16)):
        for k in range(2):
            a(f"v_add_u32 v10, {blk - 2*k}, v8")
            a("v_cmp_gt_u32 s[6:7], 15, v10")
            a("s_nop 1")
            a(f"v_cndmask_b32 v{dst+k}, v9, 0, s[6:7]")
    a(f"s_or_b32 s{T0}, s{sRB}, s{sRH}"); a(f"s_cmp_eq_u32 s{T0}, 0"); a("s_cselect_b64 s[6:7], -1, 0")
    for k in range(2): a(f"v_cndmask_b32 v{74+k}, v{72+k}, v9, s[6:7]")
    a("v_mov_b32 v76, 0x0c0c0100"); a("v_mov_b32 v10, 0x01000c0c"); a("v_cndmask_b32 v76, v76, v10, s[46:47]")
    a("v_mov_b32 v77, 0x0c0c0302"); a("v_mov_b32 v10, 0x03020c0c"); a("v_cndmask_b32 v77, v77, v10, s[46:47]")
    for r in range(4): a(f"v_mov_b32 v{78+r}, 0x3f803f80")
    a(f"s_lshl_b32 s{T6}, s{sGRP}, 1"); a(f"s_add_u32 s{T6}, s{T6}, s{sCH}"); a(f"s_mul_i32 s{T6}, s{T6}, {AWS_U}")
    a(f"s_lshl_b32 s{T0}, s{sRB}, 3"); a(f"s_lshl_b32 s{T1}, s{sRH}, 2"); a(f"s_add_u32 s{T0}, s{T0}, s{T1}"); a(f"s_lshl_b32 s{T0}, s{T0}, 10")
    a("v_lshlrev_b32 v250, 4, v1"); a(f"v_add_u32 v250, s{T0}, v250")
    a(f"s_mul_i32 s{T0}, s{sCH}, 3072"); a(f"s_add_u32 s{T0}, s{T0}, {XCH}"); a("v_lshlrev_b32 v251, 3, v1"); a(f"v_add_u32 v251, s{T0}, v251")

def ffn_pairs(m, rr, D):
    e = []
    prs = [ACC + 4*(6*rr + 2*m + hh) + 2*q for hh in range(2) for q in range(2)]
    T = [16 + 2*k for k in range(4)]
    for k in range(4): e.append(f"v_pk_mul_f32 {vr(T[k],2)}, {vr(prs[k],2)}, s[0:1] op_sel_hi:[1,0]")
    for k in range(4):
        e.append(f"v_exp_f32 v{T[k]}, v{T[k]}"); e.append(f"v_exp_f32 v{T[k]+1}, v{T[k]+1}")
    U = [24 + 2*k for k in range(4)]
    for k in range(4): e.append(f"v_pk_fma_f32 {vr(U[k],2)}, {vr(T[k],2)}, 0.5, 1.0 op_sel_hi:[1,0,0]")
    for k in range(4): e.append(f"v_pk_fma_f32 {vr(U[k],2)}, {vr(U[k],2)}, {vr(T[k],2)}, 1.0 op_sel_hi:[1,1,0]")
    for k in range(4):
        e.append(f"v_rcp_f32 v{U[k]}, v{U[k]}"); e.append(f"v_rcp_f32 v{U[k]+1}, v{U[k]+1}")
    for k in range(4): e.append(f"v_pk_fma_f32 {vr(prs[k],2)}, {vr(prs[k],2)}, {vr(U[k],2)}, {vr(prs[k],2)} neg_lo:[1,0,0] neg_hi:[1,0,0]")
    for k in range(4): e.append(f"v_cvt_pk_bf16_f32 v{D+k}, v{prs[k]}, v{prs[k]+1}")
    return e

def ffn_epilogue(nunits):
    e = []
    for m in range(nunits):
        for rr in range(4):
            D = 32 + 4*(rr & 1)
            e += ffn_pairs(m, rr, D)
            e.append(f"buffer_store_dwordx4 {vr(D,4)}, v250, s[32:35], s{T6} offen offset:{rr*1024} sc1")
        e.append(f"s_add_u32 s{T6}, s{T6}, {AWS_U}")
    return e

def ffn_consts(a):
    a(f"s_mov_b32 s0, {LOG2E}"); a(f"s_mov_b32 s1, {LOG2E}")
    a(f"s_mul_i32 s{T6}, s{sCH}, 3"); a(f"s_add_u32 s{T6}, s{T6}, s{sU0}"); a(f"s_add_u32 s{T6}, s{T6}, 16"); a(f"s_mul_i32 s{T6}, s{T6}, {AWS_U}")
    a(f"s_lshl_b32 s{T0}, s{sRB}, 3"); a(f"s_lshl_b32 s{T1}, s{sRH}, 2"); a(f"s_add_u32 s{T0}, s{T0}, s{T1}"); a(f"s_lshl_b32 s{T0}, s{T0}, 10")
    a("v_lshlrev_b32 v250, 4, v1"); a(f"v_add_u32 v250, s{T0}, v250")

def gate_store(a):
    a("v_cmp_eq_u32 s[68:69], 0, v1")
    a("s_nop 1")
    a("s_and_saveexec_b64 s[66:67], s[68:69]")
    a(f"buffer_store_dwordx2 {vr(GR,2)}, v{vGST}, s[36:39], 0 offen sc1")
    a("s_mov_b64 exec, s[66:67]")

NB1 = 9
def weave(a, main, inserts):
    ins = {}
    for p, l in inserts: ins.setdefault(min(p, len(main)-1), []).extend(l)
    for i, x in enumerate(main):
        a(x)
        for y in ins.get(i, []): a(y)

def dma_inserts(dmas, lo, hi):
    out = []
    for k, (m, l) in enumerate(dmas):
        p = int(lo + 2 + k * (hi - lo - 2) / len(dmas))
        out.append((p - 2, m)); out.append((p, l))
    return out

def b_copy(steps):
    tr = [60, 61, 62, 63]; out = []; last = None
    for st in steps:
        sb = b_base(st)[0]
        if sb != last: out += b_addr(st, tr)
        last = sb
        out += b_reads(st, 16*st, tr)
    return out

def is_vmem(x): return x.startswith("buffer_") or x.startswith("global_")
def resolve_waits(flat, init):
    out = []
    for i, x in enumerate(flat):
        if x.startswith("@wait"):
            tag = x.split()[1]
            pos = [j for j in range(i) if flat[j].endswith("; " + tag)]
            n = sum(1 for y in flat[pos[-1]+1:i] if is_vmem(y)) if pos else init[tag] + sum(1 for y in flat[:i] if is_vmem(y))
            out.append(f"s_waitcnt vmcnt({n})")
        else: out.append(x)
    return out
def weave_list(main, inserts):
    ins = {}
    for p, l in inserts: ins.setdefault(min(p, len(main)-1), []).extend(l)
    out = []
    for i, x in enumerate(main):
        out.append(x); out += ins.get(i, [])
    return out
def tag_last(dmas, tag):
    m, l = dmas[-1]
    return dmas[:-1] + [(m, [l[0] + " ; " + tag] + l[1:])]

def staged_epilogue(a, e, rest, P):
    n = len(e)
    r2 = []
    for st in range(NB1, 16): r2 += b_dma(st)
    ins = dma_inserts(tag_last(rest, "R1"), 0, P["r1"])
    ins.append((P["w1"], ["@wait S5"]))
    cp = b_copy(range(0, 6))
    for k, x in enumerate(cp): ins.append((P["w1"] + 1 + int(k * (P["c1"] - P["w1"] - 1) / len(cp)), [x]))
    ins.append((P["c1"] + 2, ["s_waitcnt lgkmcnt(0)"]))
    k2 = P["n2"]; assert k2 <= 24
    ins += dma_inserts(r2[:k2], P["c1"] + 3, P["d2"])
    ins.append((P["w2"], ["@wait R1"]))
    cp = b_copy(range(6, 9))
    for k, x in enumerate(cp): ins.append((P["w2"] + 1 + int(k * (P["c2"] - P["w2"] - 1) / len(cp)), [x]))
    assert P["c2"] < n
    flat = resolve_waits(weave_list(e, ins), {"S5": OPT.get("b7", 8) + 1})
    for x in flat: a(x)
    return r2[k2:]

def count_vmem(lines): return sum(1 for x in lines if x.startswith("buffer_") or x.startswith("global_"))

def epilogue_with_staging(a, R, e, rest, frac):
    n = len(e)
    p_r1, p_cp0, p_cp1, p_bar = frac[0], int(n*frac[1]), int(n*frac[2]), int(n*frac[3])
    assert count_vmem(e[:p_r1+1]) == 0
    ins = dma_inserts(rest, 0, p_r1)
    later = count_vmem(e[:p_cp0+1])
    ins.append((p_cp0, [f"s_waitcnt vmcnt({later})"]))
    cp = round1_copy()
    for k, x in enumerate(cp): ins.append((p_cp0 + int(k * (p_cp1 - p_cp0) / len(cp)), [x]))
    ins.append((p_bar, ["s_waitcnt lgkmcnt(0)", "s_barrier"]))
    r2 = []
    for st in range(NB1, 16): r2 += b_dma(st)
    k2 = OPT.get(R + "r2", 10)
    ins += dma_inserts(r2[:k2], p_bar + 1, n - 1)
    weave(a, e, ins)
    return r2[k2:]

def w_offsets(a, R):
    RS, SEG = (3072, 1024) if R == "att" else (2752, 128)
    a(f"v_mul_u32_u24 v7, {RS}, v4")
    a("v_and_b32 v8, 1, v2"); a("v_lshlrev_b32 v8, 1, v8"); a("v_xor_b32 v8, v8, v5"); a("v_xor_b32 v9, 4, v8")
    a("v_lshl_add_u32 v10, v8, 4, v7"); a("v_lshl_add_u32 v11, v9, 4, v7")
    a(f"s_mul_i32 s{T0}, s{sW_}, 6"); a(f"s_lshr_b32 s{T1}, s{T0}, 3"); a(f"s_and_b32 s{T0}, s{T0}, 7")
    a(f"s_mul_i32 s{T1}, s{T1}, {SEG}"); a(f"s_mul_i32 s{T0}, s{T0}, {8*RS}"); a(f"s_add_u32 s{T0}, s{T0}, s{T1}")
    a(f"s_lshl_b32 s{T1}, s{sGRP if R == 'att' else sU0}, {7 if R == 'att' else 6}"); a(f"s_add_u32 s{T0}, s{T0}, s{T1}")
    a(f"s_mov_b32 s{T1}, {8*RS}"); a(f"s_mov_b32 s{T4}, {SEG - 56*RS}")
    a(f"s_cmp_eq_u32 s{sW_}, 1"); a(f"s_cselect_b32 s{T2}, s{T4}, s{T1}")
    a(f"s_cmp_eq_u32 s{sW_}, 2"); a(f"s_cselect_b32 s{T3}, s{T4}, s{T1}")
    for j in range(6):
        a(f"v_add_u32 v{WO+j}, s{T0}, v{10 + (j&1)}")
        if j < 5: a(f"s_add_u32 s{T0}, s{T0}, s{ {1: T2, 3: T3}.get(j, T1) }")
    if R == "ffn":
        a(f"s_cmp_ge_u32 s{sGRP}, 3"); a(f"s_cselect_b32 s{T0}, s{sRH}, 0"); a(f"s_cmp_eq_u32 s{T0}, 1"); a("s_cbranch_scc0 Lffn_woffdone")
        a("v_lshrrev_b32 v12, 2, v8"); a("v_lshlrev_b32 v12, 30, v12"); a("v_xor_b32 v13, 0x40000000, v12")
        for j in (4, 5): a(f"v_add_u32 v{WO+j}, v{WO+j}, v{12 + (j&1)}")
        a(f"s_cmp_eq_u32 s{sW_}, 3"); a("s_cbranch_scc0 Lffn_woffdone")
        for j in range(4): a(f"v_add_u32 v{WO+j}, v{WO+j}, v{12 + (j&1)}")
        a.label("Lffn_woffdone")
    p = 6 if R == "att" else 12
    a(f"s_mov_b32 s20, s{p}"); a(f"s_and_b32 s21, s{p+1}, 0xffff"); a(f"s_mov_b32 s22, {512*RS}"); a("s_mov_b32 s23, 0x00020000")
    a(f"s_mov_b32 s{sRS64}, {64*RS}"); a(f"s_mul_i32 s{sKW}, s{T6}, {64*RS}")

def misc_setup(a, R):
    j16 = (8 if R == "ffn" else 0)
    a(f"s_add_u32 s{T2}, s{sGRP}, {j16}"); a(f"s_lshl_b32 s{T2}, s{T2}, 3")
    a(f"s_lshl_b32 s{T1}, s{sRB}, 7"); a(f"s_add_u32 s{T2}, s{T2}, s{T1}")
    a(f"s_lshl_b32 s{T1}, s{sW_}, 1"); a(f"s_add_u32 s{T0}, s{T2}, s{T1}")
    a(f"s_lshl_b32 s{T1}, s{T0}, 10"); a(f"s_lshl_b32 s{T0}, s{T0}, 2")
    a("v_lshlrev_b32 v5, 4, v1"); a(f"v_add_u32 v4, s{T1}, v5"); a(f"v_mov_b32 v{vGST}, s{T0}")
    a(f"s_add_u32 s{T2}, s{T2}, {FLAG_OFF}"); a(f"s_lshl_b32 s{T1}, s{sRB}, 4")
    a("v_cmp_eq_u32 s[28:29], 0, v0"); a("v_mov_b32 v7, 0x40000000")
    a(f"v_mov_b32 v8, s{T2}"); a(f"v_mov_b32 v{vCLR}, s{T1}")
    a(f"v_cndmask_b32 v{vFLG}, v7, v8, s[28:29]")
    a(f"s_add_u32 s36, s10, {G_OFF}"); a("s_addc_u32 s37, s11, 0"); a("s_and_b32 s37, s37, 0xffff")
    a("s_mov_b32 s38, 32768"); a("s_mov_b32 s39, 0x00020000")
    a("v_mov_b32 v7, 0")
    a(f"buffer_store_dword v7, v{vFLG}, s[36:39], 0 offen sc1")
    a(f"s_cmp_eq_u32 s{sW_}, 0"); a("s_cselect_b64 s[4:5], 1, 0")
    srd(a, 28, 46, 1024)
    if R == "ffn":
        srd(a, 24, 14, 2752)
        a(f"s_lshl_b32 s{T0}, s{sU0}, 6"); a(f"s_mul_i32 s{T1}, s{sCH}, 192"); a(f"s_add_u32 s{T0}, s{T0}, s{T1}")
        a("v_lshlrev_b32 v6, 3, v2"); a(f"v_add_u32 v6, s{T0}, v6")

def phase1_role(a, R):
    if R == "ffn":
        a(f"s_mul_i32 s{sU0}, s{sGRP}, 6"); a(f"s_mul_i32 s{T0}, s{sGRP}, 5"); a(f"s_add_u32 s{T0}, s{T0}, 3")
        a(f"s_cmp_le_u32 s{sGRP}, 3"); a(f"s_cselect_b32 s{sU0}, s{sU0}, s{T0}")
    a(f"s_lshl_b32 s{T5}, s{sRB}, 17")
    if R == "att": a(f"s_sub_u32 s{T5}, s{T5}, 16384")
    a(f"s_lshl_b32 s{T0}, s{sW_}, 15"); a(f"s_add_u32 s{T0}, s{T0}, s{T5}")
    if R == "att":
        a(f"s_cmp_lt_i32 s{T0}, 0"); a(f"s_cselect_b32 s{T1}, 16384, 0"); a(f"s_add_u32 s{T1}, s{T1}, s{T0}")
    for j in range(4):
        src = T1 if (j < 2 and R == "att") else T0
        if j: a(f"s_add_u32 s{T2}, s{src}, {8192*j}")
        a(f"v_add_u32 v{XO+j}, s{T2 if j else src}, v{8 + (j&1)}")
    if R == "att":
        a(f"s_lshl_b32 s{T0}, s{sW_}, 13"); a(f"s_add_u32 s{T0}, s{T0}, s{T5}"); a(f"s_add_u32 s{T0}, s{T0}, {128*1024}")
        a(f"s_lshl_b32 s{T1}, s{sCH}, 6"); a(f"v_xor_b32 v10, s{T1}, v8"); a(f"v_add_u32 v{XO+4}, s{T0}, v10")
    a("s_waitcnt lgkmcnt(0)")
    stamp(a, 1)
    srd(a, 16, 4, 2048*1024)
    emit_pairs(a, all_x(R, sCUR))
    w_offsets(a, R)
    emit_pairs(a, all_w(sCUR))
    misc_setup(a, R)
    a(f"buffer_load_dwordx4 {vr(GX,4)}, v4, s[16:19], 0 offen"); a(f"buffer_load_dwordx4 {vr(GX+4,4)}, v4, s[16:19], 0 offen offset:1024")
    a(f"buffer_load_dwordx4 {vr(GW,4)}, v5, s[28:31], 0 offen")
    if R == "ffn":
        for tt in range(6): a(f"buffer_load_dwordx2 {vr(BIAS+2*tt,2)}, v6, s[24:27], 0 offen offset:{tt*32}")
    late = chunks(capture(late_setup, R))
    pieces = all_x(R, sNXT)
    per = -(-len(late) // (len(pieces) + 1)); k = 0
    for m, l in pieces:
        for ch in late[k:k+per]:
            for x in ch: a(x)
        k += per
        for x in m: a(x)
        a("s_nop 0")
        for x in l: a(x)
    for ch in late[k:]:
        for x in ch: a(x)
    stamp(a, 2)
    for x in addr_set(R, 0, sCUR) + addr_set(R, 1, sCUR): a(x)
    (att_consts if R == "att" else ffn_consts)(a)
    a("s_waitcnt vmcnt(4)")
    a("s_barrier")
    stamp(a, 3)
    if R == "att":
        a(f"s_cmp_eq_u32 s{sRH}, 0"); a("s_cbranch_scc0 Latt1")
        main_and_epilogue(a, "att0"); a("s_branch Latt_join")
        a.label("Latt1")
        main_and_epilogue(a, "att1")
        a.label("Latt_join")
    else:
        main_and_epilogue(a, "ffn")
    phase1_tail(a, R)

def main_and_epilogue(a, R):
    for x in p1_reads(R, 0, 0): a(x)
    if R == "ffn":
        for tt in range(6):
            for q in range(2):
                a(f"v_lshlrev_b32 v{bias_reg(tt,2*q)}, 16, v{BIAS+2*tt+q}")
                a(f"v_and_b32 v{bias_reg(tt,2*q+1)}, 0xffff0000, v{BIAS+2*tt+q}")
    a("s_waitcnt lgkmcnt(0)")
    istamp(a, 1)
    g = gate_instrs()
    body(a, R, all_w(sNXT) + all_x(R, sPRV), all_w(sPRV) + all_x(R, sCUR), 4, first=True, noadv=True, x1=g[:22], x2=g[22:])
    istamp(a, 2)
    ack = [["v_mov_b32 v7, 1", "s_and_saveexec_b64 s[6:7], s[4:5]", "s_cbranch_execz 2f", f"global_atomic_add v{vCLR}, v7, s[50:51] sc1", "2:", "s_mov_b64 exec, s[6:7]"]]
    body(a, R, all_w(sPRV), h1(R, sCUR), 10, x2=ack if R != "att1" else [])
    if OPT.get("iter"):
        for it in range(2, 5):
            istamp(a, 1 + it)
            body(a, R, h2(R, sPRV), h1(R, sCUR), 10)
    else:
        a(f"s_mov_b32 s{sLOOP}, 2")
        a.label(f"L{R}_loop")
        body(a, R, h2(R, sPRV), h1(R, sCUR), 10, loop=(f"L{R}_loop", 5))
    istamp(a, 6)
    bd = []
    for st in range(NB1): bd += b_dma(st)
    n = OPT.get("bper", 6)
    assert 4*n <= 24 and 3*n <= 24 and 2*n <= 16
    body(a, R, h2(R, sPRV), [], 10, dx2=bd[:n])
    istamp(a, 7)
    body(a, R, [], [], 2*n, dx1=bd[n:2*n], dx2=bd[2*n:3*n])
    istamp(a, 8)
    n7 = OPT.get("b7", 8) if R == "ffn" else OPT.get("b7att", 8)
    body(a, R, [], [], 0, last=True, dx1=bd[3*n:4*n], dx2=bd[4*n:4*n+n7])
    rest = bd[4*n+n7:]
    istamp(a, 9)
    if INSTR and OPT.get("epist"): a(f"s_memtime s[74:75]")
    stamp(a, 4)
    a("global_load_dword v64, v43, s[50:51] sc1")
    a.nop(8)
    if isatt(R):
        weave(a, att_epilogue(R), dma_inserts(rest, OPT.get('attd0', 120), OPT.get('attd1', 160)))
    else:
        e = ffn_epilogue(3); k = 2*len(e)//3
        weave(a, e[:k], dma_inserts(rest, 0, 30))
        a(f"s_cmp_ge_u32 s{sGRP}, 3"); a(f"s_cselect_b32 s{T0}, s{sCH}, 0"); a(f"s_cmp_eq_u32 s{T0}, 1"); a("s_cbranch_scc1 Lffn_done")
        for x in e[k:]: a(x)
        a.label("Lffn_done")

def phase1_tail(a, R):
    gate_store(a)
    p2_pre(a)
    if INSTR and OPT.get("epist"): a(f"s_memtime s[88:89]")
    istamp(a, 10)
    stamp(a, 5)
    a(f"s_waitcnt vmcnt({5 if R == 'att' else 9})")
    for x in b_copy(range(0, NB1)): a(x)
    a("s_waitcnt lgkmcnt(0)")
    r2 = []
    for st in range(NB1, 16): r2 += b_dma(st)
    npre = OPT.get("r2pre", 4)
    emit_pairs(a, r2[:npre])
    a(f"s_waitcnt vmcnt({npre})")
    a("s_barrier")
    a("v_mov_b32 v5, 1")
    a(f"buffer_store_dword v5, v{vFLG}, s[36:39], 0 offen sc1")
    stamp(a, 6)
    if R == "att": a("s_branch Lphase2")

JR = [2, 3, 14, 15]
def p2_pre(a):
    a(f"v_mov_b32 v0, v{vOUT}")
    a("v_lshlrev_b32 v4, 4, v1"); a(f"s_lshl_b32 s{T1}, s{sRB2}, 12")
    for tau in range(4):
        a(f"s_add_u32 s{T0}, s{sW_}, {tau}"); a(f"s_and_b32 s{T0}, s{T0}, 3"); a(f"s_lshl_b32 s{T0}, s{T0}, 10"); a(f"s_add_u32 s{T0}, s{T0}, s{T1}")
        a(f"v_add_u32 v{8+tau}, s{T0}, v4")
    srd(a, 16, 48, 2048*1024)

def late_setup(a, R):
    a("v_lshrrev_b32 v7, 1, v3")
    a(f"s_lshl_b32 s{T0}, s{sRH}, 13") if R == "ffn" else a(f"s_mov_b32 s{T0}, 0")
    for h in range(2):
        a(f"v_or_b32 v8, {4*h}, v2"); a("v_xor_b32 v8, v8, v7"); a("v_lshlrev_b32 v8, 4, v8")
        a("v_lshl_add_u32 v8, v3, 7, v8"); a(f"v_add_u32 v{XB+h}, s{T0}, v8")
    a("v_bfe_u32 v7, v1, 2, 2"); a("v_and_b32 v8, 3, v1")
    a("v_lshl_add_u32 v9, v2, 3, v7"); a("v_lshlrev_b32 v9, 7, v9")
    a("v_and_b32 v10, 1, v8"); a("v_lshl_add_u32 v9, v10, 3, v9")
    a("v_and_b32 v10, 2, v7"); a("v_and_b32 v11, 1, v2"); a("v_lshl_or_b32 v10, v11, 2, v10")
    a("v_lshrrev_b32 v11, 1, v8"); a("v_xor_b32 v10, v10, v11")
    if R == "att":
        for t in range(2):
            a(f"s_lshl_b32 s{T0}, s{sCH}, 2"); a(f"s_add_u32 s{T0}, s{T0}, {2*t}")
            a(f"v_xor_b32 v11, s{T0}, v10"); a("v_lshl_add_u32 v11, v11, 4, v9"); a(f"v_add_u32 v{WB+t}, {WOFF}, v11")
    else:
        for t in range(6):
            a(f"s_mul_i32 s{T0}, s{sCH}, 6"); a(f"s_add_u32 s{T0}, s{T0}, {t}")
            a(f"s_lshr_b32 s{T1}, s{T0}, 2"); a(f"s_and_b32 s{T0}, s{T0}, 3"); a(f"s_lshl_b32 s{T0}, s{T0}, 1")
            a(f"s_lshl_b32 s{T1}, s{T1}, 13"); a(f"s_add_u32 s{T1}, s{T1}, {WOFF}")
            a(f"v_xor_b32 v11, s{T0}, v10"); a("v_lshl_add_u32 v11, v11, 4, v9"); a(f"v_add_u32 v{WB+t}, s{T1}, v11")
    srd(a, 32, 10, 59*AWS_U)
    p2_scalar_setup(a)
    a("v_lshrrev_b32 v7, 3, v1"); a("v_and_b32 v8, 7, v1"); a("v_lshlrev_b32 v9, 1, v2"); a("v_xor_b32 v8, v8, v9")
    a("v_lshlrev_b32 v8, 4, v8"); a("v_lshl_add_u32 v7, v7, 10, v8"); a(f"s_lshl_b32 s{T0}, s{sCT2}, 7"); a(f"v_add_u32 v{vBD}, s{T0}, v7")
    a("v_bfe_u32 v7, v1, 2, 2"); a("v_and_b32 v8, 3, v1")
    a("v_lshl_add_u32 v9, v2, 2, v7"); a("v_bfe_u32 v10, v9, 1, 2"); a("v_lshlrev_b32 v10, 1, v10")
    a("v_lshlrev_b32 v9, 7, v9"); a("v_and_b32 v11, 1, v8"); a("v_lshl_add_u32 v9, v11, 3, v9")
    a("v_lshrrev_b32 v11, 1, v8"); a("v_xor_b32 v10, v10, v11")
    for c in range(4):
        a(f"v_xor_b32 v11, {2*c}, v10"); a(f"v_lshl_add_u32 v{vBF+c}, v11, 4, v9")
    a(f"s_lshr_b32 s{T0}, s{sRB2}, 1"); a(f"s_lshl_b32 s{T0}, s{T0}, 4"); a(f"v_mov_b32 v43, s{T0}")
    a(f"s_lshl_b32 s{T0}, s{sRB2}, 2"); a(f"s_add_u32 s{T0}, s{T0}, s{sW_}"); a(f"s_lshl_b32 s{T0}, s{T0}, 6")
    a("v_lshlrev_b32 v7, 2, v3"); a(f"v_add_u32 v{vGRD}, s{T0}, v7")
    a(f"s_lshl_b32 s{T0}, s{T0}, 8"); a(f"s_lshl_b32 s{T1}, s{sCT2}, 7"); a(f"s_add_u32 s{T0}, s{T0}, s{T1}")
    a("v_and_b32 v7, 1, v2"); a("v_lshlrev_b32 v7, 5, v7"); a("v_lshrrev_b32 v8, 1, v2"); a("v_lshl_add_u32 v7, v8, 4, v7")
    a("v_lshl_add_u32 v7, v3, 10, v7"); a(f"v_add_u32 v{vOUT}, s{T0}, v7")

RED = 114688
def phase2(a):
    ACC2, AR, NR, DEP = 16, 80, 6, OPT.get('dep', 4)
    JIT = [144, 160]
    a.label("Lphase2")
    assert OPT.get("r2pre", 4) <= 20
    r2 = []
    for st in range(NB1, 14): r2 += b_dma(st)
    emit_pairs(a, r2[OPT.get("r2pre", 4):])
    for st in (14, 15):
        a(f"s_cmp_gt_u32 s{sN2}, {st}"); a("s_cbranch_scc0 Lp2_nomore")
        emit_pairs(a, b_dma(st))
    a.label("Lp2_nomore")
    a(f"s_lshr_b32 s{T2}, s{sRB2}, 1"); a(f"s_lshl_b32 s{T2}, s{T2}, 7"); a(f"s_add_u32 s{T2}, s{T2}, {FLAG_OFF}")
    a("v_and_b32 v5, 15, v1"); a(f"v_lshl_add_u32 v5, v5, 3, s{T2}")
    a("v_readfirstlane_b32 s68, v64")
    a(f"s_cmp_eq_u32 s{sW_}, 0"); a("s_cbranch_scc0 Lp2_other")
    a(f"s_mov_b32 s{T1}, 0")
    a.label("Lp2_clr")
    a("s_cmp_ge_u32 s68, 16"); a("s_cbranch_scc1 Lp2_cleared")
    a("s_sleep 8")
    a("global_load_dword v64, v43, s[50:51] sc1")
    a(f"s_add_u32 s{T1}, s{T1}, 1")
    a("s_waitcnt vmcnt(0)")
    a("v_readfirstlane_b32 s68, v64")
    a(f"s_cmp_gt_u32 s{T1}, 0x100000"); a("s_cbranch_scc0 Lp2_clr")
    a.label("Lp2_cleared")
    a("buffer_load_dword v6, v5, s[36:39], 0 offen sc1")
    a("s_waitcnt vmcnt(1)")
    for x in b_copy(range(NB1, 16)): a(x)
    a("s_waitcnt vmcnt(0)")
    a("s_branch Lp2_check")
    a.label("Lp2_poll")
    a(f"s_sleep {OPT.get('sleep', 1)}")
    a("buffer_load_dword v6, v5, s[36:39], 0 offen sc1")
    a(f"s_add_u32 s{T1}, s{T1}, 1")
    a("s_waitcnt vmcnt(0)")
    a(f"s_cmp_gt_u32 s{T1}, 0x200000"); a("s_cbranch_scc1 Lp2_go")
    a.label("Lp2_check")
    a("v_cmp_ne_u32 vcc, 1, v6")
    a("s_nop 4")
    a("s_cbranch_vccnz Lp2_poll")
    a("s_branch Lp2_go")
    a.label("Lp2_other")
    a("s_waitcnt vmcnt(0)")
    for x in b_copy(range(NB1, 16)): a(x)
    a.label("Lp2_go")
    a("s_waitcnt lgkmcnt(0)")
    a("s_barrier")
    stamp(a, 7)
    def loadA(step):
        return [f"buffer_load_dwordx4 {vr(AR+16*(step%NR)+4*tau,4)}, v{8+tau}, s[28:31], s{T0 + (step & 1)} offen sc1" for tau in (1, 2, 3, 0)]
    a(f"buffer_load_dword v12, v{vGRD}, s[36:39], 0 offen sc1")
    for st in range(DEP):
        for x in next_step(sUA, T0 + (st & 1), AWS_U, st): a(x)
        for x in loadA(st): a(x)
    NS = 16
    pre = []
    pre.append(["v_lshlrev_b32 v4, 4, v1", f"v_add_u32 v4, {RED}, v4"])
    for tau in range(1, 4):
        pre.append([f"s_add_u32 s{T2}, s{sW_}, {tau}", f"s_and_b32 s{T2}, s{T2}, 3", f"s_mul_i32 s{T2}, s{T2}, 12288", f"v_add_u32 v{175+tau}, s{T2}, v4"])
    pre.append([f"s_mul_i32 s{T2}, s{sW_}, 12288", f"v_add_u32 v179, s{T2}, v4"])
    pre.append(["v_sub_f32 v13, 1.0, v12"])
    for k in range(4):
        pre.append([f"s_sub_u32 s{T2}, s{sW_}, {k}", f"s_and_b32 s{T2}, s{T2}, 3", f"s_cmp_eq_u32 s{T2}, 0", "s_cselect_b64 s[68:69], -1, 0",
                    f"v_cndmask_b32 v{180+k}, v13, v12, s[68:69]"])
    for st in range(NS):
        younger = min(st + DEP - 1, NS - 1) - st
        if st >= 14:
            a(f"s_cmp_gt_u32 s{sN2}, {st}"); a("s_cbranch_scc0 Lp2_short")
        a(f"s_waitcnt vmcnt({4*younger})")
        if st == 0: stamp(a, 8)
        bsrc = 16*st
        mf = []
        for tau in (1, 2, 3, 0):
            for c in range(4):
                d = ACC2 + 4*(4*tau + c)
                C = vr(d,4) if st > 0 else "0"
                mf.append(f"v_mfma_f32_16x16x32_bf16 {vr(d,4)}, {ar(bsrc+4*c,4)}, {vr(AR+16*(st%NR)+4*tau,4)}, {C}")
        nxt = st + 1
        rd = []
        after = [[] for _ in mf]
        for k, x in enumerate(rd): after[k].append(x)
        if st + DEP < NS:
            after[0] += next_step(sUA, T0 + ((st+DEP) & 1), AWS_U, st + DEP)
            for k, x in enumerate(loadA(st + DEP)): after[1 + 4*k].append(x)
        if 1 <= st <= 5:
            for k, ch in enumerate(pre[2*(st-1):2*st]): after[3 + 6*k] += ch
        if st == NS - 1:
            for tau in (1, 2):
                for c in range(4):
                    after[min(4*tau + 4 + c, 15)].append(f"ds_write_b128 v{175+tau}, {vr(ACC2+4*(4*tau+c),4)} offset:{(tau-1)*4096 + c*1024}")
        for m, f in zip(mf, after):
            a(m)
            for x in f: a(x)
    a.nop(2)
    a("s_branch Lp2_red")
    a.label("Lp2_short")
    a("s_waitcnt vmcnt(0)")
    a.nop(8)
    for tau in (1, 2):
        for c in range(4):
            a(f"ds_write_b128 v{175+tau}, {vr(ACC2+4*(4*tau+c),4)} offset:{(tau-1)*4096 + c*1024}")
    a.label("Lp2_red")
    stamp(a, 9)
    for c in range(4):
        a(f"ds_write_b128 v178, {vr(ACC2+4*(12+c),4)} offset:{2*4096 + c*1024}")
    for r in range(0, 16, 2): a(f"v_pk_mul_f32 {vr(ACC2+r,2)}, {vr(ACC2+r,2)}, {vr(180,2)} op_sel_hi:[1,0]")
    a("s_waitcnt lgkmcnt(0)"); a("s_barrier")
    R = 80
    for pos in range(3):
        for c in range(4):
            a(f"ds_read_b128 {vr(R+16*pos+4*c,4)}, v179 offset:{pos*4096 + c*1024}")
    for pos in range(3):
        a(f"s_waitcnt lgkmcnt({8 - 4*pos})")
        f = 181 + pos; pr = vr(f - f % 2, 2); sel = f % 2
        for r in range(0, 16, 2):
            a(f"v_pk_fma_f32 {vr(ACC2+r,2)}, {vr(R+16*pos+r,2)}, {pr}, {vr(ACC2+r,2)} op_sel:[0,{sel},0] op_sel_hi:[1,{sel},1]")
    for c in range(4):
        a(f"v_cvt_pk_bf16_f32 v{32+2*c}, v{ACC2+4*c}, v{ACC2+4*c+1}"); a(f"v_cvt_pk_bf16_f32 v{33+2*c}, v{ACC2+4*c+2}, v{ACC2+4*c+3}")
    a("s_nop 1")
    for p in range(2):
        b = 32 + 4*p
        a(f"v_permlane16_swap_b32 v{b}, v{b+2}"); a(f"v_permlane16_swap_b32 v{b+1}, v{b+3}")
    for p in range(2):
        a(f"buffer_store_dwordx4 {vr(32+4*p,4)}, v0, s[16:19], 0 offen offset:{64*p} {['', 'sc1', 'nt', 'sc0 sc1'][OPT.get('outfl', 0)]}")
    stamp(a, 10)

def kernel():
    a = Asm()
    a(f".globl {KNAME}"); a(".p2align 8"); a(f".type {KNAME},@function"); a.label(KNAME)
    a("s_cmp_ge_u32 s2, 256"); a("s_cbranch_scc1 Lend")
    stamp(a, 0)
    a("s_load_dwordx4 s[4:7], s[0:1], 0")
    a("s_load_dwordx4 s[12:15], s[0:1], 32")
    a("s_load_dwordx4 s[44:47], s[0:1], 48")
    a("s_load_dwordx2 s[8:9], s[0:1], 16")
    a("s_load_dwordx4 s[48:51], s[0:1], 64")
    a("s_load_dwordx2 s[10:11], s[0:1], 80")
    a("v_lshrrev_b32 v4, 6, v0"); a("v_and_b32 v1, 63, v0"); a("v_lshrrev_b32 v2, 4, v1"); a("v_and_b32 v3, 15, v1")
    a(f"v_readfirstlane_b32 s{sW_}, v4")
    if OPT.get("cpf", 1):
        NL = OPT.get("cpfn", 10)
        a("s_getpc_b64 s[16:17]")
        a.label("Lpc")
        a(f"s_lshr_b32 s18, s2, 3"); a(f"s_mul_i32 s18, s18, {NL}")
        a(f"v_min_u32 v5, {NL-1}, v1"); a("v_add_u32 v5, s18, v5"); a("v_lshlrev_b32 v5, 7, v5")
        a("v_min_u32 v5, (Lend-Lpc), v5")
        a(f"s_cmp_eq_u32 s{sW_}, 0"); a("s_cbranch_scc0 Lnopf")
        a("global_load_dword v255, v5, s[16:17]")
        a.label("Lnopf")
    a(f"s_and_b32 s{T2}, s2, 4"); a(f"s_lshl_b32 s{sRB}, s{T2}, 1"); a(f"s_lshr_b32 s{T4}, s2, 5"); a(f"s_add_u32 s{sRB}, s{sRB}, s{T4}")
    a(f"s_and_b32 s{T3}, s2, 3"); a(f"s_lshl_b32 s{T3}, s{T3}, 1")
    a(f"s_bfe_u32 s{T5}, s2, 0x10003"); a(f"s_add_u32 s{sGRP}, s{T3}, s{T5}")
    a(f"s_bfe_u32 s{sTYPE}, s2, 0x10004")
    a(f"s_and_b32 s{T4}, s{T4}, 3"); a(f"s_add_u32 s{T4}, s{T4}, s{T2}"); a(f"s_add_u32 s{T4}, s{T4}, s{sGRP}"); a(f"s_and_b32 s{T6}, s{T4}, 7")
    a(f"s_lshr_b32 s{sRH}, s{sW_}, 1"); a(f"s_and_b32 s{sCH}, s{sW_}, 1")
    a(f"s_lshl_b32 s{sKX}, s{T6}, 7")
    a(f"s_lshl_b32 s{sXD}, s{sW_}, 12"); a(f"s_add_u32 s{sXE}, s{sW_}, 16"); a(f"s_lshl_b32 s{sXE}, s{sXE}, 10")
    a(f"s_mul_i32 s{sWD}, s{sW_}, 6144"); a(f"s_add_u32 s{sWD}, s{sWD}, {WOFF}")
    a(f"s_mov_b32 s{sCUR}, 0"); a(f"s_mov_b32 s{sNXT}, {STAGE}"); a(f"s_mov_b32 s{sPRV}, {2*STAGE}")
    a("v_lshrrev_b32 v4, 3, v1"); a("v_and_b32 v5, 7, v1"); a("v_xor_b32 v6, v5, v2")
    a("v_lshlrev_b32 v7, 10, v4"); a("v_lshl_add_u32 v8, v6, 4, v7"); a("v_xor_b32 v9, 64, v8")
    a(f"s_cmp_eq_u32 s{sTYPE}, 0"); a("s_cbranch_scc0 Lffn")
    phase1_role(a, "att")
    a.label("Lffn")
    phase1_role(a, "ffn")
    phase2(a)
    stamp_flush(a)
    a.label("Lend")
    a("s_endpgm")
    return a.text()

def main(out):
    t = kernel()
    src = "; Single launch: phase 1 (QKV projection + windowed attention | FFN1 + mish, gate), per-row-block counters in d_debug,\n"
    src += "; phase 2 (output projection of both branches, blended by the gate).\n"
    src += f"; @launch grid=(256,1,1) block=(256,1,1) lds={LDS_BYTES}\n"
    src += '.amdgcn_target "amdgcn-amd-amdhsa--gfx950"\n.text\n' + t + kd(KNAME, 512, 256)
    open(out, "w").write(src)

if __name__ == "__main__":
    if "--instr" in sys.argv: INSTR = True; sys.argv.remove("--instr")
    for x in list(sys.argv):
        if x.startswith("--"):
            sys.argv.remove(x); k, _, v = x[2:].partition("="); OPT[k] = int(v) if v else 1
    AWS_U = 131072 + OPT.get("skew", 0)
    main(sys.argv[1] if len(sys.argv) > 1 else "cdna_kernels/" + NAME + ".s")
```

```python
import sys
from asmlib import *

NAME = "gated_mix__sliding_local_dilated__dense_activation_mish__prompt"
KNAME = NAME + "_kernel"
LOG2E = 0x3fb8aa3b
STAGE = 43008
WOFF = 18432
AWS_U = 131072
G_OFF = 8 << 20
LDS_BYTES = 163840
GA, GB, GC, GC2, R2 = 86016, 0, 43008, 86016 + 16*4096, 28672
INSTR = False
OPT = {"p2b": 2, "r2pre": 0, "rmode": 1, "rot2": 3, "qa": 2, "qm": 7, "qb": 0}
STAMP_OFF = 16 << 20
NST = 12

sW_, sRB, sTYPE, sGRP = 40, 41, 42, 43
sRH, sCH, sBUF, sFREE, sXD, sXE, sWD, sKX, sKW, sKW2, sRS64, sIT, sU0 = range(52, 65)
T0, T1, T2, T3, T4, T5, T6 = range(65, 72)
XO, WO, XB, WB, XA, WA = 16, 21, 27, 29, 35, 37
WA1 = 208
GX, GW, GR, BIAS = 44, 52, 56, 58
vFLG, vCLR = 94, 95
FLAG_OFF = 16384
vGST, vBD, vBF, vAO, vGRD, vOUT = 86, 87, 88, 208, 92, 93
ACC = 96
BF32 = 70
SET = [0, 44]

def srd(a, s, ptr, size):
    a(f"s_mov_b32 s{s}, s{ptr}")
    a(f"s_and_b32 s{s+1}, s{ptr+1}, 0xffff")
    a(f"s_mov_b32 s{s+2}, {size}")
    a(f"s_mov_b32 s{s+3}, 0x00020000")

def istamp(a, k):
    if INSTR and OPT.get("iter"): a(f"{'s_memtime' if OPT.get('cyc') else 's_memrealtime'} s[{72+2*k}:{73+2*k}]")
def stamp(a, k):
    if OPT.get("iter") and k not in (0, NST-1): return
    if INSTR: a(f"{'s_memtime' if OPT.get('cyc') else 's_memrealtime'} s[{72+2*k}:{73+2*k}]")
def stamp_flush_dbg(a):
    a("s_waitcnt vmcnt(0) lgkmcnt(0)")
    stamp(a, NST-1)
    a("s_waitcnt lgkmcnt(0)")
    a(f"s_cmp_eq_u32 s{sW_}, 0"); a("s_cbranch_scc0 Ldbg_done")
    a("v_cmp_eq_u32 vcc, 0, v1"); a("s_and_saveexec_b64 s[28:29], vcc")
    slots = [1,2,3,5,6,7,9,10,11,13,14,15]
    order = [0, 0, 1, 3, 4, 5, 6, 7, 8, 9, 10, 11]
    for k, (sl, stp) in enumerate(zip(slots, order)):
        a(f"v_mov_b32 v2, s{72+2*stp}")
        if k == 0: a("v_not_b32 v2, v2")
        a(f"v_mov_b32 v3, {4*sl}")
        a("global_atomic_umax v3, v2, s[50:51]")
    a("s_mov_b64 exec, s[28:29]")
    a.label("Ldbg_done")
def stamp_flush(a):
    if not INSTR: return
    if OPT.get("dbg"): return stamp_flush_dbg(a)
    a("s_waitcnt vmcnt(0) lgkmcnt(0)")
    stamp(a, NST-1)
    a("s_waitcnt lgkmcnt(0)")
    a(f"s_add_u32 s24, s10, {STAMP_OFF}"); a("s_addc_u32 s25, s11, 0"); a("s_and_b32 s25, s25, 0xffff")
    a("s_mov_b32 s26, 65536"); a("s_mov_b32 s27, 0x00020000")
    a(f"s_lshl_b32 s{T0}, s2, 8"); a(f"s_lshl_b32 s{T1}, s{sW_}, 6"); a(f"s_add_u32 s{T0}, s{T0}, s{T1}")
    a(f"v_mov_b32 v0, s{T0}")
    a("v_cmp_eq_u32 vcc, 0, v1"); a("s_and_saveexec_b64 s[28:29], vcc")
    for k in range(NST):
        a(f"v_mov_b32 v2, s{72+2*k}"); a(f"buffer_store_dword v2, v0, s[24:27], 0 offen offset:{4*k}")
    a("s_mov_b64 exec, s[28:29]")

def bias_reg(ct, r):
    k = 4*ct + r
    return (BF32 + k) if k < 16 else (8 + k - 16)

def p1_reads(role, st, h):
    base = SET[st]
    nx = 5 if role == "att" else 4
    w = []
    for tt in range(6):
        off = h * 4096 + ((tt >> 1) * 8192 if role == "att" else 0)
        r = base + 20 + 4 * tt; ad = (WA if h == 0 else WA1) + (tt & 1 if role == "att" else tt)
        w.append(f"ds_read_b64_tr_b16 {ar(r,2)}, v{ad} offset:{off}")
        w.append(f"ds_read_b64_tr_b16 {ar(r+2,2)}, v{ad} offset:{off+512}")
    x = [f"ds_read_b128 {ar(base+4*t,4)}, v{XA+h} offset:{t*2048}" for t in range(nx)]
    if role == "att":
        return [w[4], w[5], x[0], x[1], x[2], w[6], w[7], x[3], x[4], w[0], w[1], w[2], w[3]] + w[8:]
    return [w[0], w[1], x[0], x[1], x[2], x[3]] + w[2:]

def p1_mfmas(role, st, first=False):
    base = SET[st]; X = lambda t: ar(base + 4*t, 4); W = lambda t: ar(base + 20 + 4*t, 4)
    out = []
    def m(c, A, B, cin=None):
        C = vr(c,4) if not first else cin
        out.append(f"v_mfma_f32_16x16x32_bf16 {vr(c,4)}, {A}, {B}, {C}")
    if role == "att":
        for a_ in range(2):
            for t in range(5): m(ACC + 4*(8 + 2*t + a_), W(2+a_), X(t), "0")
        for a_ in range(2):
            for t in range(1, 5): m(ACC + 4*(2*(t-1) + a_), W(a_), X(t), "0")
        for a_ in range(2):
            for t in range(5): m(ACC + 4*(18 + 2*t + a_), X(t), W(4+a_), "0")
    else:
        for ct in range(6):
            for rt in range(4): m(ACC + 4*(6*rt + ct), W(ct), X(rt), vr(bias_reg(ct,0), 4))
    return out

def dma_x(role, bufreg):
    g = []
    if role == "att":
        g.append(([f"s_add_u32 m0, s{bufreg}, s{sXE}"],
                  [f"s_cmp_eq_u32 s{sXF}, 1", "s_cbranch_scc0 1f", f"buffer_load_dwordx4 v{XO+4}, s[16:19], s{sKX} offen lds", "1:"]))
    for j in range(4):
        m = f"s_add_u32 m0, s{bufreg}, s{sXD}" if j == 0 else "s_add_u32 m0, m0, 1024"
        g.append(([m], [f"buffer_load_dwordx4 v{XO+j}, s[16:19], s{sKX} offen lds"]))
    return g
def dma_w(bufreg, js, sw):
    g = []
    for k, j in enumerate(js):
        if k == 0: m = [f"s_add_u32 m0, s{bufreg}, s{sWD}"] + ([f"s_add_u32 m0, m0, {1024*j}"] if j else [])
        else: m = ["s_add_u32 m0, m0, 1024"]
        g.append((m, [f"buffer_load_dwordx4 v{WO+j}, s[20:23], s{sw} offen lds"]))
    return g
def h1(role, buf): return dma_x(role, buf) + dma_w(buf, [0], sKW)
def h2(role, buf, sw=None): return dma_w(buf, [1,2,3,4,5], sKW2 if sw is None else sw)

SCC_READ = ("s_cselect", "s_cbranch_scc", "s_addc", "s_subb")
SCC_WRITE = ("s_cmp", "s_add_u32", "s_sub_u32", "s_addc", "s_subb", "s_and_b", "s_or_b", "s_xor_b", "s_lshl_b", "s_lshr_b", "s_bitcmp", "s_add_i32")
def chunks(lines):
    n = len(lines); live = [False]*(n+1)
    for i in range(n-1, -1, -1):
        x = lines[i]
        if x.startswith(SCC_READ): live[i] = True
        elif x.startswith(SCC_WRITE): live[i] = False
        else: live[i] = live[i+1]
    out = []
    for i, x in enumerate(lines):
        if out and live[i]: out[-1].append(x)
        else: out.append([x])
    return out
def capture(fn, *args):
    t = Asm(); fn(t, *args); return [x.strip() for x in t.L]

def emit_pairs(a, pairs):
    for m, l in pairs:
        for x in m: a(x)
        a("s_nop 0")
        for x in l: a(x)

def schedule(mf, reads, dmas, extra=(), dma_first=2, read_span=20, xspan=None, tail=()):
    n = len(mf); after = [[] for _ in range(n)]
    if dmas:
        step = (n - dma_first) / len(dmas)
        for k, (m, l) in enumerate(dmas):
            p = int(dma_first + k * step)
            after[max(p-1, 0)] += m
            after[p] += l
    for k, r in enumerate(reads):
        after[min(int(k * read_span / len(reads)), n-1)].insert(0, r)
    for k, x in enumerate(extra):
        lo, hi = xspan or (0, n)
        after[min(int(lo + k * (hi - lo) / len(extra)), n-1)] += (x if isinstance(x, list) else [x])
    for k, x in enumerate(tail):
        after[n - len(tail) - 1 + k] += (x if isinstance(x, list) else [x])
    out = []
    for i in range(n):
        out.append(mf[i]); out += after[i]
    return out

sPRV, sCUR, sNXT = sFREE, sBUF, sIT + 0
sNXT = 63
def addr_set(role, h, sreg):
    n = 2 if role == "att" else 6
    w = WA if h == 0 else WA1
    return [f"v_add_u32 v{XA+h}, s{sreg}, v{XB+h}"] + [f"v_add_u32 v{w+t}, s{sreg}, v{WB+t}" for t in range(n)]
def rot_instrs():
    return [[f"s_mov_b32 s{T0}, s{sPRV}", f"s_mov_b32 s{sPRV}, s{sCUR}"], [f"s_mov_b32 s{sCUR}, s{sNXT}", f"s_mov_b32 s{sNXT}, s{T0}"]]
def adv_k():
    return [f"s_add_u32 s{sKX}, s{sKX}, 128", f"s_and_b32 s{sKX}, s{sKX}, 1023",
            f"s_add_u32 s{sKW}, s{sKW}, s{sRS64}", f"s_cmp_eq_u32 s{sKW}, s22", f"s_cselect_b32 s{sKW}, 0, s{sKW}"]
def adv_x(): return [f"s_add_u32 s{sKX}, s{sKX}, 128", f"s_and_b32 s{sKX}, s{sKX}, 1023"]
def adv_w(): return [f"s_add_u32 s{sKW}, s{sKW}, s{sRS64}", f"s_cmp_eq_u32 s{sKW}, s22", f"s_cselect_b32 s{sKW}, 0, s{sKW}"]
def with_adv(pieces, adv):
    m, l = pieces[-1]
    return pieces[:-1] + [(m, l + adv)]
def all_x(role, buf): return with_adv(dma_x(role, buf), adv_x())
def all_w(buf): return with_adv(dma_w(buf, [0,1,2,3,4,5], sKW), adv_w())
def adv_instrs():
    return [[f"s_mov_b32 s{sKW2}, s{sKW}"] + adv_k()]

def gate_instrs():
    g = []
    for q in range(4):
        for row in range(2):
            g.append(f"v_dot2_f32_bf16 v{GR+row}, v{GX+4*row+q}, v{GW+q}, {'0' if q == 0 else 'v%d' % (GR+row)}")
    g += ["s_nop 0", "s_nop 0"]
    for sh in (8, 4, 2, 1):
        for row in range(2):
            g.append(f"v_add_f32_dpp v{GR+row}, v{GR+row}, v{GR+row} row_ror:{sh} row_mask:0xf bank_mask:0xf")
    for op in ("v_permlane16_swap_b32", "v_permlane32_swap_b32"):
        for row in range(2): g.append(f"v_mov_b32 v{4+row}, v{GR+row}")
        for row in range(2): g.append(f"{op} v{GR+row}, v{4+row}")
        for row in range(2): g.append(f"v_add_f32 v{GR+row}, v{GR+row}, v{4+row}")
    for row in range(2): g.append(f"v_mul_f32 v{GR+row}, 0xbfb8aa3b, v{GR+row}")
    for row in range(2): g.append(f"v_exp_f32 v{GR+row}, v{GR+row}")
    for row in range(2): g.append(f"v_add_f32 v{GR+row}, 1.0, v{GR+row}")
    for row in range(2): g.append(f"v_rcp_f32 v{GR+row}, v{GR+row}")
    return g

def body(a, role, d1, d2, wait, first=False, last=False, x1=(), x2=(), dx1=(), dx2=(), loop=None, tail1=(), noadv=False):
    up0 = addr_set(role, 0, sNXT) if not last else []
    for x in schedule(p1_mfmas(role, 0, first), p1_reads(role, 1, 1), list(d1) + list(dx1), list(x1) + up0,
                      dma_first=1 if first else 2, tail=tail1, xspan=(0, 18)): a(x)
    if last:
        a("s_waitcnt lgkmcnt(0)")
        a("s_barrier")
        for x in schedule(p1_mfmas(role, 1), [], list(d2) + list(dx2), x2): a(x)
        return
    a(f"s_waitcnt vmcnt({wait}) lgkmcnt(0)")
    a("s_barrier")
    tail = (adv_instrs() if d2 and not noadv else []) + rot_instrs()
    if loop: tail.append([f"s_add_u32 s{sLOOP}, s{sLOOP}, 1", f"s_cmp_lt_u32 s{sLOOP}, {loop[1]}"])
    for x in schedule(p1_mfmas(role, 1), p1_reads(role, 0, 0), list(d2) + list(dx2), list(x2) + addr_set(role, 1, sNXT),
                      tail=tail, xspan=(0, 20)): a(x)
    a("s_waitcnt lgkmcnt(0)")
    if loop: a(f"s_cbranch_scc1 {loop[0]}")

sLOOP = 66
sBA, sBB, sBC, sBR = 96, 97, 98, 101
def b_base(step):
    if step < 4: return sBA, step*4096
    if step < 6: return sBB, (step-4)*4096
    if step < 9: return sBC + step - 6, 0
    if step < 13: return sBA, (step-9)*4096
    if step < 15: return sBB, (step-13)*4096
    return sBC, 0
sUB, sBO, sUA = 44, 45, 8
def next_step(u, dst, shift, pos):
    if pos >= 14:
        l = [f"s_cmp_gt_u32 s{sN2}, {pos}", f"s_cselect_b32 s{dst}, s{u}, 31",
             f"s_lshl_b32 s{dst}, s{dst}, {shift}" if shift < 32 else f"s_mul_i32 s{dst}, s{dst}, {shift}"]
    else:
        l = [f"s_lshl_b32 s{dst}, s{u}, {shift}" if shift < 32 else f"s_mul_i32 s{dst}, s{u}, {shift}"]
    return l + [f"s_add_u32 s{u}, s{u}, 1", f"s_cmp_eq_u32 s{u}, s{sN2}", f"s_cselect_b32 s{u}, 0, s{u}"]
def b_dma(step):
    g = []; sb, im = b_base(step)
    for dd in range(4):
        m = next_step(sUB, sBO, 15, step) if dd == 0 else []
        g.append((m + [f"s_add_u32 m0, s{sb}, {im + dd*1024}", f"s_add_u32 s57, s{sBO}, {dd*8192}"],
                  [f"buffer_load_dwordx4 v{vBD}, s[24:27], s57 offen lds"]))
    return g
def b_addr(step, regs):
    sb, im = b_base(step)
    return [f"v_add_u32 v{regs[c]}, s{sb}, v{vBF+c}" for c in range(4)]
def b_reads(step, dst, regs):
    out = []; sb, im = b_base(step)
    for c in range(4):
        out.append(f"ds_read_b64_tr_b16 {ar(dst+4*c,2)}, v{regs[c]} offset:{im}")
        out.append(f"ds_read_b64_tr_b16 {ar(dst+4*c+2,2)}, v{regs[c]} offset:{im+2048}")
    return out

sRB2, sCT2, sU2, sN2 = 12, 13, 14, 15
def p2_scalar_setup(a):
    a(f"s_and_b32 s{T0}, s2, 7"); a(f"s_lshr_b32 s{T1}, s2, 3")
    if OPT.get("p2b", 1) == 1:
        a(f"s_lshl_b32 s{sRB2}, s{T0}, 2"); a(f"s_lshr_b32 s{T2}, s{T1}, 3"); a(f"s_add_u32 s{sRB2}, s{sRB2}, s{T2}")
        a(f"s_and_b32 s{sCT2}, s{T1}, 7")
    else:
        a(f"s_lshr_b32 s{sRB2}, s{T0}, 1"); a(f"s_lshl_b32 s{sRB2}, s{sRB2}, 3"); a(f"s_lshr_b32 s{T2}, s{T1}, 2"); a(f"s_add_u32 s{sRB2}, s{sRB2}, s{T2}")
        a(f"s_and_b32 s{sCT2}, s{T0}, 1"); a(f"s_lshl_b32 s{sCT2}, s{sCT2}, 2"); a(f"s_and_b32 s{T2}, s{T1}, 3")
        a(f"s_xor_b32 s{T2}, s{T2}, {OPT.get('cx', 3)}"); a(f"s_add_u32 s{sCT2}, s{sCT2}, s{T2}")
    a(f"s_mov_b32 s{sU2}, 0"); a(f"s_mov_b32 s{sN2}, 16")
    for w, u0, n in ((1,16,15), (2,31,14), (3,45,14)):
        a(f"s_cmp_eq_u32 s{sW_}, {w}"); a(f"s_cselect_b32 s{sU2}, {u0}, s{sU2}"); a(f"s_cselect_b32 s{sN2}, {n}, s{sN2}")
    a(f"s_lshl_b32 s{sBA}, s{sW_}, 14"); a(f"s_add_u32 s{sBA}, s{sBA}, {GA}")
    a(f"s_lshl_b32 s{sBB}, s{sW_}, 13")
    a(f"s_mul_i32 s{T0}, s{sW_}, 12288"); a(f"s_add_u32 s{T0}, s{T0}, {GC}")
    for k in range(3):
        a(f"s_add_u32 s{sBC+k}, s{T0}, {4096*k}")
    a(f"s_cmp_eq_u32 s{sW_}, 3")
    a(f"s_cselect_b32 s{sBC+1}, {GC2}, s{sBC+1}"); a(f"s_cselect_b32 s{sBC+2}, {GC2+4096}, s{sBC+2}")
    a(f"s_mul_i32 s{sBR}, s{sW_}, {R2}")
    a(f"s_sub_u32 s{T0}, s{sU2}, 16"); a(f"s_lshl_b32 s{T0}, s{T0}, 15"); a(f"s_add_u32 s{T2}, s44, s{T0}"); a(f"s_addc_u32 s{T3}, s45, 0")
    a(f"s_cmp_eq_u32 s{sW_}, 0"); a(f"s_cselect_b32 s24, s8, s{T2}"); a(f"s_cselect_b32 s25, s9, s{T3}"); a("s_and_b32 s25, s25, 0xffff")
    a(f"s_lshl_b32 s26, s{sN2}, 15"); a("s_mov_b32 s27, 0x00020000")
    a(f"s_mul_i32 s{T0}, s{sU2}, {AWS_U}"); a(f"s_add_u32 s28, s10, s{T0}"); a("s_addc_u32 s29, s11, 0"); a("s_and_b32 s29, s29, 0xffff")
    a(f"s_mul_i32 s30, s{sN2}, {AWS_U}"); a("s_mov_b32 s31, 0x00020000")
    if OPT.get("rot2", 1) == 3:
        a(f"s_and_b32 s{T0}, s{sRB2}, {OPT.get('qm', 3)}"); a(f"s_mul_i32 s{T0}, s{T0}, {OPT.get('qa', 4)}")
        a(f"s_and_b32 s{T1}, s{sCT2}, {OPT.get('qc', 3)}"); a(f"s_mul_i32 s{T1}, s{T1}, {OPT.get('qb', 2)}"); a(f"s_add_u32 s{T0}, s{T0}, s{T1}")
    elif OPT.get("rot2", 1) == 1:
        a(f"s_and_b32 s{T0}, s{sRB2}, 3"); a(f"s_lshl_b32 s{T0}, s{T0}, 2"); a(f"s_lshl_b32 s{T1}, s{sCT2}, 1"); a(f"s_add_u32 s{T0}, s{T0}, s{T1}")
    elif OPT.get("p2b", 1) == 2:
        a(f"s_and_b32 s{T0}, s{sRB2}, 7"); a(f"s_lshl_b32 s{T0}, s{T0}, 1")
        a(f"s_lshr_b32 s{T1}, s{sRB2}, 3"); a(f"s_and_b32 s{T1}, s{T1}, 1"); a(f"s_add_u32 s{T0}, s{T0}, s{T1}")
        a(f"s_and_b32 s{T1}, s{sCT2}, 3"); a(f"s_lshl_b32 s{T1}, s{T1}, 2"); a(f"s_add_u32 s{T0}, s{T0}, s{T1}")
    else:
        a(f"s_and_b32 s{T0}, s{sRB2}, 3"); a(f"s_lshl_b32 s{T0}, s{T0}, 2")
        a(f"s_lshr_b32 s{T1}, s{sRB2}, 2"); a(f"s_and_b32 s{T1}, s{T1}, 3"); a(f"s_add_u32 s{T0}, s{T0}, s{T1}")
        a(f"s_and_b32 s{T1}, s{sCT2}, 3"); a(f"s_lshl_b32 s{T1}, s{T1}, 1"); a(f"s_add_u32 s{T0}, s{T0}, s{T1}")
    a(f"s_sub_u32 s{T1}, s{T0}, s{sN2}"); a(f"s_cmp_ge_u32 s{T0}, s{sN2}"); a(f"s_cselect_b32 s{sUB}, s{T1}, s{T0}")
    a(f"s_mov_b32 s{sUA}, s{sUB}")

def mix(a, valu, dmas, every):
    d = list(dmas); cnt = 0
    for k, x in enumerate(valu):
        a(x)
        if x.endswith(":") or x.startswith("s_cbranch"): continue
        cnt += 1
        if d and cnt % every == every - 2:
            for y in d[0][0]: a(y)
        if d and cnt % every == 0:
            for y in d[0][1]: a(y)
            d.pop(0)
    return d

def att_epilogue():
    e = []
    Q = lambda t, h: ACC + 4*(2*(t-1) + h)
    Kc = lambda t, h: ACC + 4*(8 + 2*t + h)
    V = lambda t, h: ACC + 4*(18 + 2*t + h)
    KF, VF, QF = 208, 228, 16
    kf = lambda t, h: KF + 10*h + 2*t
    vf = lambda t, h: VF + 10*h + 2*t
    qf = lambda t, h: QF + 2*(2*(t-1) + h)
    cv = lambda d, s: [f"v_cvt_pk_bf16_f32 v{d}, v{s}, v{s+1}", f"v_cvt_pk_bf16_f32 v{d+1}, v{s+2}, v{s+3}"]
    combos = [(t,h) for t in range(1,5) for h in range(2)]
    MC, MP, MF, SEL0, SEL1, ONES = 70, 72, 74, 76, 77, 78
    for t in range(5):
        for h in range(2): e += cv(kf(t,h), Kc(t,h))
    for (t,h) in combos: e += cv(qf(t,h), Q(t,h))
    S = lambda ci, blk: ACC + 8*ci + 4*blk
    vcv = []
    for t in range(5):
        for h in range(2): vcv += cv(vf(t,h), V(t,h))
    sm = []
    for ci,(t,h) in enumerate(combos):
        sm.append(f"v_mfma_f32_16x16x16_bf16 {vr(S(ci,0),4)}, {vr(kf(t-1,h),2)}, {vr(qf(t,h),2)}, 0")
        sm.append(f"v_mfma_f32_16x16x16_bf16 {vr(S(ci,1),4)}, {vr(kf(t,h),2)}, {vr(qf(t,h),2)}, 0")
    e.append("s_nop 1")
    for k, m in enumerate(sm):
        e.append(m)
        e += vcv[k*20//16:(k+1)*20//16]
    e += ["s_nop 7"]
    A = lambda ci: 160 + 4*ci
    for ci in range(8):
        for blk in range(2):
            s = S(ci, blk)
            e.append(f"v_cndmask_b32 v{A(ci)+2*blk}, v{s}, v{s+1}, s[46:47]")
            e.append(f"v_cndmask_b32 v{A(ci)+2*blk+1}, v{s+2}, v{s+3}, s[46:47]")
    for ci,(t,h) in enumerate(combos):
        mp = MF if t == 1 else MP
        e.append(f"v_pk_fma_f32 {vr(A(ci),2)}, {vr(A(ci),2)}, s[0:1], {vr(mp,2)} op_sel_hi:[1,0,1]")
        e.append(f"v_pk_fma_f32 {vr(A(ci)+2,2)}, {vr(A(ci)+2,2)}, s[0:1], {vr(MC,2)} op_sel_hi:[1,0,1]")
    MX = 4
    for ci in range(8):
        e.append(f"v_max3_f32 v{MX+ci}, v{A(ci)}, v{A(ci)+1}, v{A(ci)+2}")
    for ci in range(8):
        e.append(f"v_max_f32 v{MX+ci}, v{MX+ci}, v{A(ci)+3}")
    for q in range(2):
        b = MX + 4*q
        e += ["s_nop 0"] if q == 0 else []
        e.append(f"v_permlane32_swap_b32 v{b}, v{b+1}"); e.append(f"v_permlane32_swap_b32 v{b+2}, v{b+3}")
    for q in range(2):
        b = MX + 4*q
        e.append(f"v_max_f32 v{b}, v{b}, v{b+1}"); e.append(f"v_max_f32 v{b+2}, v{b+2}, v{b+3}")
    e.append("s_nop 0")
    for q in range(2):
        b = MX + 4*q
        e.append(f"v_permlane16_swap_b32 v{b}, v{b+2}")
    e.append("s_nop 0")
    for q in range(2):
        b = MX + 4*q
        e.append(f"v_max_f32 v{b}, v{b}, v{b+2}")
    for q in range(2):
        b = MX + 4*q
        e.append(f"v_mov_b32 v{b+1}, v{b}")
    e.append("s_nop 0")
    for q in range(2):
        b = MX + 4*q
        e.append(f"v_permlane32_swap_b32 v{b}, v{b+1}")
    e.append("s_nop 0")
    for q in range(2):
        b = MX + 4*q
        e.append(f"v_mov_b32 v{b+2}, v{b}"); e.append(f"v_mov_b32 v{b+3}, v{b+1}")
    e.append("s_nop 0")
    for q in range(2):
        b = MX + 4*q
        e.append(f"v_permlane16_swap_b32 v{b}, v{b+2}")
        e.append(f"v_permlane16_swap_b32 v{b+1}, v{b+3}")
    e.append("s_nop 0")
    for ci in range(8):
        e.append(f"v_pk_add_f32 {vr(A(ci),2)}, {vr(A(ci),2)}, {vr(MX+ci - (MX+ci)%2,2)} op_sel:[0,{(MX+ci)%2}] op_sel_hi:[1,{(MX+ci)%2}] neg_lo:[0,1] neg_hi:[0,1]")
        e.append(f"v_pk_add_f32 {vr(A(ci)+2,2)}, {vr(A(ci)+2,2)}, {vr(MX+ci - (MX+ci)%2,2)} op_sel:[0,{(MX+ci)%2}] op_sel_hi:[1,{(MX+ci)%2}] neg_lo:[0,1] neg_hi:[0,1]")
    P = lambda ci: ACC + 4*ci
    for ci in range(8):
        for r in range(4): e.append(f"v_exp_f32 v{A(ci)+r}, v{A(ci)+r}")
        if ci > 0:
            c1 = ci - 1
            e += [f"v_cvt_pk_bf16_f32 v12, v{A(c1)}, v{A(c1)+1}", f"v_cvt_pk_bf16_f32 v13, v{A(c1)+2}, v{A(c1)+3}",
                  f"v_perm_b32 v{P(c1)}, v12, v12, v{SEL0}", f"v_perm_b32 v{P(c1)+1}, v12, v12, v{SEL1}",
                  f"v_perm_b32 v{P(c1)+2}, v13, v13, v{SEL0}", f"v_perm_b32 v{P(c1)+3}, v13, v13, v{SEL1}"]
    e.append("s_nop 0")
    e += [f"v_cvt_pk_bf16_f32 v12, v{A(7)}, v{A(7)+1}", f"v_cvt_pk_bf16_f32 v13, v{A(7)+2}, v{A(7)+3}",
          f"v_perm_b32 v{P(7)}, v12, v12, v{SEL0}", f"v_perm_b32 v{P(7)+1}, v12, v12, v{SEL1}",
          f"v_perm_b32 v{P(7)+2}, v13, v13, v{SEL0}", f"v_perm_b32 v{P(7)+3}, v13, v13, v{SEL1}"]
    e.append("s_nop 1")
    O = lambda ci: 128 + 4*ci
    L = lambda ci: 160 + 4*ci
    for ci,(t,h) in enumerate(combos):
        e.append(f"v_mfma_f32_16x16x32_bf16 {vr(O(ci),4)}, {vr(vf(t-1,h),4)}, {vr(P(ci),4)}, 0")
        e.append(f"v_mfma_f32_16x16x32_bf16 {vr(L(ci),4)}, {vr(ONES,4)}, {vr(P(ci),4)}, 0")
    e.append("s_nop 6")
    for ci in range(8): e.append(f"v_rcp_f32 v{MX+ci}, v{L(ci)}")
    e.append("s_nop 0")
    for ci in range(8):
        sel = (MX+ci) % 2; pr = vr(MX+ci - sel, 2)
        e.append(f"v_pk_mul_f32 {vr(O(ci),2)}, {vr(O(ci),2)}, {pr} op_sel:[0,{sel}] op_sel_hi:[1,{sel}]")
        e.append(f"v_pk_mul_f32 {vr(O(ci)+2,2)}, {vr(O(ci)+2,2)}, {pr} op_sel:[0,{sel}] op_sel_hi:[1,{sel}]")
    for t in range(1,5):
        d = 16 + 4*(t-1)
        for h in range(2): e += cv(d + 2*h, O(2*(t-1)+h))
        e.append(f"buffer_store_dwordx4 {vr(d,4)}, v250, s[32:35], s{T6} offen offset:{(t-1)*1024} sc1")
    return e

def att_consts(a):
    a("s_mov_b32 s46, 0xaaaaaaaa"); a("s_mov_b32 s47, 0xaaaaaaaa")
    a("s_mov_b32 s0, 0x3eb8aa3b"); a("s_mov_b32 s1, 0x3eb8aa3b")
    a("v_and_b32 v8, 14, v3"); a("v_lshlrev_b32 v9, 2, v2"); a("v_sub_u32 v8, v8, v9")
    a("v_mov_b32 v9, 0xf149f2ca")
    for dst, blk in ((70, 0), (72, 16)):
        for k in range(2):
            a(f"v_add_u32 v10, {blk - 2*k}, v8")
            a("v_cmp_gt_u32 s[6:7], 15, v10")
            a("s_nop 1")
            a(f"v_cndmask_b32 v{dst+k}, v9, 0, s[6:7]")
    a(f"s_or_b32 s{T0}, s{sRB}, s{sRH}"); a(f"s_cmp_eq_u32 s{T0}, 0"); a("s_cselect_b64 s[6:7], -1, 0")
    for k in range(2): a(f"v_cndmask_b32 v{74+k}, v{72+k}, v9, s[6:7]")
    a("v_mov_b32 v76, 0x0c0c0100"); a("v_mov_b32 v10, 0x01000c0c"); a("v_cndmask_b32 v76, v76, v10, s[46:47]")
    a("v_mov_b32 v77, 0x0c0c0302"); a("v_mov_b32 v10, 0x03020c0c"); a("v_cndmask_b32 v77, v77, v10, s[46:47]")
    for r in range(4): a(f"v_mov_b32 v{78+r}, 0x3f803f80")
    a(f"s_lshl_b32 s{T6}, s{sGRP}, 1"); a(f"s_add_u32 s{T6}, s{T6}, s{sCH}"); a(f"s_mul_i32 s{T6}, s{T6}, {AWS_U}")
    a(f"s_lshl_b32 s{T0}, s{sRB}, 3"); a(f"s_lshl_b32 s{T1}, s{sRH}, 2"); a(f"s_add_u32 s{T0}, s{T0}, s{T1}"); a(f"s_lshl_b32 s{T0}, s{T0}, 10")
    a("v_lshlrev_b32 v250, 4, v1"); a(f"v_add_u32 v250, s{T0}, v250")

def ffn_pairs(m, rr, D):
    e = []
    prs = [ACC + 4*(6*rr + 2*m + hh) + 2*q for hh in range(2) for q in range(2)]
    T = [16 + 2*k for k in range(4)]
    for k in range(4): e.append(f"v_pk_mul_f32 {vr(T[k],2)}, {vr(prs[k],2)}, s[0:1] op_sel_hi:[1,0]")
    for k in range(4):
        e.append(f"v_exp_f32 v{T[k]}, v{T[k]}"); e.append(f"v_exp_f32 v{T[k]+1}, v{T[k]+1}")
    U = [24 + 2*k for k in range(4)]
    for k in range(4): e.append(f"v_pk_fma_f32 {vr(U[k],2)}, {vr(T[k],2)}, 0.5, 1.0 op_sel_hi:[1,0,0]")
    for k in range(4): e.append(f"v_pk_fma_f32 {vr(U[k],2)}, {vr(U[k],2)}, {vr(T[k],2)}, 1.0 op_sel_hi:[1,1,0]")
    for k in range(4):
        e.append(f"v_rcp_f32 v{U[k]}, v{U[k]}"); e.append(f"v_rcp_f32 v{U[k]+1}, v{U[k]+1}")
    for k in range(4): e.append(f"v_pk_fma_f32 {vr(prs[k],2)}, {vr(prs[k],2)}, {vr(U[k],2)}, {vr(prs[k],2)} neg_lo:[1,0,0] neg_hi:[1,0,0]")
    for k in range(4): e.append(f"v_cvt_pk_bf16_f32 v{D+k}, v{prs[k]}, v{prs[k]+1}")
    return e

def ffn_epilogue(nunits):
    e = []
    for m in range(nunits):
        for rr in range(4):
            D = 32 + 4*(rr & 1)
            e += ffn_pairs(m, rr, D)
            e.append(f"buffer_store_dwordx4 {vr(D,4)}, v250, s[32:35], s{T6} offen offset:{rr*1024} sc1")
        e.append(f"s_add_u32 s{T6}, s{T6}, {AWS_U}")
    return e

def ffn_consts(a):
    a(f"s_mov_b32 s0, {LOG2E}"); a(f"s_mov_b32 s1, {LOG2E}")
    a(f"s_mul_i32 s{T6}, s{sCH}, 3"); a(f"s_add_u32 s{T6}, s{T6}, s{sU0}"); a(f"s_add_u32 s{T6}, s{T6}, 16"); a(f"s_mul_i32 s{T6}, s{T6}, {AWS_U}")
    a(f"s_lshl_b32 s{T0}, s{sRB}, 3"); a(f"s_lshl_b32 s{T1}, s{sRH}, 2"); a(f"s_add_u32 s{T0}, s{T0}, s{T1}"); a(f"s_lshl_b32 s{T0}, s{T0}, 10")
    a("v_lshlrev_b32 v250, 4, v1"); a(f"v_add_u32 v250, s{T0}, v250")

def gate_store(a):
    a("v_cmp_eq_u32 s[68:69], 0, v1")
    a("s_nop 1")
    a("s_and_saveexec_b64 s[66:67], s[68:69]")
    a(f"buffer_store_dwordx2 {vr(GR,2)}, v{vGST}, s[36:39], 0 offen sc1")
    a("s_mov_b64 exec, s[66:67]")

NB1 = 9
def weave(a, main, inserts):
    ins = {}
    for p, l in inserts: ins.setdefault(min(p, len(main)-1), []).extend(l)
    for i, x in enumerate(main):
        a(x)
        for y in ins.get(i, []): a(y)

def dma_inserts(dmas, lo, hi):
    out = []
    for k, (m, l) in enumerate(dmas):
        p = int(lo + 2 + k * (hi - lo - 2) / len(dmas))
        out.append((p - 2, m)); out.append((p, l))
    return out

def b_copy(steps):
    tr = [60, 61, 62, 63]; out = []; last = None
    for st in steps:
        sb = b_base(st)[0]
        if sb != last: out += b_addr(st, tr)
        last = sb
        out += b_reads(st, 16*st, tr)
    return out

def is_vmem(x): return x.startswith("buffer_") or x.startswith("global_")
def resolve_waits(flat, init):
    out = []
    for i, x in enumerate(flat):
        if x.startswith("@wait"):
            tag = x.split()[1]
            pos = [j for j in range(i) if flat[j].endswith("; " + tag)]
            n = sum(1 for y in flat[pos[-1]+1:i] if is_vmem(y)) if pos else init[tag] + sum(1 for y in flat[:i] if is_vmem(y))
            out.append(f"s_waitcnt vmcnt({n})")
        else: out.append(x)
    return out
def weave_list(main, inserts):
    ins = {}
    for p, l in inserts: ins.setdefault(min(p, len(main)-1), []).extend(l)
    out = []
    for i, x in enumerate(main):
        out.append(x); out += ins.get(i, [])
    return out
def tag_last(dmas, tag):
    m, l = dmas[-1]
    return dmas[:-1] + [(m, [l[0] + " ; " + tag] + l[1:])]

def staged_epilogue(a, e, rest, P):
    n = len(e)
    r2 = []
    for st in range(NB1, 16): r2 += b_dma(st)
    ins = dma_inserts(tag_last(rest, "R1"), 0, P["r1"])
    ins.append((P["w1"], ["@wait S5"]))
    cp = b_copy(range(0, 6))
    for k, x in enumerate(cp): ins.append((P["w1"] + 1 + int(k * (P["c1"] - P["w1"] - 1) / len(cp)), [x]))
    ins.append((P["c1"] + 2, ["s_waitcnt lgkmcnt(0)"]))
    k2 = P["n2"]; assert k2 <= 24
    ins += dma_inserts(r2[:k2], P["c1"] + 3, P["d2"])
    ins.append((P["w2"], ["@wait R1"]))
    cp = b_copy(range(6, 9))
    for k, x in enumerate(cp): ins.append((P["w2"] + 1 + int(k * (P["c2"] - P["w2"] - 1) / len(cp)), [x]))
    assert P["c2"] < n
    flat = resolve_waits(weave_list(e, ins), {"S5": OPT.get("b7", 8) + 1})
    for x in flat: a(x)
    return r2[k2:]

def count_vmem(lines): return sum(1 for x in lines if x.startswith("buffer_") or x.startswith("global_"))

def epilogue_with_staging(a, R, e, rest, frac):
    n = len(e)
    p_r1, p_cp0, p_cp1, p_bar = frac[0], int(n*frac[1]), int(n*frac[2]), int(n*frac[3])
    assert count_vmem(e[:p_r1+1]) == 0
    ins = dma_inserts(rest, 0, p_r1)
    later = count_vmem(e[:p_cp0+1])
    ins.append((p_cp0, [f"s_waitcnt vmcnt({later})"]))
    cp = round1_copy()
    for k, x in enumerate(cp): ins.append((p_cp0 + int(k * (p_cp1 - p_cp0) / len(cp)), [x]))
    ins.append((p_bar, ["s_waitcnt lgkmcnt(0)", "s_barrier"]))
    r2 = []
    for st in range(NB1, 16): r2 += b_dma(st)
    k2 = OPT.get(R + "r2", 10)
    ins += dma_inserts(r2[:k2], p_bar + 1, n - 1)
    weave(a, e, ins)
    return r2[k2:]

sXF = 3
def common_start(a):
    att = lambda x, y: [f"s_cselect_b32 {x}, {y[0]}, {y[1]}"]
    a(f"s_mul_i32 s{sU0}, s{sGRP}, 6"); a(f"s_mul_i32 s{T0}, s{sGRP}, 5"); a(f"s_add_u32 s{T0}, s{T0}, 3")
    a(f"s_cmp_le_u32 s{sGRP}, 3"); a(f"s_cselect_b32 s{sU0}, s{sU0}, s{T0}")
    a(f"s_lshl_b32 s{T5}, s{sRB}, 17")
    a(f"s_cmp_eq_u32 s{sTYPE}, 0"); a(f"s_cselect_b32 s{T0}, 16384, 0"); a(f"s_cselect_b32 s{sXF}, 1, 0"); a(f"s_sub_u32 s{T5}, s{T5}, s{T0}")
    a(f"s_cmp_lt_u32 s{sW_}, 2"); a(f"s_cselect_b32 s{sXF}, s{sXF}, 0")
    a(f"s_lshl_b32 s{T0}, s{sW_}, 15"); a(f"s_add_u32 s{T0}, s{T0}, s{T5}")
    a(f"s_cmp_lt_i32 s{T0}, 0"); a(f"s_cselect_b32 s{T1}, 16384, 0"); a(f"s_add_u32 s{T1}, s{T1}, s{T0}")
    for j in range(4):
        src = T1 if j < 2 else T0
        if j: a(f"s_add_u32 s{T2}, s{src}, {8192*j}")
        a(f"v_add_u32 v{XO+j}, s{T2 if j else src}, v{8 + (j&1)}")
    a(f"s_lshl_b32 s{T0}, s{sW_}, 13"); a(f"s_add_u32 s{T0}, s{T0}, s{T5}"); a(f"s_add_u32 s{T0}, s{T0}, {128*1024}")
    a(f"s_lshl_b32 s{T1}, s{sCH}, 6"); a(f"v_xor_b32 v10, s{T1}, v8"); a(f"v_add_u32 v{XO+4}, s{T0}, v10")
    a("s_waitcnt lgkmcnt(0)")
    stamp(a, 1)
    srd(a, 16, 4, 2048*1024)
    emit_pairs(a, all_x("att", sCUR))
    a(f"s_lshl_b32 s{T0}, s{sGRP}, 7"); a(f"s_lshl_b32 s{T1}, s{sU0}, 6")
    a(f"s_cmp_eq_u32 s{sTYPE}, 0")
    a(f"s_cselect_b32 s{T4}, s{T0}, s{T1}")
    a(f"s_movk_i32 s{T0}, 2752"); a(f"s_cselect_b32 s{T2}, 3072, s{T0}"); a(f"s_movk_i32 s{T0}, 128"); a(f"s_cselect_b32 s{T3}, 1024, s{T0}")
    a("s_cselect_b32 s20, s6, s12"); a("s_cselect_b32 s21, s7, s13"); a("s_and_b32 s21, s21, 0xffff")
    a(f"s_lshl_b32 s22, s{T2}, 9"); a("s_mov_b32 s23, 0x00020000")
    a(f"s_lshl_b32 s{sRS64}, s{T2}, 6"); a(f"s_mul_i32 s{sKW}, s{T6}, s{sRS64}")
    a(f"v_mul_lo_u32 v7, s{T2}, v4")
    a("v_and_b32 v8, 1, v2"); a("v_lshlrev_b32 v8, 1, v8"); a("v_xor_b32 v8, v8, v5"); a("v_xor_b32 v9, 4, v8")
    a("v_lshl_add_u32 v10, v8, 4, v7"); a("v_lshl_add_u32 v11, v9, 4, v7")
    a(f"s_mul_i32 s{T0}, s{sW_}, 6"); a(f"s_lshr_b32 s{T1}, s{T0}, 3"); a(f"s_and_b32 s{T0}, s{T0}, 7")
    a(f"s_mul_i32 s{T1}, s{T1}, s{T3}"); a(f"s_lshl_b32 s{T5}, s{T2}, 3"); a(f"s_mul_i32 s{T0}, s{T0}, s{T5}")
    a(f"s_add_u32 s{T0}, s{T0}, s{T1}"); a(f"s_add_u32 s{T0}, s{T0}, s{T4}")
    a(f"s_mul_i32 s{T1}, s{T2}, 56"); a(f"s_sub_u32 s{T4}, s{T3}, s{T1}")
    a(f"s_cmp_eq_u32 s{sW_}, 1"); a(f"s_cselect_b32 s{T2}, s{T4}, s{T5}")
    a(f"s_cmp_eq_u32 s{sW_}, 2"); a(f"s_cselect_b32 s{T3}, s{T4}, s{T5}")
    for j in range(6):
        a(f"v_add_u32 v{WO+j}, s{T0}, v{10 + (j&1)}")
        if j < 5: a(f"s_add_u32 s{T0}, s{T0}, s{ {1: T2, 3: T3}.get(j, T5) }")
    a(f"s_cmp_ge_u32 s{sGRP}, 3"); a(f"s_cselect_b32 s{T0}, s{sRH}, 0"); a(f"s_and_b32 s{T0}, s{T0}, s{sTYPE}"); a(f"s_cmp_eq_u32 s{T0}, 1"); a("s_cbranch_scc0 Lwoffdone")
    a("v_lshrrev_b32 v12, 2, v8"); a("v_lshlrev_b32 v12, 30, v12"); a("v_xor_b32 v13, 0x40000000, v12")
    for j in (4, 5): a(f"v_add_u32 v{WO+j}, v{WO+j}, v{12 + (j&1)}")
    a(f"s_cmp_eq_u32 s{sW_}, 3"); a("s_cbranch_scc0 Lwoffdone")
    for j in range(4): a(f"v_add_u32 v{WO+j}, v{WO+j}, v{12 + (j&1)}")
    a.label("Lwoffdone")
    emit_pairs(a, all_w(sCUR))

def misc_setup(a, R):
    j16 = (8 if R == "ffn" else 0)
    a(f"s_add_u32 s{T2}, s{sGRP}, {j16}"); a(f"s_lshl_b32 s{T2}, s{T2}, 3")
    a(f"s_lshl_b32 s{T1}, s{sRB}, 7"); a(f"s_add_u32 s{T2}, s{T2}, s{T1}")
    a(f"s_lshl_b32 s{T1}, s{sW_}, 1"); a(f"s_add_u32 s{T0}, s{T2}, s{T1}")
    a(f"s_lshl_b32 s{T1}, s{T0}, 10"); a(f"s_lshl_b32 s{T0}, s{T0}, 2")
    a("v_lshlrev_b32 v5, 4, v1"); a(f"v_add_u32 v4, s{T1}, v5"); a(f"v_mov_b32 v{vGST}, s{T0}")
    a(f"s_add_u32 s{T2}, s{T2}, {FLAG_OFF}"); a(f"s_lshl_b32 s{T1}, s{sRB}, 4")
    a("v_cmp_eq_u32 s[28:29], 0, v0"); a("v_mov_b32 v7, 0x40000000")
    a(f"v_mov_b32 v8, s{T2}"); a(f"v_mov_b32 v{vCLR}, s{T1}")
    a(f"v_cndmask_b32 v{vFLG}, v7, v8, s[28:29]")
    a(f"s_add_u32 s36, s10, {G_OFF}"); a("s_addc_u32 s37, s11, 0"); a("s_and_b32 s37, s37, 0xffff")
    a("s_mov_b32 s38, 32768"); a("s_mov_b32 s39, 0x00020000")
    a("v_mov_b32 v7, 0")
    a(f"buffer_store_dword v7, v{vFLG}, s[36:39], 0 offen sc1")
    a(f"s_cmp_eq_u32 s{sW_}, 0"); a("s_cselect_b64 s[4:5], 1, 0")
    srd(a, 28, 46, 1024)
    if R == "ffn":
        srd(a, 24, 14, 2752)
        a(f"s_lshl_b32 s{T0}, s{sU0}, 6"); a(f"s_mul_i32 s{T1}, s{sCH}, 192"); a(f"s_add_u32 s{T0}, s{T0}, s{T1}")
        a("v_lshlrev_b32 v6, 3, v2"); a(f"v_add_u32 v6, s{T0}, v6")

def phase1_role(a, R):
    misc_setup(a, R)
    a(f"buffer_load_dwordx4 {vr(GX,4)}, v4, s[16:19], 0 offen"); a(f"buffer_load_dwordx4 {vr(GX+4,4)}, v4, s[16:19], 0 offen offset:1024")
    a(f"buffer_load_dwordx4 {vr(GW,4)}, v5, s[28:31], 0 offen")
    if R == "ffn":
        for tt in range(6): a(f"buffer_load_dwordx2 {vr(BIAS+2*tt,2)}, v6, s[24:27], 0 offen offset:{tt*32}")
    late = chunks(capture(late_setup, R))
    pieces = all_x(R, sNXT)
    per = -(-len(late) // (len(pieces) + 1)); k = 0
    for m, l in pieces:
        for ch in late[k:k+per]:
            for x in ch: a(x)
        k += per
        for x in m: a(x)
        a("s_nop 0")
        for x in l: a(x)
    for ch in late[k:]:
        for x in ch: a(x)
    stamp(a, 2)
    for x in addr_set(R, 0, sCUR) + addr_set(R, 1, sCUR): a(x)
    (att_consts if R == "att" else ffn_consts)(a)
    a("s_waitcnt vmcnt(4)")
    a("s_barrier")
    stamp(a, 3)
    for x in p1_reads(R, 0, 0): a(x)
    if R == "ffn":
        for tt in range(6):
            for q in range(2):
                a(f"v_lshlrev_b32 v{bias_reg(tt,2*q)}, 16, v{BIAS+2*tt+q}")
                a(f"v_and_b32 v{bias_reg(tt,2*q+1)}, 0xffff0000, v{BIAS+2*tt+q}")
    a("s_waitcnt lgkmcnt(0)")
    istamp(a, 1)
    g = gate_instrs()
    body(a, R, all_w(sNXT) + all_x(R, sPRV), all_w(sPRV) + all_x(R, sCUR), 4, first=True, noadv=True, x1=g[:22], x2=g[22:])
    istamp(a, 2)
    body(a, R, all_w(sPRV), h1(R, sCUR), 10, x2=[["v_mov_b32 v7, 1", "s_and_saveexec_b64 s[6:7], s[4:5]", "s_cbranch_execz 2f", f"global_atomic_add v{vCLR}, v7, s[50:51] sc1", "2:", "s_mov_b64 exec, s[6:7]"]])
    if OPT.get("iter"):
        for it in range(2, 5):
            istamp(a, 1 + it)
            body(a, R, h2(R, sPRV), h1(R, sCUR), 10)
    else:
        a(f"s_mov_b32 s{sLOOP}, 2")
        a.label(f"L{R}_loop")
        body(a, R, h2(R, sPRV), h1(R, sCUR), 10, loop=(f"L{R}_loop", 5))
    istamp(a, 6)
    bd = []
    for st in range(NB1): bd += b_dma(st)
    n = OPT.get("bper", 6)
    assert 4*n <= 24 and 3*n <= 24 and 2*n <= 16
    body(a, R, h2(R, sPRV), [], 10, dx2=bd[:n])
    istamp(a, 7)
    body(a, R, [], [], 2*n, dx1=bd[n:2*n], dx2=bd[2*n:3*n])
    fl = []
    istamp(a, 8)
    n7 = OPT.get("b7", 8)
    body(a, R, [], [], 0, last=True, x1=fl, dx1=bd[3*n:4*n], dx2=bd[4*n:4*n+n7])
    rest = bd[4*n+n7:]
    istamp(a, 9)
    stamp(a, 4)
    a("global_load_dword v64, v43, s[50:51] sc1")
    a.nop(8)
    if R == "att":
        weave(a, att_epilogue(), dma_inserts(rest, 0, 40))
    else:
        e = ffn_epilogue(3); k = 2*len(e)//3
        weave(a, e[:k], dma_inserts(rest, 0, 30))
        a(f"s_cmp_ge_u32 s{sGRP}, 3"); a(f"s_cselect_b32 s{T0}, s{sCH}, 0"); a(f"s_cmp_eq_u32 s{T0}, 1"); a("s_cbranch_scc1 Lffn_done")
        for x in e[k:]: a(x)
        a.label("Lffn_done")
    gate_store(a)
    p2_pre(a)
    istamp(a, 10)
    stamp(a, 5)
    a(f"s_waitcnt vmcnt({5 if R == 'att' else 9})")
    for x in b_copy(range(0, NB1)): a(x)
    a("s_waitcnt lgkmcnt(0)")
    r2 = []
    for st in range(NB1, 16): r2 += b_dma(st)
    npre = OPT.get("r2pre", 4)
    emit_pairs(a, r2[:npre])
    a(f"s_waitcnt vmcnt({npre})")
    a("s_barrier")
    a("v_mov_b32 v5, 1")
    a(f"buffer_store_dword v5, v{vFLG}, s[36:39], 0 offen sc1")
    stamp(a, 6)
    if R == "att": a("s_branch Lphase2")

JR = [2, 3, 14, 15]
def p2_pre(a):
    a(f"v_mov_b32 v0, v{vOUT}")
    a("v_lshlrev_b32 v4, 4, v1"); a(f"s_lshl_b32 s{T1}, s{sRB2}, 12")
    for tau in range(4):
        a(f"s_add_u32 s{T0}, s{sW_}, {tau}"); a(f"s_and_b32 s{T0}, s{T0}, 3"); a(f"s_lshl_b32 s{T0}, s{T0}, 10"); a(f"s_add_u32 s{T0}, s{T0}, s{T1}")
        a(f"v_add_u32 v{8+tau}, s{T0}, v4")
    srd(a, 16, 48, 2048*1024)

def late_setup(a, R):
    a("v_lshrrev_b32 v7, 1, v3")
    a(f"s_lshl_b32 s{T0}, s{sRH}, 13")
    for h in range(2):
        a(f"v_or_b32 v8, {4*h}, v2"); a("v_xor_b32 v8, v8, v7"); a("v_lshlrev_b32 v8, 4, v8")
        a("v_lshl_add_u32 v8, v3, 7, v8"); a(f"v_add_u32 v{XB+h}, s{T0}, v8")
    a("v_bfe_u32 v7, v1, 2, 2"); a("v_and_b32 v8, 3, v1")
    a("v_lshl_add_u32 v9, v2, 3, v7"); a("v_lshlrev_b32 v9, 7, v9")
    a("v_and_b32 v10, 1, v8"); a("v_lshl_add_u32 v9, v10, 3, v9")
    a("v_and_b32 v10, 2, v7"); a("v_and_b32 v11, 1, v2"); a("v_lshl_or_b32 v10, v11, 2, v10")
    a("v_lshrrev_b32 v11, 1, v8"); a("v_xor_b32 v10, v10, v11")
    if R == "att":
        for t in range(2):
            a(f"s_lshl_b32 s{T0}, s{sCH}, 2"); a(f"s_add_u32 s{T0}, s{T0}, {2*t}")
            a(f"v_xor_b32 v11, s{T0}, v10"); a("v_lshl_add_u32 v11, v11, 4, v9"); a(f"v_add_u32 v{WB+t}, {WOFF}, v11")
    else:
        for t in range(6):
            a(f"s_mul_i32 s{T0}, s{sCH}, 6"); a(f"s_add_u32 s{T0}, s{T0}, {t}")
            a(f"s_lshr_b32 s{T1}, s{T0}, 2"); a(f"s_and_b32 s{T0}, s{T0}, 3"); a(f"s_lshl_b32 s{T0}, s{T0}, 1")
            a(f"s_lshl_b32 s{T1}, s{T1}, 13"); a(f"s_add_u32 s{T1}, s{T1}, {WOFF}")
            a(f"v_xor_b32 v11, s{T0}, v10"); a("v_lshl_add_u32 v11, v11, 4, v9"); a(f"v_add_u32 v{WB+t}, s{T1}, v11")
    srd(a, 32, 10, 59*AWS_U)
    p2_scalar_setup(a)
    a("v_lshrrev_b32 v7, 3, v1"); a("v_and_b32 v8, 7, v1"); a("v_lshlrev_b32 v9, 1, v2"); a("v_xor_b32 v8, v8, v9")
    a("v_lshlrev_b32 v8, 4, v8"); a("v_lshl_add_u32 v7, v7, 10, v8"); a(f"s_lshl_b32 s{T0}, s{sCT2}, 7"); a(f"v_add_u32 v{vBD}, s{T0}, v7")
    a("v_bfe_u32 v7, v1, 2, 2"); a("v_and_b32 v8, 3, v1")
    a("v_lshl_add_u32 v9, v2, 2, v7"); a("v_bfe_u32 v10, v9, 1, 2"); a("v_lshlrev_b32 v10, 1, v10")
    a("v_lshlrev_b32 v9, 7, v9"); a("v_and_b32 v11, 1, v8"); a("v_lshl_add_u32 v9, v11, 3, v9")
    a("v_lshrrev_b32 v11, 1, v8"); a("v_xor_b32 v10, v10, v11")
    for c in range(4):
        a(f"v_xor_b32 v11, {2*c}, v10"); a(f"v_lshl_add_u32 v{vBF+c}, v11, 4, v9")
    a(f"s_lshr_b32 s{T0}, s{sRB2}, 1"); a(f"s_lshl_b32 s{T0}, s{T0}, 4"); a(f"v_mov_b32 v43, s{T0}")
    a(f"s_lshl_b32 s{T0}, s{sRB2}, 2"); a(f"s_add_u32 s{T0}, s{T0}, s{sW_}"); a(f"s_lshl_b32 s{T0}, s{T0}, 6")
    a("v_lshlrev_b32 v7, 2, v3"); a(f"v_add_u32 v{vGRD}, s{T0}, v7")
    a(f"s_lshl_b32 s{T0}, s{T0}, 8"); a(f"s_lshl_b32 s{T1}, s{sCT2}, 7"); a(f"s_add_u32 s{T0}, s{T0}, s{T1}")
    a("v_and_b32 v7, 1, v2"); a("v_lshlrev_b32 v7, 5, v7"); a("v_lshrrev_b32 v8, 1, v2"); a("v_lshl_add_u32 v7, v8, 4, v7")
    a("v_lshl_add_u32 v7, v3, 10, v7"); a(f"v_add_u32 v{vOUT}, s{T0}, v7")

RED = 114688
def phase2(a):
    ACC2, AR, NR, DEP = 16, 80, 6, OPT.get('dep', 4)
    JIT = [144, 160]
    a.label("Lphase2")
    assert OPT.get("r2pre", 4) <= 20
    r2 = []
    for st in range(NB1, 14): r2 += b_dma(st)
    emit_pairs(a, r2[OPT.get("r2pre", 4):])
    for st in (14, 15):
        a(f"s_cmp_gt_u32 s{sN2}, {st}"); a("s_cbranch_scc0 Lp2_nomore")
        emit_pairs(a, b_dma(st))
    a.label("Lp2_nomore")
    a(f"s_lshr_b32 s{T2}, s{sRB2}, 1"); a(f"s_lshl_b32 s{T2}, s{T2}, 7"); a(f"s_add_u32 s{T2}, s{T2}, {FLAG_OFF}")
    a("v_and_b32 v5, 15, v1"); a(f"v_lshl_add_u32 v5, v5, 3, s{T2}")
    a("v_readfirstlane_b32 s68, v64")
    a(f"s_cmp_eq_u32 s{sW_}, 0"); a("s_cbranch_scc0 Lp2_other")
    a(f"s_mov_b32 s{T1}, 0")
    a.label("Lp2_clr")
    a("s_cmp_ge_u32 s68, 16"); a("s_cbranch_scc1 Lp2_cleared")
    a("s_sleep 8")
    a("global_load_dword v64, v43, s[50:51] sc1")
    a(f"s_add_u32 s{T1}, s{T1}, 1")
    a("s_waitcnt vmcnt(0)")
    a("v_readfirstlane_b32 s68, v64")
    a(f"s_cmp_gt_u32 s{T1}, 0x100000"); a("s_cbranch_scc0 Lp2_clr")
    a.label("Lp2_cleared")
    a("buffer_load_dword v6, v5, s[36:39], 0 offen sc1")
    a("s_waitcnt vmcnt(1)")
    for x in b_copy(range(NB1, 16)): a(x)
    a("s_waitcnt vmcnt(0)")
    a("s_branch Lp2_check")
    a.label("Lp2_poll")
    a(f"s_sleep {OPT.get('sleep', 1)}")
    a("buffer_load_dword v6, v5, s[36:39], 0 offen sc1")
    a(f"s_add_u32 s{T1}, s{T1}, 1")
    a("s_waitcnt vmcnt(0)")
    a(f"s_cmp_gt_u32 s{T1}, 0x200000"); a("s_cbranch_scc1 Lp2_go")
    a.label("Lp2_check")
    a("v_cmp_ne_u32 vcc, 1, v6")
    a("s_nop 4")
    a("s_cbranch_vccnz Lp2_poll")
    a("s_branch Lp2_go")
    a.label("Lp2_other")
    a("s_waitcnt vmcnt(0)")
    for x in b_copy(range(NB1, 16)): a(x)
    a.label("Lp2_go")
    a("s_waitcnt lgkmcnt(0)")
    a("s_barrier")
    stamp(a, 7)
    def loadA(step):
        return [f"buffer_load_dwordx4 {vr(AR+16*(step%NR)+4*tau,4)}, v{8+tau}, s[28:31], s{T0 + (step & 1)} offen sc1" for tau in (1, 2, 3, 0)]
    a(f"buffer_load_dword v12, v{vGRD}, s[36:39], 0 offen sc1")
    for st in range(DEP):
        for x in next_step(sUA, T0 + (st & 1), AWS_U, st): a(x)
        for x in loadA(st): a(x)
    NS = 16
    pre = []
    pre.append(["v_lshlrev_b32 v4, 4, v1", f"v_add_u32 v4, {RED}, v4"])
    for tau in range(1, 4):
        pre.append([f"s_add_u32 s{T2}, s{sW_}, {tau}", f"s_and_b32 s{T2}, s{T2}, 3", f"s_mul_i32 s{T2}, s{T2}, 12288", f"v_add_u32 v{175+tau}, s{T2}, v4"])
    pre.append([f"s_mul_i32 s{T2}, s{sW_}, 12288", f"v_add_u32 v179, s{T2}, v4"])
    pre.append(["v_sub_f32 v13, 1.0, v12"])
    for k in range(4):
        pre.append([f"s_sub_u32 s{T2}, s{sW_}, {k}", f"s_and_b32 s{T2}, s{T2}, 3", f"s_cmp_eq_u32 s{T2}, 0", "s_cselect_b64 s[68:69], -1, 0",
                    f"v_cndmask_b32 v{180+k}, v13, v12, s[68:69]"])
    for st in range(NS):
        younger = min(st + DEP - 1, NS - 1) - st
        if st >= 14:
            a(f"s_cmp_gt_u32 s{sN2}, {st}"); a("s_cbranch_scc0 Lp2_short")
        a(f"s_waitcnt vmcnt({4*younger})")
        if st == 0: stamp(a, 8)
        bsrc = 16*st
        mf = []
        for tau in (1, 2, 3, 0):
            for c in range(4):
                d = ACC2 + 4*(4*tau + c)
                C = vr(d,4) if st > 0 else "0"
                mf.append(f"v_mfma_f32_16x16x32_bf16 {vr(d,4)}, {ar(bsrc+4*c,4)}, {vr(AR+16*(st%NR)+4*tau,4)}, {C}")
        nxt = st + 1
        rd = []
        after = [[] for _ in mf]
        for k, x in enumerate(rd): after[k].append(x)
        if st + DEP < NS:
            after[0] += next_step(sUA, T0 + ((st+DEP) & 1), AWS_U, st + DEP)
            for k, x in enumerate(loadA(st + DEP)): after[1 + 4*k].append(x)
        if 1 <= st <= 5:
            for k, ch in enumerate(pre[2*(st-1):2*st]): after[3 + 6*k] += ch
        if st == NS - 1:
            for tau in (1, 2):
                for c in range(4):
                    after[min(4*tau + 4 + c, 15)].append(f"ds_write_b128 v{175+tau}, {vr(ACC2+4*(4*tau+c),4)} offset:{(tau-1)*4096 + c*1024}")
        for m, f in zip(mf, after):
            a(m)
            for x in f: a(x)
    a.nop(2)
    a("s_branch Lp2_red")
    a.label("Lp2_short")
    a("s_waitcnt vmcnt(0)")
    a.nop(8)
    for tau in (1, 2):
        for c in range(4):
            a(f"ds_write_b128 v{175+tau}, {vr(ACC2+4*(4*tau+c),4)} offset:{(tau-1)*4096 + c*1024}")
    a.label("Lp2_red")
    stamp(a, 9)
    for c in range(4):
        a(f"ds_write_b128 v178, {vr(ACC2+4*(12+c),4)} offset:{2*4096 + c*1024}")
    for r in range(0, 16, 2): a(f"v_pk_mul_f32 {vr(ACC2+r,2)}, {vr(ACC2+r,2)}, {vr(180,2)} op_sel_hi:[1,0]")
    a("s_waitcnt lgkmcnt(0)"); a("s_barrier")
    R = 80
    for pos in range(3):
        for c in range(4):
            a(f"ds_read_b128 {vr(R+16*pos+4*c,4)}, v179 offset:{pos*4096 + c*1024}")
    for pos in range(3):
        a(f"s_waitcnt lgkmcnt({8 - 4*pos})")
        f = 181 + pos; pr = vr(f - f % 2, 2); sel = f % 2
        for r in range(0, 16, 2):
            a(f"v_pk_fma_f32 {vr(ACC2+r,2)}, {vr(R+16*pos+r,2)}, {pr}, {vr(ACC2+r,2)} op_sel:[0,{sel},0] op_sel_hi:[1,{sel},1]")
    for c in range(4):
        a(f"v_cvt_pk_bf16_f32 v{32+2*c}, v{ACC2+4*c}, v{ACC2+4*c+1}"); a(f"v_cvt_pk_bf16_f32 v{33+2*c}, v{ACC2+4*c+2}, v{ACC2+4*c+3}")
    a("s_nop 1")
    for p in range(2):
        b = 32 + 4*p
        a(f"v_permlane16_swap_b32 v{b}, v{b+2}"); a(f"v_permlane16_swap_b32 v{b+1}, v{b+3}")
    for p in range(2):
        a(f"buffer_store_dwordx4 {vr(32+4*p,4)}, v0, s[16:19], 0 offen offset:{64*p} {['', 'sc1', 'nt', 'sc0 sc1'][OPT.get('outfl', 0)]}")
    stamp(a, 10)

def kernel():
    a = Asm()
    a(f".globl {KNAME}"); a(".p2align 8"); a(f".type {KNAME},@function"); a.label(KNAME)
    a("s_cmp_ge_u32 s2, 256"); a("s_cbranch_scc1 Lend")
    stamp(a, 0)
    a("s_load_dwordx4 s[4:7], s[0:1], 0")
    a("s_load_dwordx4 s[12:15], s[0:1], 32")
    a("s_load_dwordx4 s[44:47], s[0:1], 48")
    a("s_load_dwordx2 s[8:9], s[0:1], 16")
    a("s_load_dwordx4 s[48:51], s[0:1], 64")
    a("s_load_dwordx2 s[10:11], s[0:1], 80")
    a("v_lshrrev_b32 v4, 6, v0"); a("v_and_b32 v1, 63, v0"); a("v_lshrrev_b32 v2, 4, v1"); a("v_and_b32 v3, 15, v1")
    a(f"v_readfirstlane_b32 s{sW_}, v4")
    if OPT.get("cpf", 1):
        NL = OPT.get("cpfn", 10)
        a("s_getpc_b64 s[16:17]")
        a.label("Lpc")
        a(f"s_lshr_b32 s18, s2, 3"); a(f"s_mul_i32 s18, s18, {NL}")
        a(f"v_min_u32 v5, {NL-1}, v1"); a("v_add_u32 v5, s18, v5"); a("v_lshlrev_b32 v5, 7, v5")
        a("v_min_u32 v5, (Lend-Lpc), v5")
        a(f"s_cmp_eq_u32 s{sW_}, 0"); a("s_cbranch_scc0 Lnopf")
        a("global_load_dword v255, v5, s[16:17]")
        a.label("Lnopf")
    a(f"s_and_b32 s{T2}, s2, 4"); a(f"s_lshl_b32 s{sRB}, s{T2}, 1"); a(f"s_lshr_b32 s{T4}, s2, 5"); a(f"s_add_u32 s{sRB}, s{sRB}, s{T4}")
    a(f"s_and_b32 s{T3}, s2, 3"); a(f"s_lshl_b32 s{T3}, s{T3}, 1")
    a(f"s_bfe_u32 s{T5}, s2, 0x10003"); a(f"s_add_u32 s{sGRP}, s{T3}, s{T5}")
    a(f"s_bfe_u32 s{sTYPE}, s2, 0x10004")
    a(f"s_and_b32 s{T4}, s{T4}, 3"); a(f"s_add_u32 s{T4}, s{T4}, s{T2}"); a(f"s_add_u32 s{T4}, s{T4}, s{sGRP}"); a(f"s_and_b32 s{T6}, s{T4}, 7")
    a(f"s_lshr_b32 s{sRH}, s{sW_}, 1"); a(f"s_and_b32 s{sCH}, s{sW_}, 1")
    a(f"s_lshl_b32 s{sKX}, s{T6}, 7")
    a(f"s_lshl_b32 s{sXD}, s{sW_}, 12"); a(f"s_add_u32 s{sXE}, s{sW_}, 16"); a(f"s_lshl_b32 s{sXE}, s{sXE}, 10")
    a(f"s_mul_i32 s{sWD}, s{sW_}, 6144"); a(f"s_add_u32 s{sWD}, s{sWD}, {WOFF}")
    a(f"s_mov_b32 s{sCUR}, 0"); a(f"s_mov_b32 s{sNXT}, {STAGE}"); a(f"s_mov_b32 s{sPRV}, {2*STAGE}")
    a("v_lshrrev_b32 v4, 3, v1"); a("v_and_b32 v5, 7, v1"); a("v_xor_b32 v6, v5, v2")
    a("v_lshlrev_b32 v7, 10, v4"); a("v_lshl_add_u32 v8, v6, 4, v7"); a("v_xor_b32 v9, 64, v8")
    common_start(a)
    a(f"s_cmp_eq_u32 s{sTYPE}, 0"); a("s_cbranch_scc0 Lffn")
    phase1_role(a, "att")
    a.label("Lffn")
    phase1_role(a, "ffn")
    phase2(a)
    stamp_flush(a)
    a.label("Lend")
    a("s_endpgm")
    return a.text()

def main(out):
    t = kernel()
    src = "; Single launch: phase 1 (QKV projection + windowed attention | FFN1 + mish, gate), per-row-block counters in d_debug,\n"
    src += "; phase 2 (output projection of both branches, blended by the gate).\n"
    src += f"; @launch grid=(256,1,1) block=(256,1,1) lds={LDS_BYTES}\n"
    src += '.amdgcn_target "amdgcn-amd-amdhsa--gfx950"\n.text\n' + t + kd(KNAME, 512, 256)
    open(out, "w").write(src)

if __name__ == "__main__":
    if "--instr" in sys.argv: INSTR = True; sys.argv.remove("--instr")
    for x in list(sys.argv):
        if x.startswith("--"):
            sys.argv.remove(x); k, _, v = x[2:].partition("="); OPT[k] = int(v) if v else 1
    AWS_U = 131072 + OPT.get("skew", 0)
    main(sys.argv[1] if len(sys.argv) > 1 else "cdna_kernels/" + NAME + ".s")
```

```python
import sys
from asmlib import *

NAME = "gated_mix__sliding_local_dilated__dense_activation_mish__prompt"
KNAME = NAME + "_kernel"
LOG2E = 0x3fb8aa3b
STAGE = 43008
WOFF = 18432
AWS_U = 131072
G_OFF = 8 << 20
LDS_BYTES = 163840
GA, GB, GC, GC2, R2 = 86016, 0, 43008, 86016 + 16*4096, 28672
INSTR = False
OPT = {"p2b": 2, "r2pre": 4, "rmode": 1, "rot2": 3, "qa": 2, "qm": 7, "qb": 0}
STAMP_OFF = 16 << 20
NST = 12

sW_, sRB, sTYPE, sGRP = 40, 41, 42, 43
sRH, sCH, sBUF, sFREE, sXD, sXE, sWD, sKX, sKW, sKW2, sRS64, sIT, sU0 = range(52, 65)
T0, T1, T2, T3, T4, T5, T6 = range(65, 72)
XO, WO, XB, WB, XA, WA = 16, 21, 27, 29, 35, 37
WA1 = 208
GX, GW, GR, BIAS = 44, 52, 56, 58
vFLG, vCLR = 94, 95
FLAG_OFF = 16384
vGST, vBD, vBF, vAO, vGRD, vOUT = 86, 87, 88, 208, 92, 93
ACC = 96
BF32 = 70
SET = [0, 44]

def srd(a, s, ptr, size):
    a(f"s_mov_b32 s{s}, s{ptr}")
    a(f"s_and_b32 s{s+1}, s{ptr+1}, 0xffff")
    a(f"s_mov_b32 s{s+2}, {size}")
    a(f"s_mov_b32 s{s+3}, 0x00020000")

def istamp(a, k):
    if INSTR and OPT.get("iter"): a(f"{'s_memtime' if OPT.get('cyc') else 's_memrealtime'} s[{72+2*k}:{73+2*k}]")
def stamp(a, k):
    if OPT.get("iter") and k not in (0, NST-1): return
    if INSTR: a(f"{'s_memtime' if OPT.get('cyc') else 's_memrealtime'} s[{72+2*k}:{73+2*k}]")
def stamp_flush_dbg(a):
    a("s_waitcnt vmcnt(0) lgkmcnt(0)")
    stamp(a, NST-1)
    a("s_waitcnt lgkmcnt(0)")
    a(f"s_cmp_eq_u32 s{sW_}, 0"); a("s_cbranch_scc0 Ldbg_done")
    a("v_cmp_eq_u32 vcc, 0, v1"); a("s_and_saveexec_b64 s[28:29], vcc")
    slots = [1,2,3,5,6,7,9,10,11,13,14,15]
    order = [0, 0, 1, 3, 4, 5, 6, 7, 8, 9, 10, 11]
    for k, (sl, stp) in enumerate(zip(slots, order)):
        a(f"v_mov_b32 v2, s{72+2*stp}")
        if k == 0: a("v_not_b32 v2, v2")
        a(f"v_mov_b32 v3, {4*sl}")
        a("global_atomic_umax v3, v2, s[50:51]")
    a("s_mov_b64 exec, s[28:29]")
    a.label("Ldbg_done")
def stamp_flush(a):
    if not INSTR: return
    if OPT.get("dbg"): return stamp_flush_dbg(a)
    a("s_waitcnt vmcnt(0) lgkmcnt(0)")
    stamp(a, NST-1)
    a("s_waitcnt lgkmcnt(0)")
    a(f"s_add_u32 s24, s10, {STAMP_OFF}"); a("s_addc_u32 s25, s11, 0"); a("s_and_b32 s25, s25, 0xffff")
    a("s_mov_b32 s26, 65536"); a("s_mov_b32 s27, 0x00020000")
    a(f"s_lshl_b32 s{T0}, s2, 8"); a(f"s_lshl_b32 s{T1}, s{sW_}, 6"); a(f"s_add_u32 s{T0}, s{T0}, s{T1}")
    a(f"v_mov_b32 v0, s{T0}")
    a("v_cmp_eq_u32 vcc, 0, v1"); a("s_and_saveexec_b64 s[28:29], vcc")
    for k in range(NST):
        a(f"v_mov_b32 v2, s{72+2*k}"); a(f"buffer_store_dword v2, v0, s[24:27], 0 offen offset:{4*k}")
    a("s_mov_b64 exec, s[28:29]")

def bias_reg(ct, r):
    k = 4*ct + r
    return (BF32 + k) if k < 16 else (8 + k - 16)

def p1_reads(role, st, h):
    base = SET[st]
    nx = 5 if role == "att" else 4
    w = []
    for tt in range(6):
        off = h * 4096 + ((tt >> 1) * 8192 if role == "att" else 0)
        r = base + 20 + 4 * tt; ad = (WA if h == 0 else WA1) + (tt & 1 if role == "att" else tt)
        w.append(f"ds_read_b64_tr_b16 {ar(r,2)}, v{ad} offset:{off}")
        w.append(f"ds_read_b64_tr_b16 {ar(r+2,2)}, v{ad} offset:{off+512}")
    x = [f"ds_read_b128 {ar(base+4*t,4)}, v{XA+h} offset:{t*2048}" for t in range(nx)]
    if role == "att":
        return [w[4], w[5], x[0], x[1], x[2], w[6], w[7], x[3], x[4], w[0], w[1], w[2], w[3]] + w[8:]
    return [w[0], w[1], x[0], x[1], x[2], x[3]] + w[2:]

def p1_mfmas(role, st, first=False):
    base = SET[st]; X = lambda t: ar(base + 4*t, 4); W = lambda t: ar(base + 20 + 4*t, 4)
    out = []
    def m(c, A, B, cin=None):
        C = vr(c,4) if not first else cin
        out.append(f"v_mfma_f32_16x16x32_bf16 {vr(c,4)}, {A}, {B}, {C}")
    if role == "att":
        for a_ in range(2):
            for t in range(5): m(ACC + 4*(8 + 2*t + a_), W(2+a_), X(t), "0")
        for a_ in range(2):
            for t in range(1, 5): m(ACC + 4*(2*(t-1) + a_), W(a_), X(t), "0")
        for a_ in range(2):
            for t in range(5): m(ACC + 4*(18 + 2*t + a_), X(t), W(4+a_), "0")
    else:
        for ct in range(6):
            for rt in range(4): m(ACC + 4*(6*rt + ct), W(ct), X(rt), vr(bias_reg(ct,0), 4))
    return out

def dma_x(role, bufreg):
    g = []
    if role == "att":
        g.append(([f"s_add_u32 m0, s{bufreg}, s{sXE}"],
                  [f"s_cmp_eq_u32 s{sXF}, 1", "s_cbranch_scc0 1f", f"buffer_load_dwordx4 v{XO+4}, s[16:19], s{sKX} offen lds", "1:"]))
    for j in range(4):
        m = f"s_add_u32 m0, s{bufreg}, s{sXD}" if j == 0 else "s_add_u32 m0, m0, 1024"
        g.append(([m], [f"buffer_load_dwordx4 v{XO+j}, s[16:19], s{sKX} offen lds"]))
    return g
def dma_w(bufreg, js, sw):
    g = []
    for k, j in enumerate(js):
        if k == 0: m = [f"s_add_u32 m0, s{bufreg}, s{sWD}"] + ([f"s_add_u32 m0, m0, {1024*j}"] if j else [])
        else: m = ["s_add_u32 m0, m0, 1024"]
        g.append((m, [f"buffer_load_dwordx4 v{WO+j}, s[20:23], s{sw} offen lds"]))
    return g
def h1(role, buf): return dma_x(role, buf) + dma_w(buf, [0], sKW)
def h2(role, buf, sw=None): return dma_w(buf, [1,2,3,4,5], sKW2 if sw is None else sw)

SCC_READ = ("s_cselect", "s_cbranch_scc", "s_addc", "s_subb")
SCC_WRITE = ("s_cmp", "s_add_u32", "s_sub_u32", "s_addc", "s_subb", "s_and_b", "s_or_b", "s_xor_b", "s_lshl_b", "s_lshr_b", "s_bitcmp", "s_add_i32")
def chunks(lines):
    n = len(lines); live = [False]*(n+1)
    for i in range(n-1, -1, -1):
        x = lines[i]
        if x.startswith(SCC_READ): live[i] = True
        elif x.startswith(SCC_WRITE): live[i] = False
        else: live[i] = live[i+1]
    out = []
    for i, x in enumerate(lines):
        if out and live[i]: out[-1].append(x)
        else: out.append([x])
    return out
def capture(fn, *args):
    t = Asm(); fn(t, *args); return [x.strip() for x in t.L]

def emit_pairs(a, pairs):
    for m, l in pairs:
        for x in m: a(x)
        a("s_nop 0")
        for x in l: a(x)

def schedule(mf, reads, dmas, extra=(), dma_first=2, read_span=20, xspan=None, tail=()):
    n = len(mf); after = [[] for _ in range(n)]
    if dmas:
        step = (n - dma_first) / len(dmas)
        for k, (m, l) in enumerate(dmas):
            p = int(dma_first + k * step)
            after[max(p-1, 0)] += m
            after[p] += l
    for k, r in enumerate(reads):
        after[min(int(k * read_span / len(reads)), n-1)].insert(0, r)
    for k, x in enumerate(extra):
        lo, hi = xspan or (0, n)
        after[min(int(lo + k * (hi - lo) / len(extra)), n-1)] += (x if isinstance(x, list) else [x])
    for k, x in enumerate(tail):
        after[n - len(tail) - 1 + k] += (x if isinstance(x, list) else [x])
    out = []
    for i in range(n):
        out.append(mf[i]); out += after[i]
    return out

sPRV, sCUR, sNXT = sFREE, sBUF, sIT + 0
sNXT = 63
def addr_set(role, h, sreg):
    n = 2 if role == "att" else 6
    w = WA if h == 0 else WA1
    return [f"v_add_u32 v{XA+h}, s{sreg}, v{XB+h}"] + [f"v_add_u32 v{w+t}, s{sreg}, v{WB+t}" for t in range(n)]
def rot_instrs():
    return [[f"s_mov_b32 s{T0}, s{sPRV}", f"s_mov_b32 s{sPRV}, s{sCUR}"], [f"s_mov_b32 s{sCUR}, s{sNXT}", f"s_mov_b32 s{sNXT}, s{T0}"]]
def adv_k():
    return [f"s_add_u32 s{sKX}, s{sKX}, 128", f"s_and_b32 s{sKX}, s{sKX}, 1023",
            f"s_add_u32 s{sKW}, s{sKW}, s{sRS64}", f"s_cmp_eq_u32 s{sKW}, s22", f"s_cselect_b32 s{sKW}, 0, s{sKW}"]
def adv_x(): return [f"s_add_u32 s{sKX}, s{sKX}, 128", f"s_and_b32 s{sKX}, s{sKX}, 1023"]
def adv_w(): return [f"s_add_u32 s{sKW}, s{sKW}, s{sRS64}", f"s_cmp_eq_u32 s{sKW}, s22", f"s_cselect_b32 s{sKW}, 0, s{sKW}"]
def with_adv(pieces, adv):
    m, l = pieces[-1]
    return pieces[:-1] + [(m, l + adv)]
def all_x(role, buf): return with_adv(dma_x(role, buf), adv_x())
def all_w(buf): return with_adv(dma_w(buf, [0,1,2,3,4,5], sKW), adv_w())
def adv_instrs():
    return [[f"s_mov_b32 s{sKW2}, s{sKW}"] + adv_k()]

def gate_instrs():
    g = []
    for q in range(4):
        for row in range(2):
            g.append(f"v_dot2_f32_bf16 v{GR+row}, v{GX+4*row+q}, v{GW+q}, {'0' if q == 0 else 'v%d' % (GR+row)}")
    g += ["s_nop 0", "s_nop 0"]
    for sh in (8, 4, 2, 1):
        for row in range(2):
            g.append(f"v_add_f32_dpp v{GR+row}, v{GR+row}, v{GR+row} row_ror:{sh} row_mask:0xf bank_mask:0xf")
    for op in ("v_permlane16_swap_b32", "v_permlane32_swap_b32"):
        for row in range(2): g.append(f"v_mov_b32 v{4+row}, v{GR+row}")
        for row in range(2): g.append(f"{op} v{GR+row}, v{4+row}")
        for row in range(2): g.append(f"v_add_f32 v{GR+row}, v{GR+row}, v{4+row}")
    for row in range(2): g.append(f"v_mul_f32 v{GR+row}, 0xbfb8aa3b, v{GR+row}")
    for row in range(2): g.append(f"v_exp_f32 v{GR+row}, v{GR+row}")
    for row in range(2): g.append(f"v_add_f32 v{GR+row}, 1.0, v{GR+row}")
    for row in range(2): g.append(f"v_rcp_f32 v{GR+row}, v{GR+row}")
    return g

def body(a, role, d1, d2, wait, first=False, last=False, x1=(), x2=(), dx1=(), dx2=(), loop=None, tail1=(), noadv=False):
    up0 = addr_set(role, 0, sNXT) if not last else []
    for x in schedule(p1_mfmas(role, 0, first), p1_reads(role, 1, 1), list(d1) + list(dx1), list(x1) + up0,
                      dma_first=1 if first else 2, tail=tail1, xspan=(0, 18)): a(x)
    if last:
        a("s_waitcnt lgkmcnt(0)")
        a("s_barrier")
        for x in schedule(p1_mfmas(role, 1), [], list(d2) + list(dx2), x2): a(x)
        return
    a(f"s_waitcnt vmcnt({wait}) lgkmcnt(0)")
    a("s_barrier")
    tail = (adv_instrs() if d2 and not noadv else []) + rot_instrs()
    if loop: tail.append([f"s_add_u32 s{sLOOP}, s{sLOOP}, 1", f"s_cmp_lt_u32 s{sLOOP}, {loop[1]}"])
    for x in schedule(p1_mfmas(role, 1), p1_reads(role, 0, 0), list(d2) + list(dx2), list(x2) + addr_set(role, 1, sNXT),
                      tail=tail, xspan=(0, 20)): a(x)
    a("s_waitcnt lgkmcnt(0)")
    if loop: a(f"s_cbranch_scc1 {loop[0]}")

sLOOP = 66
sBA, sBB, sBC, sBR = 96, 97, 98, 101
def b_base(step):
    if step < 4: return sBA, step*4096
    if step < 6: return sBB, (step-4)*4096
    if step < 9: return sBC + step - 6, 0
    if step < 13: return sBA, (step-9)*4096
    if step < 15: return sBB, (step-13)*4096
    return sBC, 0
sUB, sBO, sUA = 44, 45, 8
def next_step(u, dst, shift, pos):
    if pos >= 14:
        l = [f"s_cmp_gt_u32 s{sN2}, {pos}", f"s_cselect_b32 s{dst}, s{u}, 31",
             f"s_lshl_b32 s{dst}, s{dst}, {shift}" if shift < 32 else f"s_mul_i32 s{dst}, s{dst}, {shift}"]
    else:
        l = [f"s_lshl_b32 s{dst}, s{u}, {shift}" if shift < 32 else f"s_mul_i32 s{dst}, s{u}, {shift}"]
    return l + [f"s_add_u32 s{u}, s{u}, 1", f"s_cmp_eq_u32 s{u}, s{sN2}", f"s_cselect_b32 s{u}, 0, s{u}"]
def b_dma(step):
    g = []; sb, im = b_base(step)
    for dd in range(4):
        m = next_step(sUB, sBO, 15, step) if dd == 0 else []
        g.append((m + [f"s_add_u32 m0, s{sb}, {im + dd*1024}", f"s_add_u32 s57, s{sBO}, {dd*8192}"],
                  [f"buffer_load_dwordx4 v{vBD}, s[24:27], s57 offen lds"]))
    return g
def b_addr(step, regs):
    sb, im = b_base(step)
    return [f"v_add_u32 v{regs[c]}, s{sb}, v{vBF+c}" for c in range(4)]
def b_reads(step, dst, regs):
    out = []; sb, im = b_base(step)
    for c in range(4):
        out.append(f"ds_read_b64_tr_b16 {ar(dst+4*c,2)}, v{regs[c]} offset:{im}")
        out.append(f"ds_read_b64_tr_b16 {ar(dst+4*c+2,2)}, v{regs[c]} offset:{im+2048}")
    return out

sRB2, sCT2, sU2, sN2 = 12, 13, 14, 15
def p2_scalar_setup(a):
    a(f"s_and_b32 s{T0}, s2, 7"); a(f"s_lshr_b32 s{T1}, s2, 3")
    if OPT.get("p2b", 1) == 1:
        a(f"s_lshl_b32 s{sRB2}, s{T0}, 2"); a(f"s_lshr_b32 s{T2}, s{T1}, 3"); a(f"s_add_u32 s{sRB2}, s{sRB2}, s{T2}")
        a(f"s_and_b32 s{sCT2}, s{T1}, 7")
    else:
        a(f"s_lshr_b32 s{sRB2}, s{T0}, 1"); a(f"s_lshl_b32 s{sRB2}, s{sRB2}, 3"); a(f"s_lshr_b32 s{T2}, s{T1}, 2"); a(f"s_add_u32 s{sRB2}, s{sRB2}, s{T2}")
        a(f"s_and_b32 s{sCT2}, s{T0}, 1"); a(f"s_lshl_b32 s{sCT2}, s{sCT2}, 2"); a(f"s_and_b32 s{T2}, s{T1}, 3")
        a(f"s_xor_b32 s{T2}, s{T2}, {OPT.get('cx', 3)}"); a(f"s_add_u32 s{sCT2}, s{sCT2}, s{T2}")
    a(f"s_mov_b32 s{sU2}, 0"); a(f"s_mov_b32 s{sN2}, 16")
    for w, u0, n in ((1,16,15), (2,31,14), (3,45,14)):
        a(f"s_cmp_eq_u32 s{sW_}, {w}"); a(f"s_cselect_b32 s{sU2}, {u0}, s{sU2}"); a(f"s_cselect_b32 s{sN2}, {n}, s{sN2}")
    a(f"s_lshl_b32 s{sBA}, s{sW_}, 14"); a(f"s_add_u32 s{sBA}, s{sBA}, {GA}")
    a(f"s_lshl_b32 s{sBB}, s{sW_}, 13")
    a(f"s_mul_i32 s{T0}, s{sW_}, 12288"); a(f"s_add_u32 s{T0}, s{T0}, {GC}")
    for k in range(3):
        a(f"s_add_u32 s{sBC+k}, s{T0}, {4096*k}")
    a(f"s_cmp_eq_u32 s{sW_}, 3")
    a(f"s_cselect_b32 s{sBC+1}, {GC2}, s{sBC+1}"); a(f"s_cselect_b32 s{sBC+2}, {GC2+4096}, s{sBC+2}")
    a(f"s_mul_i32 s{sBR}, s{sW_}, {R2}")
    a(f"s_sub_u32 s{T0}, s{sU2}, 16"); a(f"s_lshl_b32 s{T0}, s{T0}, 15"); a(f"s_add_u32 s{T2}, s44, s{T0}"); a(f"s_addc_u32 s{T3}, s45, 0")
    a(f"s_cmp_eq_u32 s{sW_}, 0"); a(f"s_cselect_b32 s24, s8, s{T2}"); a(f"s_cselect_b32 s25, s9, s{T3}"); a("s_and_b32 s25, s25, 0xffff")
    a(f"s_lshl_b32 s26, s{sN2}, 15"); a("s_mov_b32 s27, 0x00020000")
    a(f"s_mul_i32 s{T0}, s{sU2}, {AWS_U}"); a(f"s_add_u32 s28, s10, s{T0}"); a("s_addc_u32 s29, s11, 0"); a("s_and_b32 s29, s29, 0xffff")
    a(f"s_mul_i32 s30, s{sN2}, {AWS_U}"); a("s_mov_b32 s31, 0x00020000")
    if OPT.get("rot2", 1) == 3:
        a(f"s_and_b32 s{T0}, s{sRB2}, {OPT.get('qm', 3)}"); a(f"s_mul_i32 s{T0}, s{T0}, {OPT.get('qa', 4)}")
        a(f"s_and_b32 s{T1}, s{sCT2}, {OPT.get('qc', 3)}"); a(f"s_mul_i32 s{T1}, s{T1}, {OPT.get('qb', 2)}"); a(f"s_add_u32 s{T0}, s{T0}, s{T1}")
    elif OPT.get("rot2", 1) == 1:
        a(f"s_and_b32 s{T0}, s{sRB2}, 3"); a(f"s_lshl_b32 s{T0}, s{T0}, 2"); a(f"s_lshl_b32 s{T1}, s{sCT2}, 1"); a(f"s_add_u32 s{T0}, s{T0}, s{T1}")
    elif OPT.get("p2b", 1) == 2:
        a(f"s_and_b32 s{T0}, s{sRB2}, 7"); a(f"s_lshl_b32 s{T0}, s{T0}, 1")
        a(f"s_lshr_b32 s{T1}, s{sRB2}, 3"); a(f"s_and_b32 s{T1}, s{T1}, 1"); a(f"s_add_u32 s{T0}, s{T0}, s{T1}")
        a(f"s_and_b32 s{T1}, s{sCT2}, 3"); a(f"s_lshl_b32 s{T1}, s{T1}, 2"); a(f"s_add_u32 s{T0}, s{T0}, s{T1}")
    else:
        a(f"s_and_b32 s{T0}, s{sRB2}, 3"); a(f"s_lshl_b32 s{T0}, s{T0}, 2")
        a(f"s_lshr_b32 s{T1}, s{sRB2}, 2"); a(f"s_and_b32 s{T1}, s{T1}, 3"); a(f"s_add_u32 s{T0}, s{T0}, s{T1}")
        a(f"s_and_b32 s{T1}, s{sCT2}, 3"); a(f"s_lshl_b32 s{T1}, s{T1}, 1"); a(f"s_add_u32 s{T0}, s{T0}, s{T1}")
    a(f"s_sub_u32 s{T1}, s{T0}, s{sN2}"); a(f"s_cmp_ge_u32 s{T0}, s{sN2}"); a(f"s_cselect_b32 s{sUB}, s{T1}, s{T0}")
    a(f"s_mov_b32 s{sUA}, s{sUB}")

def mix(a, valu, dmas, every):
    d = list(dmas); cnt = 0
    for k, x in enumerate(valu):
        a(x)
        if x.endswith(":") or x.startswith("s_cbranch"): continue
        cnt += 1
        if d and cnt % every == every - 2:
            for y in d[0][0]: a(y)
        if d and cnt % every == 0:
            for y in d[0][1]: a(y)
            d.pop(0)
    return d

def att_epilogue():
    e = []
    Q = lambda t, h: ACC + 4*(2*(t-1) + h)
    Kc = lambda t, h: ACC + 4*(8 + 2*t + h)
    V = lambda t, h: ACC + 4*(18 + 2*t + h)
    KF, VF, QF = 208, 228, 16
    kf = lambda t, h: KF + 10*h + 2*t
    vf = lambda t, h: VF + 10*h + 2*t
    qf = lambda t, h: QF + 2*(2*(t-1) + h)
    cv = lambda d, s: [f"v_cvt_pk_bf16_f32 v{d}, v{s}, v{s+1}", f"v_cvt_pk_bf16_f32 v{d+1}, v{s+2}, v{s+3}"]
    combos = [(t,h) for t in range(1,5) for h in range(2)]
    MC, MP, MF, SEL0, SEL1, ONES = 70, 72, 74, 76, 77, 78
    for t in range(5):
        for h in range(2): e += cv(kf(t,h), Kc(t,h))
    for (t,h) in combos: e += cv(qf(t,h), Q(t,h))
    S = lambda ci, blk: ACC + 8*ci + 4*blk
    vcv = []
    for t in range(5):
        for h in range(2): vcv += cv(vf(t,h), V(t,h))
    sm = []
    for ci,(t,h) in enumerate(combos):
        sm.append(f"v_mfma_f32_16x16x16_bf16 {vr(S(ci,0),4)}, {vr(kf(t-1,h),2)}, {vr(qf(t,h),2)}, 0")
        sm.append(f"v_mfma_f32_16x16x16_bf16 {vr(S(ci,1),4)}, {vr(kf(t,h),2)}, {vr(qf(t,h),2)}, 0")
    e.append("s_nop 1")
    for k, m in enumerate(sm):
        e.append(m)
        e += vcv[k*20//16:(k+1)*20//16]
    e += ["s_nop 7"]
    A = lambda ci: 160 + 4*ci
    for ci in range(8):
        for blk in range(2):
            s = S(ci, blk)
            e.append(f"v_cndmask_b32 v{A(ci)+2*blk}, v{s}, v{s+1}, s[46:47]")
            e.append(f"v_cndmask_b32 v{A(ci)+2*blk+1}, v{s+2}, v{s+3}, s[46:47]")
    for ci,(t,h) in enumerate(combos):
        mp = MF if t == 1 else MP
        e.append(f"v_pk_fma_f32 {vr(A(ci),2)}, {vr(A(ci),2)}, s[0:1], {vr(mp,2)} op_sel_hi:[1,0,1]")
        e.append(f"v_pk_fma_f32 {vr(A(ci)+2,2)}, {vr(A(ci)+2,2)}, s[0:1], {vr(MC,2)} op_sel_hi:[1,0,1]")
    MX = 4
    for ci in range(8):
        e.append(f"v_max3_f32 v{MX+ci}, v{A(ci)}, v{A(ci)+1}, v{A(ci)+2}")
    for ci in range(8):
        e.append(f"v_max_f32 v{MX+ci}, v{MX+ci}, v{A(ci)+3}")
    for q in range(2):
        b = MX + 4*q
        e += ["s_nop 0"] if q == 0 else []
        e.append(f"v_permlane32_swap_b32 v{b}, v{b+1}"); e.append(f"v_permlane32_swap_b32 v{b+2}, v{b+3}")
    for q in range(2):
        b = MX + 4*q
        e.append(f"v_max_f32 v{b}, v{b}, v{b+1}"); e.append(f"v_max_f32 v{b+2}, v{b+2}, v{b+3}")
    e.append("s_nop 0")
    for q in range(2):
        b = MX + 4*q
        e.append(f"v_permlane16_swap_b32 v{b}, v{b+2}")
    e.append("s_nop 0")
    for q in range(2):
        b = MX + 4*q
        e.append(f"v_max_f32 v{b}, v{b}, v{b+2}")
    for q in range(2):
        b = MX + 4*q
        e.append(f"v_mov_b32 v{b+1}, v{b}")
    e.append("s_nop 0")
    for q in range(2):
        b = MX + 4*q
        e.append(f"v_permlane32_swap_b32 v{b}, v{b+1}")
    e.append("s_nop 0")
    for q in range(2):
        b = MX + 4*q
        e.append(f"v_mov_b32 v{b+2}, v{b}"); e.append(f"v_mov_b32 v{b+3}, v{b+1}")
    e.append("s_nop 0")
    for q in range(2):
        b = MX + 4*q
        e.append(f"v_permlane16_swap_b32 v{b}, v{b+2}")
        e.append(f"v_permlane16_swap_b32 v{b+1}, v{b+3}")
    e.append("s_nop 0")
    for ci in range(8):
        e.append(f"v_pk_add_f32 {vr(A(ci),2)}, {vr(A(ci),2)}, {vr(MX+ci - (MX+ci)%2,2)} op_sel:[0,{(MX+ci)%2}] op_sel_hi:[1,{(MX+ci)%2}] neg_lo:[0,1] neg_hi:[0,1]")
        e.append(f"v_pk_add_f32 {vr(A(ci)+2,2)}, {vr(A(ci)+2,2)}, {vr(MX+ci - (MX+ci)%2,2)} op_sel:[0,{(MX+ci)%2}] op_sel_hi:[1,{(MX+ci)%2}] neg_lo:[0,1] neg_hi:[0,1]")
    P = lambda ci: ACC + 4*ci
    for ci in range(8):
        for r in range(4): e.append(f"v_exp_f32 v{A(ci)+r}, v{A(ci)+r}")
        if ci > 0:
            c1 = ci - 1
            e += [f"v_cvt_pk_bf16_f32 v12, v{A(c1)}, v{A(c1)+1}", f"v_cvt_pk_bf16_f32 v13, v{A(c1)+2}, v{A(c1)+3}",
                  f"v_perm_b32 v{P(c1)}, v12, v12, v{SEL0}", f"v_perm_b32 v{P(c1)+1}, v12, v12, v{SEL1}",
                  f"v_perm_b32 v{P(c1)+2}, v13, v13, v{SEL0}", f"v_perm_b32 v{P(c1)+3}, v13, v13, v{SEL1}"]
    e.append("s_nop 0")
    e += [f"v_cvt_pk_bf16_f32 v12, v{A(7)}, v{A(7)+1}", f"v_cvt_pk_bf16_f32 v13, v{A(7)+2}, v{A(7)+3}",
          f"v_perm_b32 v{P(7)}, v12, v12, v{SEL0}", f"v_perm_b32 v{P(7)+1}, v12, v12, v{SEL1}",
          f"v_perm_b32 v{P(7)+2}, v13, v13, v{SEL0}", f"v_perm_b32 v{P(7)+3}, v13, v13, v{SEL1}"]
    e.append("s_nop 1")
    O = lambda ci: 128 + 4*ci
    L = lambda ci: 160 + 4*ci
    for ci,(t,h) in enumerate(combos):
        e.append(f"v_mfma_f32_16x16x32_bf16 {vr(O(ci),4)}, {vr(vf(t-1,h),4)}, {vr(P(ci),4)}, 0")
        e.append(f"v_mfma_f32_16x16x32_bf16 {vr(L(ci),4)}, {vr(ONES,4)}, {vr(P(ci),4)}, 0")
    e.append("s_nop 6")
    for ci in range(8): e.append(f"v_rcp_f32 v{MX+ci}, v{L(ci)}")
    e.append("s_nop 0")
    for ci in range(8):
        sel = (MX+ci) % 2; pr = vr(MX+ci - sel, 2)
        e.append(f"v_pk_mul_f32 {vr(O(ci),2)}, {vr(O(ci),2)}, {pr} op_sel:[0,{sel}] op_sel_hi:[1,{sel}]")
        e.append(f"v_pk_mul_f32 {vr(O(ci)+2,2)}, {vr(O(ci)+2,2)}, {pr} op_sel:[0,{sel}] op_sel_hi:[1,{sel}]")
    for t in range(1,5):
        d = 16 + 4*(t-1)
        for h in range(2): e += cv(d + 2*h, O(2*(t-1)+h))
        e.append(f"buffer_store_dwordx4 {vr(d,4)}, v250, s[32:35], s{T6} offen offset:{(t-1)*1024} sc1")
    return e

def att_consts(a):
    a("s_mov_b32 s46, 0xaaaaaaaa"); a("s_mov_b32 s47, 0xaaaaaaaa")
    a("s_mov_b32 s0, 0x3eb8aa3b"); a("s_mov_b32 s1, 0x3eb8aa3b")
    a("v_and_b32 v8, 14, v3"); a("v_lshlrev_b32 v9, 2, v2"); a("v_sub_u32 v8, v8, v9")
    a("v_mov_b32 v9, 0xf149f2ca")
    for dst, blk in ((70, 0), (72, 16)):
        for k in range(2):
            a(f"v_add_u32 v10, {blk - 2*k}, v8")
            a("v_cmp_gt_u32 s[6:7], 15, v10")
            a("s_nop 1")
            a(f"v_cndmask_b32 v{dst+k}, v9, 0, s[6:7]")
    a(f"s_or_b32 s{T0}, s{sRB}, s{sRH}"); a(f"s_cmp_eq_u32 s{T0}, 0"); a("s_cselect_b64 s[6:7], -1, 0")
    for k in range(2): a(f"v_cndmask_b32 v{74+k}, v{72+k}, v9, s[6:7]")
    a("v_mov_b32 v76, 0x0c0c0100"); a("v_mov_b32 v10, 0x01000c0c"); a("v_cndmask_b32 v76, v76, v10, s[46:47]")
    a("v_mov_b32 v77, 0x0c0c0302"); a("v_mov_b32 v10, 0x03020c0c"); a("v_cndmask_b32 v77, v77, v10, s[46:47]")
    for r in range(4): a(f"v_mov_b32 v{78+r}, 0x3f803f80")
    a(f"s_lshl_b32 s{T6}, s{sGRP}, 1"); a(f"s_add_u32 s{T6}, s{T6}, s{sCH}"); a(f"s_mul_i32 s{T6}, s{T6}, {AWS_U}")
    a(f"s_lshl_b32 s{T0}, s{sRB}, 3"); a(f"s_lshl_b32 s{T1}, s{sRH}, 2"); a(f"s_add_u32 s{T0}, s{T0}, s{T1}"); a(f"s_lshl_b32 s{T0}, s{T0}, 10")
    a("v_lshlrev_b32 v250, 4, v1"); a(f"v_add_u32 v250, s{T0}, v250")

def ffn_pairs(m, rr, D):
    e = []
    prs = [ACC + 4*(6*rr + 2*m + hh) + 2*q for hh in range(2) for q in range(2)]
    T = [16 + 2*k for k in range(4)]
    for k in range(4): e.append(f"v_pk_mul_f32 {vr(T[k],2)}, {vr(prs[k],2)}, s[0:1] op_sel_hi:[1,0]")
    for k in range(4):
        e.append(f"v_exp_f32 v{T[k]}, v{T[k]}"); e.append(f"v_exp_f32 v{T[k]+1}, v{T[k]+1}")
    U = [24 + 2*k for k in range(4)]
    for k in range(4): e.append(f"v_pk_fma_f32 {vr(U[k],2)}, {vr(T[k],2)}, 0.5, 1.0 op_sel_hi:[1,0,0]")
    for k in range(4): e.append(f"v_pk_fma_f32 {vr(U[k],2)}, {vr(U[k],2)}, {vr(T[k],2)}, 1.0 op_sel_hi:[1,1,0]")
    for k in range(4):
        e.append(f"v_rcp_f32 v{U[k]}, v{U[k]}"); e.append(f"v_rcp_f32 v{U[k]+1}, v{U[k]+1}")
    for k in range(4): e.append(f"v_pk_fma_f32 {vr(prs[k],2)}, {vr(prs[k],2)}, {vr(U[k],2)}, {vr(prs[k],2)} neg_lo:[1,0,0] neg_hi:[1,0,0]")
    for k in range(4): e.append(f"v_cvt_pk_bf16_f32 v{D+k}, v{prs[k]}, v{prs[k]+1}")
    return e

def ffn_epilogue(nunits):
    e = []
    for m in range(nunits):
        for rr in range(4):
            D = 32 + 4*(rr & 1)
            e += ffn_pairs(m, rr, D)
            e.append(f"buffer_store_dwordx4 {vr(D,4)}, v250, s[32:35], s{T6} offen offset:{rr*1024} sc1")
        e.append(f"s_add_u32 s{T6}, s{T6}, {AWS_U}")
    return e

def ffn_consts(a):
    a(f"s_mov_b32 s0, {LOG2E}"); a(f"s_mov_b32 s1, {LOG2E}")
    a(f"s_mul_i32 s{T6}, s{sCH}, 3"); a(f"s_add_u32 s{T6}, s{T6}, s{sU0}"); a(f"s_add_u32 s{T6}, s{T6}, 16"); a(f"s_mul_i32 s{T6}, s{T6}, {AWS_U}")
    a(f"s_lshl_b32 s{T0}, s{sRB}, 3"); a(f"s_lshl_b32 s{T1}, s{sRH}, 2"); a(f"s_add_u32 s{T0}, s{T0}, s{T1}"); a(f"s_lshl_b32 s{T0}, s{T0}, 10")
    a("v_lshlrev_b32 v250, 4, v1"); a(f"v_add_u32 v250, s{T0}, v250")

def gate_store(a):
    a("v_cmp_eq_u32 s[68:69], 0, v1")
    a("s_nop 1")
    a("s_and_saveexec_b64 s[66:67], s[68:69]")
    a(f"buffer_store_dwordx2 {vr(GR,2)}, v{vGST}, s[36:39], 0 offen sc1")
    a("s_mov_b64 exec, s[66:67]")

NB1 = 9
def weave(a, main, inserts):
    ins = {}
    for p, l in inserts: ins.setdefault(min(p, len(main)-1), []).extend(l)
    for i, x in enumerate(main):
        a(x)
        for y in ins.get(i, []): a(y)

def dma_inserts(dmas, lo, hi):
    out = []
    for k, (m, l) in enumerate(dmas):
        p = int(lo + 2 + k * (hi - lo - 2) / len(dmas))
        out.append((p - 2, m)); out.append((p, l))
    return out

def b_copy(steps):
    tr = [60, 61, 62, 63]; out = []; last = None
    for st in steps:
        sb = b_base(st)[0]
        if sb != last: out += b_addr(st, tr)
        last = sb
        out += b_reads(st, 16*st, tr)
    return out

def is_vmem(x): return x.startswith("buffer_") or x.startswith("global_")
def resolve_waits(flat, init):
    out = []
    for i, x in enumerate(flat):
        if x.startswith("@wait"):
            tag = x.split()[1]
            pos = [j for j in range(i) if flat[j].endswith("; " + tag)]
            n = sum(1 for y in flat[pos[-1]+1:i] if is_vmem(y)) if pos else init[tag] + sum(1 for y in flat[:i] if is_vmem(y))
            out.append(f"s_waitcnt vmcnt({n})")
        else: out.append(x)
    return out
def weave_list(main, inserts):
    ins = {}
    for p, l in inserts: ins.setdefault(min(p, len(main)-1), []).extend(l)
    out = []
    for i, x in enumerate(main):
        out.append(x); out += ins.get(i, [])
    return out
def tag_last(dmas, tag):
    m, l = dmas[-1]
    return dmas[:-1] + [(m, [l[0] + " ; " + tag] + l[1:])]

def staged_epilogue(a, e, rest, P):
    n = len(e)
    r2 = []
    for st in range(NB1, 16): r2 += b_dma(st)
    ins = dma_inserts(tag_last(rest, "R1"), 0, P["r1"])
    ins.append((P["w1"], ["@wait S5"]))
    cp = b_copy(range(0, 6))
    for k, x in enumerate(cp): ins.append((P["w1"] + 1 + int(k * (P["c1"] - P["w1"] - 1) / len(cp)), [x]))
    ins.append((P["c1"] + 2, ["s_waitcnt lgkmcnt(0)"]))
    k2 = P["n2"]; assert k2 <= 24
    ins += dma_inserts(r2[:k2], P["c1"] + 3, P["d2"])
    ins.append((P["w2"], ["@wait R1"]))
    cp = b_copy(range(6, 9))
    for k, x in enumerate(cp): ins.append((P["w2"] + 1 + int(k * (P["c2"] - P["w2"] - 1) / len(cp)), [x]))
    assert P["c2"] < n
    flat = resolve_waits(weave_list(e, ins), {"S5": OPT.get("b7", 8) + 1})
    for x in flat: a(x)
    return r2[k2:]

def count_vmem(lines): return sum(1 for x in lines if x.startswith("buffer_") or x.startswith("global_"))

def epilogue_with_staging(a, R, e, rest, frac):
    n = len(e)
    p_r1, p_cp0, p_cp1, p_bar = frac[0], int(n*frac[1]), int(n*frac[2]), int(n*frac[3])
    assert count_vmem(e[:p_r1+1]) == 0
    ins = dma_inserts(rest, 0, p_r1)
    later = count_vmem(e[:p_cp0+1])
    ins.append((p_cp0, [f"s_waitcnt vmcnt({later})"]))
    cp = round1_copy()
    for k, x in enumerate(cp): ins.append((p_cp0 + int(k * (p_cp1 - p_cp0) / len(cp)), [x]))
    ins.append((p_bar, ["s_waitcnt lgkmcnt(0)", "s_barrier"]))
    r2 = []
    for st in range(NB1, 16): r2 += b_dma(st)
    k2 = OPT.get(R + "r2", 10)
    ins += dma_inserts(r2[:k2], p_bar + 1, n - 1)
    weave(a, e, ins)
    return r2[k2:]

sXF = 3
def common_start(a):
    att = lambda x, y: [f"s_cselect_b32 {x}, {y[0]}, {y[1]}"]
    a(f"s_mul_i32 s{sU0}, s{sGRP}, 6"); a(f"s_mul_i32 s{T0}, s{sGRP}, 5"); a(f"s_add_u32 s{T0}, s{T0}, 3")
    a(f"s_cmp_le_u32 s{sGRP}, 3"); a(f"s_cselect_b32 s{sU0}, s{sU0}, s{T0}")
    a(f"s_lshl_b32 s{T5}, s{sRB}, 17")
    a(f"s_cmp_eq_u32 s{sTYPE}, 0"); a(f"s_cselect_b32 s{T0}, 16384, 0"); a(f"s_cselect_b32 s{sXF}, 1, 0"); a(f"s_sub_u32 s{T5}, s{T5}, s{T0}")
    a(f"s_cmp_lt_u32 s{sW_}, 2"); a(f"s_cselect_b32 s{sXF}, s{sXF}, 0")
    a(f"s_lshl_b32 s{T0}, s{sW_}, 15"); a(f"s_add_u32 s{T0}, s{T0}, s{T5}")
    a(f"s_cmp_lt_i32 s{T0}, 0"); a(f"s_cselect_b32 s{T1}, 16384, 0"); a(f"s_add_u32 s{T1}, s{T1}, s{T0}")
    for j in range(4):
        src = T1 if j < 2 else T0
        if j: a(f"s_add_u32 s{T2}, s{src}, {8192*j}")
        a(f"v_add_u32 v{XO+j}, s{T2 if j else src}, v{8 + (j&1)}")
    a(f"s_lshl_b32 s{T0}, s{sW_}, 13"); a(f"s_add_u32 s{T0}, s{T0}, s{T5}"); a(f"s_add_u32 s{T0}, s{T0}, {128*1024}")
    a(f"s_lshl_b32 s{T1}, s{sCH}, 6"); a(f"v_xor_b32 v10, s{T1}, v8"); a(f"v_add_u32 v{XO+4}, s{T0}, v10")
    a("s_waitcnt lgkmcnt(0)")
    stamp(a, 1)
    srd(a, 16, 4, 2048*1024)
    emit_pairs(a, all_x("att", sCUR))
    a(f"s_lshl_b32 s{T0}, s{sGRP}, 7"); a(f"s_lshl_b32 s{T1}, s{sU0}, 6")
    a(f"s_cmp_eq_u32 s{sTYPE}, 0")
    a(f"s_cselect_b32 s{T4}, s{T0}, s{T1}")
    a(f"s_movk_i32 s{T0}, 2752"); a(f"s_cselect_b32 s{T2}, 3072, s{T0}"); a(f"s_movk_i32 s{T0}, 128"); a(f"s_cselect_b32 s{T3}, 1024, s{T0}")
    a("s_cselect_b32 s20, s6, s12"); a("s_cselect_b32 s21, s7, s13"); a("s_and_b32 s21, s21, 0xffff")
    a(f"s_lshl_b32 s22, s{T2}, 9"); a("s_mov_b32 s23, 0x00020000")
    a(f"s_lshl_b32 s{sRS64}, s{T2}, 6"); a(f"s_mul_i32 s{sKW}, s{T6}, s{sRS64}")
    a(f"v_mul_lo_u32 v7, s{T2}, v4")
    a("v_and_b32 v8, 1, v2"); a("v_lshlrev_b32 v8, 1, v8"); a("v_xor_b32 v8, v8, v5"); a("v_xor_b32 v9, 4, v8")
    a("v_lshl_add_u32 v10, v8, 4, v7"); a("v_lshl_add_u32 v11, v9, 4, v7")
    a(f"s_mul_i32 s{T0}, s{sW_}, 6"); a(f"s_lshr_b32 s{T1}, s{T0}, 3"); a(f"s_and_b32 s{T0}, s{T0}, 7")
    a(f"s_mul_i32 s{T1}, s{T1}, s{T3}"); a(f"s_lshl_b32 s{T5}, s{T2}, 3"); a(f"s_mul_i32 s{T0}, s{T0}, s{T5}")
    a(f"s_add_u32 s{T0}, s{T0}, s{T1}"); a(f"s_add_u32 s{T0}, s{T0}, s{T4}")
    a(f"s_mul_i32 s{T1}, s{T2}, 56"); a(f"s_sub_u32 s{T4}, s{T3}, s{T1}")
    a(f"s_cmp_eq_u32 s{sW_}, 1"); a(f"s_cselect_b32 s{T2}, s{T4}, s{T5}")
    a(f"s_cmp_eq_u32 s{sW_}, 2"); a(f"s_cselect_b32 s{T3}, s{T4}, s{T5}")
    for j in range(6):
        a(f"v_add_u32 v{WO+j}, s{T0}, v{10 + (j&1)}")
        if j < 5: a(f"s_add_u32 s{T0}, s{T0}, s{ {1: T2, 3: T3}.get(j, T5) }")
    a(f"s_cmp_ge_u32 s{sGRP}, 3"); a(f"s_cselect_b32 s{T0}, s{sRH}, 0"); a(f"s_and_b32 s{T0}, s{T0}, s{sTYPE}"); a(f"s_cmp_eq_u32 s{T0}, 1"); a("s_cbranch_scc0 Lwoffdone")
    a("v_lshrrev_b32 v12, 2, v8"); a("v_lshlrev_b32 v12, 30, v12"); a("v_xor_b32 v13, 0x40000000, v12")
    for j in (4, 5): a(f"v_add_u32 v{WO+j}, v{WO+j}, v{12 + (j&1)}")
    a(f"s_cmp_eq_u32 s{sW_}, 3"); a("s_cbranch_scc0 Lwoffdone")
    for j in range(4): a(f"v_add_u32 v{WO+j}, v{WO+j}, v{12 + (j&1)}")
    a.label("Lwoffdone")
    emit_pairs(a, all_w(sCUR))

def misc_setup(a, R):
    j16 = (8 if R == "ffn" else 0)
    a(f"s_add_u32 s{T2}, s{sGRP}, {j16}"); a(f"s_lshl_b32 s{T2}, s{T2}, 3")
    a(f"s_lshl_b32 s{T1}, s{sRB}, 7"); a(f"s_add_u32 s{T2}, s{T2}, s{T1}")
    a(f"s_lshl_b32 s{T1}, s{sW_}, 1"); a(f"s_add_u32 s{T0}, s{T2}, s{T1}")
    a(f"s_lshl_b32 s{T1}, s{T0}, 10"); a(f"s_lshl_b32 s{T0}, s{T0}, 2")
    a("v_lshlrev_b32 v5, 4, v1"); a(f"v_add_u32 v4, s{T1}, v5"); a(f"v_mov_b32 v{vGST}, s{T0}")
    a(f"s_add_u32 s{T2}, s{T2}, {FLAG_OFF}"); a(f"s_lshl_b32 s{T1}, s{sRB}, 4")
    a("v_cmp_eq_u32 s[28:29], 0, v0"); a("v_mov_b32 v7, 0x40000000")
    a(f"v_mov_b32 v8, s{T2}"); a(f"v_mov_b32 v{vCLR}, s{T1}")
    a(f"v_cndmask_b32 v{vFLG}, v7, v8, s[28:29]")
    a(f"s_add_u32 s36, s10, {G_OFF}"); a("s_addc_u32 s37, s11, 0"); a("s_and_b32 s37, s37, 0xffff")
    a("s_mov_b32 s38, 32768"); a("s_mov_b32 s39, 0x00020000")
    a("v_mov_b32 v7, 0")
    a(f"buffer_store_dword v7, v{vFLG}, s[36:39], 0 offen sc1")
    a(f"s_cmp_eq_u32 s{sW_}, 0"); a("s_cselect_b64 s[4:5], 1, 0")
    srd(a, 28, 46, 1024)
    if R == "ffn":
        srd(a, 24, 14, 2752)
        a(f"s_lshl_b32 s{T0}, s{sU0}, 6"); a(f"s_mul_i32 s{T1}, s{sCH}, 192"); a(f"s_add_u32 s{T0}, s{T0}, s{T1}")
        a("v_lshlrev_b32 v6, 3, v2"); a(f"v_add_u32 v6, s{T0}, v6")

def phase1_role(a, R):
    misc_setup(a, R)
    a(f"buffer_load_dwordx4 {vr(GX,4)}, v4, s[16:19], 0 offen"); a(f"buffer_load_dwordx4 {vr(GX+4,4)}, v4, s[16:19], 0 offen offset:1024")
    a(f"buffer_load_dwordx4 {vr(GW,4)}, v5, s[28:31], 0 offen")
    if R == "ffn":
        for tt in range(6): a(f"buffer_load_dwordx2 {vr(BIAS+2*tt,2)}, v6, s[24:27], 0 offen offset:{tt*32}")
    late = chunks(capture(late_setup, R))
    pieces = all_x(R, sNXT)
    per = -(-len(late) // (len(pieces) + 1)); k = 0
    for m, l in pieces:
        for ch in late[k:k+per]:
            for x in ch: a(x)
        k += per
        for x in m: a(x)
        a("s_nop 0")
        for x in l: a(x)
    for ch in late[k:]:
        for x in ch: a(x)
    stamp(a, 2)
    for x in addr_set(R, 0, sCUR) + addr_set(R, 1, sCUR): a(x)
    (att_consts if R == "att" else ffn_consts)(a)
    a("s_waitcnt vmcnt(4)")
    a("s_barrier")
    stamp(a, 3)
    for x in p1_reads(R, 0, 0): a(x)
    if R == "ffn":
        for tt in range(6):
            for q in range(2):
                a(f"v_lshlrev_b32 v{bias_reg(tt,2*q)}, 16, v{BIAS+2*tt+q}")
                a(f"v_and_b32 v{bias_reg(tt,2*q+1)}, 0xffff0000, v{BIAS+2*tt+q}")
    a("s_waitcnt lgkmcnt(0)")
    istamp(a, 1)
    g = gate_instrs()
    body(a, R, all_w(sNXT) + all_x(R, sPRV), all_w(sPRV) + all_x(R, sCUR), 4, first=True, noadv=True, x1=g[:22], x2=g[22:])
    istamp(a, 2)
    body(a, R, all_w(sPRV), h1(R, sCUR), 10, x2=[["v_mov_b32 v7, 1", "s_and_saveexec_b64 s[6:7], s[4:5]", "s_cbranch_execz 2f", f"global_atomic_add v{vCLR}, v7, s[50:51] sc1", "2:", "s_mov_b64 exec, s[6:7]"]])
    if OPT.get("iter"):
        for it in range(2, 5):
            istamp(a, 1 + it)
            body(a, R, h2(R, sPRV), h1(R, sCUR), 10)
    else:
        a(f"s_mov_b32 s{sLOOP}, 2")
        a.label(f"L{R}_loop")
        pf = [[f"s_cmp_eq_u32 s{sLOOP}, s9", "s_cbranch_scc0 3f", "buffer_load_dword v248, v249, s[24:27], 0 offen", "3:"]] if OPT.get("bpf", 0) else []
        body(a, R, h2(R, sPRV), h1(R, sCUR), 10, loop=(f"L{R}_loop", 5), x1=pf)
    istamp(a, 6)
    bd = []
    for st in range(NB1): bd += b_dma(st)
    n = OPT.get("bper", 6)
    assert 4*n <= 24 and 3*n <= 24 and 2*n <= 16
    body(a, R, h2(R, sPRV), [], 10, dx2=bd[:n])
    istamp(a, 7)
    body(a, R, [], [], 2*n, dx1=bd[n:2*n], dx2=bd[2*n:3*n])
    fl = []
    istamp(a, 8)
    n7 = OPT.get("b7", 8)
    body(a, R, [], [], 0, last=True, x1=fl, dx1=bd[3*n:4*n], dx2=bd[4*n:4*n+n7])
    rest = bd[4*n+n7:]
    istamp(a, 9)
    stamp(a, 4)
    a("global_load_dword v64, v43, s[50:51] sc1")
    a.nop(8)
    if R == "att":
        weave(a, att_epilogue(), dma_inserts(rest, 0, 40))
    else:
        e = ffn_epilogue(3); k = 2*len(e)//3
        weave(a, e[:k], dma_inserts(rest, 0, 30))
        a(f"s_cmp_ge_u32 s{sGRP}, 3"); a(f"s_cselect_b32 s{T0}, s{sCH}, 0"); a(f"s_cmp_eq_u32 s{T0}, 1"); a("s_cbranch_scc1 Lffn_done")
        for x in e[k:]: a(x)
        a.label("Lffn_done")
    gate_store(a)
    p2_pre(a)
    istamp(a, 10)
    stamp(a, 5)
    a(f"s_waitcnt vmcnt({5 if R == 'att' else 9})")
    for x in b_copy(range(0, NB1)): a(x)
    a("s_waitcnt lgkmcnt(0)")
    r2 = []
    for st in range(NB1, 16): r2 += b_dma(st)
    npre = OPT.get("r2pre", 4)
    emit_pairs(a, r2[:npre])
    a(f"s_waitcnt vmcnt({npre})")
    a("s_barrier")
    a("v_mov_b32 v5, 1")
    a(f"buffer_store_dword v5, v{vFLG}, s[36:39], 0 offen sc1")
    stamp(a, 6)
    if R == "att": a("s_branch Lphase2")

JR = [2, 3, 14, 15]
def p2_pre(a):
    a(f"v_mov_b32 v0, v{vOUT}")
    a("v_lshlrev_b32 v4, 4, v1"); a(f"s_lshl_b32 s{T1}, s{sRB2}, 12")
    for tau in range(4):
        a(f"s_add_u32 s{T0}, s{sW_}, {tau}"); a(f"s_and_b32 s{T0}, s{T0}, 3"); a(f"s_lshl_b32 s{T0}, s{T0}, 10"); a(f"s_add_u32 s{T0}, s{T0}, s{T1}")
        a(f"v_add_u32 v{8+tau}, s{T0}, v4")
    srd(a, 16, 48, 2048*1024)

def late_setup(a, R):
    a("v_lshrrev_b32 v7, 1, v3")
    a(f"s_lshl_b32 s{T0}, s{sRH}, 13")
    for h in range(2):
        a(f"v_or_b32 v8, {4*h}, v2"); a("v_xor_b32 v8, v8, v7"); a("v_lshlrev_b32 v8, 4, v8")
        a("v_lshl_add_u32 v8, v3, 7, v8"); a(f"v_add_u32 v{XB+h}, s{T0}, v8")
    a("v_bfe_u32 v7, v1, 2, 2"); a("v_and_b32 v8, 3, v1")
    a("v_lshl_add_u32 v9, v2, 3, v7"); a("v_lshlrev_b32 v9, 7, v9")
    a("v_and_b32 v10, 1, v8"); a("v_lshl_add_u32 v9, v10, 3, v9")
    a("v_and_b32 v10, 2, v7"); a("v_and_b32 v11, 1, v2"); a("v_lshl_or_b32 v10, v11, 2, v10")
    a("v_lshrrev_b32 v11, 1, v8"); a("v_xor_b32 v10, v10, v11")
    if R == "att":
        for t in range(2):
            a(f"s_lshl_b32 s{T0}, s{sCH}, 2"); a(f"s_add_u32 s{T0}, s{T0}, {2*t}")
            a(f"v_xor_b32 v11, s{T0}, v10"); a("v_lshl_add_u32 v11, v11, 4, v9"); a(f"v_add_u32 v{WB+t}, {WOFF}, v11")
    else:
        for t in range(6):
            a(f"s_mul_i32 s{T0}, s{sCH}, 6"); a(f"s_add_u32 s{T0}, s{T0}, {t}")
            a(f"s_lshr_b32 s{T1}, s{T0}, 2"); a(f"s_and_b32 s{T0}, s{T0}, 3"); a(f"s_lshl_b32 s{T0}, s{T0}, 1")
            a(f"s_lshl_b32 s{T1}, s{T1}, 13"); a(f"s_add_u32 s{T1}, s{T1}, {WOFF}")
            a(f"v_xor_b32 v11, s{T0}, v10"); a("v_lshl_add_u32 v11, v11, 4, v9"); a(f"v_add_u32 v{WB+t}, s{T1}, v11")
    srd(a, 32, 10, 59*AWS_U)
    p2_scalar_setup(a)
    a("v_lshrrev_b32 v7, 3, v1"); a("v_and_b32 v8, 7, v1"); a("v_lshlrev_b32 v9, 1, v2"); a("v_xor_b32 v8, v8, v9")
    a("v_lshlrev_b32 v8, 4, v8"); a("v_lshl_add_u32 v7, v7, 10, v8"); a(f"s_lshl_b32 s{T0}, s{sCT2}, 7"); a(f"v_add_u32 v{vBD}, s{T0}, v7")
    a("v_bfe_u32 v7, v1, 2, 2"); a("v_and_b32 v8, 3, v1")
    a("v_lshl_add_u32 v9, v2, 2, v7"); a("v_bfe_u32 v10, v9, 1, 2"); a("v_lshlrev_b32 v10, 1, v10")
    a("v_lshlrev_b32 v9, 7, v9"); a("v_and_b32 v11, 1, v8"); a("v_lshl_add_u32 v9, v11, 3, v9")
    a("v_lshrrev_b32 v11, 1, v8"); a("v_xor_b32 v10, v10, v11")
    for c in range(4):
        a(f"v_xor_b32 v11, {2*c}, v10"); a(f"v_lshl_add_u32 v{vBF+c}, v11, 4, v9")
    if OPT.get("bpf", 0):
        a(f"s_lshr_b32 s{T0}, s2, 3"); a(f"s_lshl_b32 s{T0}, s{T0}, 6"); a(f"v_add_u32 v7, s{T0}, v1")
        a("v_lshrrev_b32 v8, 2, v7"); a("v_and_b32 v7, 3, v7"); a("v_lshlrev_b32 v7, 7, v7"); a("v_lshl_add_u32 v7, v8, 10, v7")
        a(f"s_and_b32 s{T0}, s2, 1"); a(f"s_lshl_b32 s{T0}, s{T0}, 9"); a(f"v_add_u32 v249, s{T0}, v7")
        a(f"s_add_u32 s9, s{sW_}, 2"); a("s_min_u32 s9, s9, 4")
    a(f"s_lshr_b32 s{T0}, s{sRB2}, 1"); a(f"s_lshl_b32 s{T0}, s{T0}, 4"); a(f"v_mov_b32 v43, s{T0}")
    a(f"s_lshl_b32 s{T0}, s{sRB2}, 2"); a(f"s_add_u32 s{T0}, s{T0}, s{sW_}"); a(f"s_lshl_b32 s{T0}, s{T0}, 6")
    a("v_lshlrev_b32 v7, 2, v3"); a(f"v_add_u32 v{vGRD}, s{T0}, v7")
    a(f"s_lshl_b32 s{T0}, s{T0}, 8"); a(f"s_lshl_b32 s{T1}, s{sCT2}, 7"); a(f"s_add_u32 s{T0}, s{T0}, s{T1}")
    a("v_and_b32 v7, 1, v2"); a("v_lshlrev_b32 v7, 5, v7"); a("v_lshrrev_b32 v8, 1, v2"); a("v_lshl_add_u32 v7, v8, 4, v7")
    a("v_lshl_add_u32 v7, v3, 10, v7"); a(f"v_add_u32 v{vOUT}, s{T0}, v7")

RED = 114688
def phase2(a):
    ACC2, AR, NR, DEP = 16, 80, 6, OPT.get('dep', 4)
    JIT = [144, 160]
    a.label("Lphase2")
    assert OPT.get("r2pre", 4) <= 20
    r2 = []
    for st in range(NB1, 14): r2 += b_dma(st)
    emit_pairs(a, r2[OPT.get("r2pre", 4):])
    for st in (14, 15):
        a(f"s_cmp_gt_u32 s{sN2}, {st}"); a("s_cbranch_scc0 Lp2_nomore")
        emit_pairs(a, b_dma(st))
    a.label("Lp2_nomore")
    a(f"s_lshr_b32 s{T2}, s{sRB2}, 1"); a(f"s_lshl_b32 s{T2}, s{T2}, 7"); a(f"s_add_u32 s{T2}, s{T2}, {FLAG_OFF}")
    a("v_and_b32 v5, 15, v1"); a(f"v_lshl_add_u32 v5, v5, 3, s{T2}")
    a("v_readfirstlane_b32 s68, v64")
    a(f"s_cmp_eq_u32 s{sW_}, 0"); a("s_cbranch_scc0 Lp2_other")
    a(f"s_mov_b32 s{T1}, 0")
    a.label("Lp2_clr")
    a("s_cmp_ge_u32 s68, 16"); a("s_cbranch_scc1 Lp2_cleared")
    a("s_sleep 8")
    a("global_load_dword v64, v43, s[50:51] sc1")
    a(f"s_add_u32 s{T1}, s{T1}, 1")
    a("s_waitcnt vmcnt(0)")
    a("v_readfirstlane_b32 s68, v64")
    a(f"s_cmp_gt_u32 s{T1}, 0x100000"); a("s_cbranch_scc0 Lp2_clr")
    a.label("Lp2_cleared")
    a("buffer_load_dword v6, v5, s[36:39], 0 offen sc1")
    a("s_waitcnt vmcnt(1)")
    for x in b_copy(range(NB1, 16)): a(x)
    a("s_waitcnt vmcnt(0)")
    a("s_branch Lp2_check")
    a.label("Lp2_poll")
    if OPT.get("pp", 0):
        a("buffer_load_dword v6, v5, s[36:39], 0 offen sc1")
        a(f"s_sleep {OPT.get('pp')}")
        a.label("Lp2_poll2")
        a("buffer_load_dword v7, v5, s[36:39], 0 offen sc1")
        a("s_waitcnt vmcnt(1)")
        a("v_cmp_ne_u32 vcc, 1, v6")
        a(f"s_add_u32 s{T1}, s{T1}, 1"); a(f"s_cmp_gt_u32 s{T1}, 0x200000"); a("s_cbranch_scc1 Lp2_go")
        a("s_nop 1")
        a("s_cbranch_vccz Lp2_go")
        a("buffer_load_dword v6, v5, s[36:39], 0 offen sc1")
        a("s_waitcnt vmcnt(1)")
        a("v_cmp_ne_u32 vcc, 1, v7")
        a("s_nop 4")
        a("s_cbranch_vccnz Lp2_poll2")
        a("s_branch Lp2_go")
    else:
        a(f"s_sleep {OPT.get('sleep', 1)}")
        a("buffer_load_dword v6, v5, s[36:39], 0 offen sc1")
        a(f"s_add_u32 s{T1}, s{T1}, 1")
        a("s_waitcnt vmcnt(0)")
        a(f"s_cmp_gt_u32 s{T1}, 0x200000"); a("s_cbranch_scc1 Lp2_go")
    a.label("Lp2_check")
    a("v_cmp_ne_u32 vcc, 1, v6")
    a("s_nop 4")
    a("s_cbranch_vccnz Lp2_poll")
    a("s_branch Lp2_go")
    a.label("Lp2_other")
    a("s_waitcnt vmcnt(0)")
    for x in b_copy(range(NB1, 16)): a(x)
    a.label("Lp2_go")
    a("s_waitcnt lgkmcnt(0)")
    a("s_barrier")
    stamp(a, 7)
    def loadA(step):
        return [f"buffer_load_dwordx4 {vr(AR+16*(step%NR)+4*tau,4)}, v{8+tau}, s[28:31], s{T0 + (step & 1)} offen sc1" for tau in (1, 2, 3, 0)]
    a(f"buffer_load_dword v12, v{vGRD}, s[36:39], 0 offen sc1")
    for st in range(DEP):
        for x in next_step(sUA, T0 + (st & 1), AWS_U, st): a(x)
        for x in loadA(st): a(x)
    NS = 16
    pre = []
    pre.append(["v_lshlrev_b32 v4, 4, v1", f"v_add_u32 v4, {RED}, v4"])
    for tau in range(1, 4):
        pre.append([f"s_add_u32 s{T2}, s{sW_}, {tau}", f"s_and_b32 s{T2}, s{T2}, 3", f"s_mul_i32 s{T2}, s{T2}, 12288", f"v_add_u32 v{175+tau}, s{T2}, v4"])
    pre.append([f"s_mul_i32 s{T2}, s{sW_}, 12288", f"v_add_u32 v179, s{T2}, v4"])
    pre.append(["v_sub_f32 v13, 1.0, v12"])
    for k in range(4):
        pre.append([f"s_sub_u32 s{T2}, s{sW_}, {k}", f"s_and_b32 s{T2}, s{T2}, 3", f"s_cmp_eq_u32 s{T2}, 0", "s_cselect_b64 s[68:69], -1, 0",
                    f"v_cndmask_b32 v{180+k}, v13, v12, s[68:69]"])
    for st in range(NS):
        younger = min(st + DEP - 1, NS - 1) - st
        if st >= 14:
            a(f"s_cmp_gt_u32 s{sN2}, {st}"); a("s_cbranch_scc0 Lp2_short")
        a(f"s_waitcnt vmcnt({4*younger})")
        if st == 0: stamp(a, 8)
        bsrc = 16*st
        mf = []
        for tau in (1, 2, 3, 0):
            for c in range(4):
                d = ACC2 + 4*(4*tau + c)
                C = vr(d,4) if st > 0 else "0"
                mf.append(f"v_mfma_f32_16x16x32_bf16 {vr(d,4)}, {ar(bsrc+4*c,4)}, {vr(AR+16*(st%NR)+4*tau,4)}, {C}")
        nxt = st + 1
        rd = []
        after = [[] for _ in mf]
        for k, x in enumerate(rd): after[k].append(x)
        if st + DEP < NS:
            after[0] += next_step(sUA, T0 + ((st+DEP) & 1), AWS_U, st + DEP)
            for k, x in enumerate(loadA(st + DEP)): after[1 + 4*k].append(x)
        if 1 <= st <= 5:
            for k, ch in enumerate(pre[2*(st-1):2*st]): after[3 + 6*k] += ch
        if st == NS - 1:
            for tau in (1, 2):
                for c in range(4):
                    after[min(4*tau + 4 + c, 15)].append(f"ds_write_b128 v{175+tau}, {vr(ACC2+4*(4*tau+c),4)} offset:{(tau-1)*4096 + c*1024}")
        for m, f in zip(mf, after):
            a(m)
            for x in f: a(x)
    a.nop(2)
    a("s_branch Lp2_red")
    a.label("Lp2_short")
    a("s_waitcnt vmcnt(0)")
    a.nop(8)
    for tau in (1, 2):
        for c in range(4):
            a(f"ds_write_b128 v{175+tau}, {vr(ACC2+4*(4*tau+c),4)} offset:{(tau-1)*4096 + c*1024}")
    a.label("Lp2_red")
    stamp(a, 9)
    for c in range(4):
        a(f"ds_write_b128 v178, {vr(ACC2+4*(12+c),4)} offset:{2*4096 + c*1024}")
    for r in range(0, 16, 2): a(f"v_pk_mul_f32 {vr(ACC2+r,2)}, {vr(ACC2+r,2)}, {vr(180,2)} op_sel_hi:[1,0]")
    a("s_waitcnt lgkmcnt(0)"); a("s_barrier")
    R = 80
    for pos in range(3):
        for c in range(4):
            a(f"ds_read_b128 {vr(R+16*pos+4*c,4)}, v179 offset:{pos*4096 + c*1024}")
    for pos in range(3):
        a(f"s_waitcnt lgkmcnt({8 - 4*pos})")
        f = 181 + pos; pr = vr(f - f % 2, 2); sel = f % 2
        for r in range(0, 16, 2):
            a(f"v_pk_fma_f32 {vr(ACC2+r,2)}, {vr(R+16*pos+r,2)}, {pr}, {vr(ACC2+r,2)} op_sel:[0,{sel},0] op_sel_hi:[1,{sel},1]")
    for c in range(4):
        a(f"v_cvt_pk_bf16_f32 v{32+2*c}, v{ACC2+4*c}, v{ACC2+4*c+1}"); a(f"v_cvt_pk_bf16_f32 v{33+2*c}, v{ACC2+4*c+2}, v{ACC2+4*c+3}")
    a("s_nop 1")
    for p in range(2):
        b = 32 + 4*p
        a(f"v_permlane16_swap_b32 v{b}, v{b+2}"); a(f"v_permlane16_swap_b32 v{b+1}, v{b+3}")
    for p in range(2):
        a(f"buffer_store_dwordx4 {vr(32+4*p,4)}, v0, s[16:19], 0 offen offset:{64*p} {['', 'sc1', 'nt', 'sc0 sc1'][OPT.get('outfl', 0)]}")
    stamp(a, 10)

def kernel():
    a = Asm()
    a(f".globl {KNAME}"); a(".p2align 8"); a(f".type {KNAME},@function"); a.label(KNAME)
    a("s_cmp_ge_u32 s2, 256"); a("s_cbranch_scc1 Lend")
    stamp(a, 0)
    a("s_load_dwordx4 s[4:7], s[0:1], 0")
    a("s_load_dwordx4 s[12:15], s[0:1], 32")
    a("s_load_dwordx4 s[44:47], s[0:1], 48")
    a("s_load_dwordx2 s[8:9], s[0:1], 16")
    a("s_load_dwordx4 s[48:51], s[0:1], 64")
    a("s_load_dwordx2 s[10:11], s[0:1], 80")
    a("v_lshrrev_b32 v4, 6, v0"); a("v_and_b32 v1, 63, v0"); a("v_lshrrev_b32 v2, 4, v1"); a("v_and_b32 v3, 15, v1")
    a(f"v_readfirstlane_b32 s{sW_}, v4")
    if OPT.get("cpf", 1):
        NL = OPT.get("cpfn", 10)
        a("s_getpc_b64 s[16:17]")
        a.label("Lpc")
        a(f"s_lshr_b32 s18, s2, 3"); a(f"s_mul_i32 s18, s18, {NL}")
        a(f"v_min_u32 v5, {NL-1}, v1"); a("v_add_u32 v5, s18, v5"); a("v_lshlrev_b32 v5, 7, v5")
        a("v_min_u32 v5, (Lend-Lpc), v5")
        a(f"s_cmp_eq_u32 s{sW_}, 0"); a("s_cbranch_scc0 Lnopf")
        a("global_load_dword v255, v5, s[16:17]")
        a.label("Lnopf")
    a(f"s_and_b32 s{T2}, s2, 4"); a(f"s_lshl_b32 s{sRB}, s{T2}, 1"); a(f"s_lshr_b32 s{T4}, s2, 5"); a(f"s_add_u32 s{sRB}, s{sRB}, s{T4}")
    a(f"s_and_b32 s{T3}, s2, 3"); a(f"s_lshl_b32 s{T3}, s{T3}, 1")
    a(f"s_bfe_u32 s{T5}, s2, 0x10003"); a(f"s_add_u32 s{sGRP}, s{T3}, s{T5}")
    a(f"s_bfe_u32 s{sTYPE}, s2, 0x10004")
    a(f"s_and_b32 s{T4}, s{T4}, 3"); a(f"s_add_u32 s{T4}, s{T4}, s{T2}"); a(f"s_add_u32 s{T4}, s{T4}, s{sGRP}"); a(f"s_and_b32 s{T6}, s{T4}, 7")
    a(f"s_lshr_b32 s{sRH}, s{sW_}, 1"); a(f"s_and_b32 s{sCH}, s{sW_}, 1")
    a(f"s_lshl_b32 s{sKX}, s{T6}, 7")
    a(f"s_lshl_b32 s{sXD}, s{sW_}, 12"); a(f"s_add_u32 s{sXE}, s{sW_}, 16"); a(f"s_lshl_b32 s{sXE}, s{sXE}, 10")
    a(f"s_mul_i32 s{sWD}, s{sW_}, 6144"); a(f"s_add_u32 s{sWD}, s{sWD}, {WOFF}")
    a(f"s_mov_b32 s{sCUR}, 0"); a(f"s_mov_b32 s{sNXT}, {STAGE}"); a(f"s_mov_b32 s{sPRV}, {2*STAGE}")
    a("v_lshrrev_b32 v4, 3, v1"); a("v_and_b32 v5, 7, v1"); a("v_xor_b32 v6, v5, v2")
    a("v_lshlrev_b32 v7, 10, v4"); a("v_lshl_add_u32 v8, v6, 4, v7"); a("v_xor_b32 v9, 64, v8")
    common_start(a)
    a(f"s_cmp_eq_u32 s{sTYPE}, 0"); a("s_cbranch_scc0 Lffn")
    phase1_role(a, "att")
    a.label("Lffn")
    phase1_role(a, "ffn")
    phase2(a)
    stamp_flush(a)
    a.label("Lend")
    a("s_endpgm")
    return a.text()

def main(out):
    t = kernel()
    src = """; out = g * (attn(x) @ wo) + (1 - g) * (mish(x @ w1 + b1) @ w2),  g = sigmoid(x . gate_w);  one launch, 256 workgroups of 4 waves.
; Phase 1: workgroup = 128 rows x (4 heads: q,k,v projection + dilated window attention | up to 192 FFN columns + mish), K staged through
"""
    src += f"; @launch grid=(256,1,1) block=(256,1,1) lds={LDS_BYTES}\n"
    src += '.amdgcn_target "amdgcn-amd-amdhsa--gfx950"\n.text\n' + t + kd(KNAME, 512, 256)
    open(out, "w").write(src)

if __name__ == "__main__":
    if "--instr" in sys.argv: INSTR = True; sys.argv.remove("--instr")
    for x in list(sys.argv):
        if x.startswith("--"):
            sys.argv.remove(x); k, _, v = x[2:].partition("="); OPT[k] = int(v) if v else 1
    AWS_U = 131072 + OPT.get("skew", 0)
    main(sys.argv[1] if len(sys.argv) > 1 else "cdna_kernels/" + NAME + ".s")
```
